```python
import torch

def _softmax(x, axis=-1):
    return torch.softmax(x, dim=axis)
def _gelu(x):
    return torch.nn.functional.gelu(x, approximate="tanh")
def _silu(x):
    return torch.nn.functional.silu(x)
def _sigmoid(x):
    return torch.sigmoid(x)
def _layernorm(x, axis=-1, eps=1e-5):
    m = x.mean(dim=axis, keepdim=True)
    v = x.var(dim=axis, keepdim=True, unbiased=False)
    return (x - m) / torch.sqrt(v + eps)
def _scatter_add(tgt, idx, src, axis=0):
    return tgt.clone().index_add_(axis, idx, src)
def _segment_sum(src, seg, n):
    out = torch.zeros((n,) + src.shape[1:], dtype=src.dtype)
    return out.index_add_(0, seg, src)
def _pad(x, pw):
    flat = tuple(v for pair in reversed(pw) for v in pair)
    return torch.nn.functional.pad(x, flat)

kernel_name = 'parallel_sum__grouped_kv_mqa__glu_gated_reglu__prompt'

def setup_inputs():

    _w = (lambda a: (lambda t: t.to(torch.bfloat16) if t.is_floating_point() else t)(torch.as_tensor(a)))
    def _A_setup():
        B, S, D, H = 1, 2048, 576, 32
        Dh = D // H
        return {
            "x": _w((lambda *s: torch.randn(*s, dtype=torch.bfloat16) * 0.05)(B, S, D)),
            "wq": _w((lambda *s: torch.randn(*s, dtype=torch.bfloat16) * 0.05)(D, H * Dh)),
            "wk": _w((lambda *s: torch.randn(*s, dtype=torch.bfloat16) * 0.05)(D, Dh)),
            "wv": _w((lambda *s: torch.randn(*s, dtype=torch.bfloat16) * 0.05)(D, Dh)),
            "wo": _w((lambda *s: torch.randn(*s, dtype=torch.bfloat16) * 0.05)(H * Dh, D)),
        }
    _A_in = _A_setup()

    def _B_setup():
        B, S, D, F = 1, 2048, 576, 4608
        return {
            "x": _w((lambda *s: torch.randn(*s, dtype=torch.bfloat16) * 0.05)(B, S, D)),
            "W_gate": _w((lambda *s: torch.randn(*s, dtype=torch.bfloat16) * 0.4)(D, F) * (2.0 / D) ** 0.5),
            "W_up": _w((lambda *s: torch.randn(*s, dtype=torch.bfloat16) * 0.4)(D, F) * (2.0 / D) ** 0.5),
            "W_down": _w((lambda *s: torch.randn(*s, dtype=torch.bfloat16) * 0.4)(F, D) * (1.0 / F) ** 0.5),
        }
    _B_in = _B_setup()

    return {
        "A_x": _A_in["x"],
        "A_wq": _A_in["wq"],
        "A_wk": _A_in["wk"],
        "A_wv": _A_in["wv"],
        "A_wo": _A_in["wo"],
        "B_x": _B_in["x"],
        "B_W_gate": _B_in["W_gate"],
        "B_W_up": _B_in["W_up"],
        "B_W_down": _B_in["W_down"],
    }

def reference(A_x, A_wq, A_wk, A_wv, A_wo, B_x, B_W_gate, B_W_up, B_W_down):
    def _A_ref(x, wq, wk, wv, wo):
        B, S, D = x.shape
        H = 32
        Dh = D // H
        q = (lambda x, *d: x.permute(*d))((x @ wq).reshape(B, S, H, Dh), 0, 2, 1, 3)
        k = x @ wk
        v = x @ wv
        scores = torch.einsum("bhqd,bkd->bhqk", q, k) * (Dh ** -0.5)
        p = _softmax(scores, axis=-1)
        o = torch.einsum("bhqk,bkd->bhqd", p, v)
        return (lambda x, *d: x.permute(*d))(o, 0, 2, 1, 3).reshape(B, S, H * Dh) @ wo

    def _B_ref(x, W_gate, W_up, W_down):
        gate = torch.einsum("bsd,df->bsf", x, W_gate)
        up = torch.einsum("bsd,df->bsf", x, W_up)
        gate = gate * (lambda x, dt: x.to(dt))(gate > 0, gate.dtype)
        h = gate * up
        return torch.einsum("bsf,fd->bsd", h, W_down)

    x = A_x
    xn = _layernorm(x, axis=-1)
    return x + _A_ref(xn, A_wq, A_wk, A_wv, A_wo) + _B_ref(xn, B_W_gate, B_W_up, B_W_down)
```

```python
from dsl import *
from layout import *
import stamps, struct
def f32(x): return struct.unpack("<I", struct.pack("<f", x))[0]

import mk
ATB = mk.KVIMG
GRP = 4 * KV_PITCH
Q1 = [16, 24]; Q2 = [20, 28]
S_ = [32, 48]; P_ = [64, 72]; O_ = [80, 96]
K1 = [112, 120]; K2 = [116, 124]
VA = [128, 136]; VB = [132, 140]
aK1, aK2, aV = 2, 3, 4
LTHR = f32(2.0 ** -60)


import cfg as CFG
def srd(a, d, p, nbytes, off=0):
    if off: a(f"s_add_u32 s{d}, s{p}, {off}"); a(f"s_addc_u32 s{d+1}, s{p+1}, 0")
    else: a(f"s_mov_b32 s{d}, s{p}"); a(f"s_mov_b32 s{d+1}, s{p+1}")
    a(f"s_mov_b32 s{d+2}, {nbytes}"); a(f"s_mov_b32 s{d+3}, 0x20000")

def pack_issue(a, r):
    a(f"s_lshl_b32 s40, s2, 2"); a("s_add_u32 s40, s40, s36")
    if r: a("s_add_u32 s40, s40, 1024"); a("s_cmp_ge_u32 s40, 1476"); a("s_cbranch_scc1 L_pk_skip")
    a("s_mul_hi_u32 s41, s40, s60"); a("s_mul_i32 s42, s41, 9"); a("s_sub_u32 s42, s40, s42")
    a("s_mul_hi_u32 s43, s41, s60"); a("s_mul_i32 s44, s43, 9"); a("s_sub_u32 s44, s41, s44")
    a("s_add_u32 s45, s44, 1"); a("s_cmp_eq_u32 s45, 9"); a("s_cselect_b32 s45, 0, s45")
    a("s_bitcmp1_b32 s43, 0"); a("s_cselect_b32 s45, s44, s45")
    a("s_lshr_b32 s46, s43, 2"); a("s_and_b32 s47, s43, 3"); a("s_lshl_b32 s48, s41, 5")
    a("s_mov_b32 s49, 0")
    a("s_cmp_lt_u32 s41, 144"); a(f"s_cbranch_scc1 L_pk_h{r}")
    a("s_sub_u32 s44, s41, 144"); a("s_mul_hi_u32 s46, s44, s61"); a("s_mul_i32 s43, s46, 5"); a("s_sub_u32 s44, s44, s43")
    a("s_add_u32 s45, s44, 36")
    a("s_mul_i32 s48, s46, 144"); a("s_mul_i32 s43, s44, 36")
    a("s_cmp_eq_u32 s44, 4"); a("s_cselect_b32 s49, 2, 1"); a("s_cselect_b32 s43, 0, s43"); a("s_add_u32 s48, s48, s43")
    a.label(f"L_pk_h{r}")
    a("s_cmp_lt_u32 s45, 7"); a("s_cselect_b32 s52, 7, 2"); a("s_cselect_b32 s43, 0, 21")
    a("s_cmp_eq_u32 s49, 0"); a("s_cselect_b32 s52, s52, 0"); a("s_cselect_b32 s43, s43, 0"); a("s_add_u32 s45, s45, s43")
    a("s_cmp_eq_u32 s49, 0")
    a("s_cselect_b32 s4, s80, s72"); a("s_cselect_b32 s5, s81, s73"); a("s_cselect_b32 s6, s62, s63"); a("s_mov_b32 s7, 0x20000")
    a("s_cmp_eq_u32 s49, 2"); a("s_cselect_b64 vcc, -1, 0"); a("v_cndmask_b32 v14, v12, v13, vcc")
    a("s_mul_i32 s48, s48, 1152"); a("s_lshl_b32 s43, s42, 7"); a("s_add_u32 s48, s48, s43")
    for i in range(4):
        c0 = 8 * i; c1 = 8 * i + (2 if i >= 2 else 0); c2 = 16 + 36 * (i & 1)
        a(f"s_mov_b32 s43, {c0*1152}"); a("s_cmp_eq_u32 s49, 1"); a(f"s_cselect_b32 s43, {c1*1152}, s43")
        a("s_cmp_eq_u32 s49, 2"); a(f"s_cselect_b32 s43, {c2*1152}, s43"); a("s_add_u32 s43, s43, s48")
        a(f"s_add_u32 m0, s50, {r*4096 + i*1024}")
        a("buffer_load_dwordx4 v14, s[4:7], s43 offen lds")
    for c in range(4):
        d = 64 + 4 * r + c
        a("s_lshl_b32 s43, s42, 2"); a(f"s_add_u32 s43, s43, {c}")
        a("s_mul_hi_u32 s44, s43, s60"); a("s_mul_i32 s48, s44, 9"); a("s_sub_u32 s43, s43, s48")
        a("s_sub_u32 s48, s47, s44"); a("s_and_b32 s48, s48, 3"); a("s_mul_i32 s48, s48, s52"); a("s_add_u32 s48, s48, s45")
        a("s_lshl_b32 s51, s46, 2"); a("s_add_u32 s51, s51, s44"); a("s_mul_i32 s51, s51, 41"); a("s_add_u32 s51, s51, s48")
        a("s_mul_i32 s51, s51, 9"); a("s_add_u32 s51, s51, s43"); a(f"s_lshl_b32 s{d}, s51, 10")

def pack_store(a, r):
    for c in range(4):
        b = 32 + 16 * r + 4 * c
        a(f"ds_read_b64_tr_b16 v[{b}:{b+1}], v{16+c} offset:{r*4096}")
        a(f"ds_read_b64_tr_b16 v[{b+2}:{b+3}], v{16+c} offset:{r*4096+1024}")
    a.wait_lg0()
    for c in range(4):
        b = 32 + 16 * r + 4 * c
        a(f"buffer_store_dwordx4 v[{b}:{b+3}], v11, s[12:15], s{64+4*r+c} offen{CFG.SS}")

PACE0 = 10; PACE = 3
def gen_at(a):
    a.label("L_at")
    a.vmq = []; a.lgq = []
    srd(a, 12, 86, PK_BYTES, PK_OFF)
    a("s_mov_b32 s60, 0x1c71c71d"); a("s_mov_b32 s61, 0x33333334"); a(f"s_mov_b32 s62, {F*D*2}"); a(f"s_mov_b32 s63, {D*D*2}")
    a(f"s_lshl_b32 s50, s36, 13"); a(f"s_add_u32 s50, s50, {ATB}")
    a("v_lshrrev_b32 v2, 3, v1"); a("v_bfe_u32 v3, v1, 1, 2"); a("v_bfe_u32 v4, v1, 4, 2"); a("v_xor_b32 v3, v3, v4"); a("v_lshlrev_b32 v3, 5, v3")
    a("v_and_b32 v4, 1, v1"); a("v_lshl_add_u32 v3, v4, 4, v3")
    a("v_mul_u32_u24 v4, 1152, v2"); a("v_add_u32 v12, v4, v3")
    a("v_and_b32 v4, 4, v2"); a("v_bfe_u32 v5, v2, 1, 1"); a("v_add_u32 v4, v4, v5"); a("v_mul_u32_u24 v4, 18, v4"); a("v_and_b32 v5, 1, v2"); a("v_add_u32 v4, v4, v5")
    a("v_mul_u32_u24 v4, 1152, v4"); a("v_add_u32 v13, v4, v3")
    a("v_lshrrev_b32 v2, 5, v1"); a("v_lshlrev_b32 v2, 4, v2"); a("v_bfe_u32 v3, v1, 4, 1"); a("v_lshl_add_u32 v2, v3, 2, v2"); a("v_bfe_u32 v4, v1, 2, 2"); a("v_add_u32 v2, v2, v4")
    a("v_bfe_u32 v3, v2, 1, 2"); a("v_lshlrev_b32 v2, 7, v2"); a("v_lshl_add_u32 v2, v3, 5, v2"); a("v_and_b32 v3, 3, v1"); a("v_lshl_add_u32 v2, v3, 3, v2")
    a("v_add_u32 v16, s50, v2"); a("v_xor_b32 v17, 32, v16"); a("v_xor_b32 v18, 64, v16"); a("v_xor_b32 v19, 96, v16")
    a("s_lshl_b32 s40, s37, 4"); a("s_add_u32 s40, s40, s38"); a("s_lshl_b32 s40, s40, 7"); a(f"s_add_u32 s40, s40, {FL_REL}")
    a("v_mov_b32 v2, 0"); a("v_lshlrev_b32 v3, 2, v1")
    a("s_mov_b32 exec_hi, 0"); a(f"buffer_store_dword v2, v3, s[12:15], s40 offen{CFG.SS}"); a("s_mov_b32 exec_hi, -1")
    a("s_waitcnt lgkmcnt(0)")
    a("s_barrier"); a("s_barrier")
    pack_issue(a, 0); pack_issue(a, 1)
    a.label("L_pk_skip")
    a("s_waitcnt vmcnt(0)")
    pack_store(a, 0)
    a(f"s_lshl_b32 s40, s2, 2"); a("s_add_u32 s40, s40, s36"); a("s_cmp_ge_u32 s40, 452"); a("s_cbranch_scc1 L_pk_skip2")
    pack_store(a, 1)
    a.label("L_pk_skip2")
    a.vmq = []; a.lgq = []
    a("v_mov_b32 v5, v11")
    a(f"v_add_u32 v{aK1}, {ATB}, v5")
    a("v_and_b32 v6, 31, v1"); a(f"v_lshlrev_b32 v{aK2}, 2, v6"); a(f"v_add_u32 v{aK2}, {ATB+1024}, v{aK2}")
    a("v_mov_b32 v7, 0"); a("v_cmp_lt_u32 vcc, 27, v6"); a("v_cndmask_b32 v7, v7, 4, vcc")
    a("v_cmp_eq_u32 vcc, 19, v6"); a("v_cndmask_b32 v7, v7, 4, vcc")
    a("v_cmp_eq_u32 vcc, 22, v6"); a("v_cndmask_b32 v7, v7, 18, vcc")
    a("v_cmp_gt_u32 vcc, 19, v6"); a("v_cndmask_b32 v7, v7, v6, vcc")
    a("v_lshrrev_b32 v8, 5, v1"); a("v_mul_u32_u24 v8, 304, v8"); a(f"v_lshl_add_u32 v9, v7, 4, v8")
    a(f"v_add_u32 v{aV}, {ATB+1280}, v9")
    a(f"s_mul_i32 s44, s36, {KV_PITCH}"); a(f"s_add_u32 s45, s44, {KV_OFF}"); a(f"s_add_u32 s44, s44, {ATB}")
    for c in (0, 1):
        for k in range(16): a(f"v_mov_b32 v{O_[c]+k}, 0")
        a(f"v_mov_b32 v{Q2[c]+2}, 0"); a(f"v_mov_b32 v{Q2[c]+3}, 0"); a(f"v_mov_b32 v{K2[c]+2}, 0"); a(f"v_mov_b32 v{K2[c]+3}, 0")
    a("s_cmp_lg_u32 s36, 0"); a("s_cbranch_scc1 L_at_go")
    a("v_mov_b32 v10, 0"); a("s_mov_b32 s56, 0")
    a.label("L_at_poll")
    a(f"buffer_load_dword v12, v10, s[32:35], 0 offen{CFG.SP}")
    a("s_waitcnt vmcnt(0)")
    a("v_readfirstlane_b32 s40, v12")
    a(f"s_cmp_ge_u32 s40, {32*4096}")
    a("s_cbranch_scc1 L_at_go")
    a("s_add_u32 s56, s56, 1"); a("s_cmp_ge_u32 s56, 0x80000"); a("s_cbranch_scc1 L_at_go")
    a("s_sleep 8"); a("s_branch L_at_poll")
    a.label("L_at_go")
    a.vmq = []
    mk.arrive(a, 4, 14)
    mk.chk_issue(a, 4); mk.chk(a, "a1", 4, 1, sleep=4)
    stamps.stamp(a, 1)
    def kvdma(m, slot):
        for j in range(3):
            a(f"s_add_u32 m0, s44, {slot*GRP + j*1024}"); a(f"s_add_u32 s42, s45, {m*GRP + j*1024}")
            a(f"buffer_load_dwordx4 v5, s[28:31], s42 offen{CFG.SL} lds", tag=f"kv{m}")
    kvdma(0, 0); kvdma(1, 1)
    a("v_lshlrev_b32 v10, 3, v1"); a("v_lshlrev_b32 v13, 2, v1")
    a(f"s_mov_b32 s40, {KMAX_OFF}")
    a(f"buffer_load_dword v12, v13, s[28:31], s40 offen{CFG.SL}", tag="km")
    a.wait_vm("km")
    mk.arrive(a, 4, 14)
    for off in (0x041F, 0x081F, 0x101F, 0x201F, 0x401F):
        a(f"ds_swizzle_b32 v13, v12 offset:{off:#x}"); a.wait_lg0(); a("v_max_f32 v12, v12, v13")
    a("v_mov_b32 v13, v12"); a("v_permlane32_swap_b32 v12, v13"); a("v_max_f32 v12, v12, v13")
    a("v_sqrt_f32 v12, v12"); a(f"v_mul_f32 v12, {f32(1+1/64.):#x}, v12"); a("v_mov_b32 v13, 0")
    a(f"v_cvt_pk_bf16_f32 v{K2[0]+1}, v12, v13"); a(f"v_mov_b32 v{K2[1]+1}, v{K2[0]+1}")
    mk.chk_issue(a, 0); mk.chk(a, "aq", 0, 10, sleep=4)
    a("s_lshl_b32 s43, s39, 5"); a("s_lshl_b32 s40, s38, 1"); a("s_add_u32 s43, s43, s40"); a(f"s_mul_i32 s43, s43, {Q_PITCH}"); a(f"s_add_u32 s43, s43, {Q_OFF}")
    for c in (0, 1):
        a(f"buffer_load_dwordx4 v[{Q1[c]}:{Q1[c]+3}], v5, s[28:31], s43 offen offset:{c*Q_PITCH}{CFG.SL}", tag="q")
        a(f"buffer_load_dwordx2 v[{Q2[c]}:{Q2[c]+1}], v10, s[28:31], s43 offen offset:{c*Q_PITCH+1024}{CFG.SL}", tag="q")
    mk.chk_issue(a, 4); mk.chk(a, "a2", 4, 2, sleep=1)
    stamps.stamp(a, 2)
    a("s_setprio 1")

    def rdK(i, b):
        a(f"ds_read_b128 v[{K1[b]}:{K1[b]+3}], v{aK1} offset:{i*KV_PITCH}", tag=f"k{b}")
        a(f"ds_read_b32 v{K2[b]}, v{aK2} offset:{i*KV_PITCH}", tag=f"k{b}")
    def rdV(i, b):
        a(f"ds_read_b128 v[{VA[b]}:{VA[b]+3}], v{aV} offset:{i*KV_PITCH}", tag=f"v{b}")
        a(f"ds_read_b128 v[{VB[b]}:{VB[b]+3}], v{aV} offset:{i*KV_PITCH+608}", tag=f"v{b}")
    def qk(c, b):
        S = S_[c]
        return [f"v_mfma_f32_32x32x16_bf16 v[{S}:{S+15}], v[{K1[b]}:{K1[b]+3}], v[{Q1[c]}:{Q1[c]+3}], 0",
                f"v_mfma_f32_32x32x16_bf16 v[{S}:{S+15}], v[{K2[b]}:{K2[b]+3}], v[{Q2[c]}:{Q2[c]+3}], v[{S}:{S+15}]"]
    def pv(c, b):
        O = O_[c]; P = P_[c]
        return [f"v_mfma_f32_32x32x16_bf16 v[{O}:{O+15}], v[{VA[b]}:{VA[b]+3}], v[{P}:{P+3}], v[{O}:{O+15}]",
                f"v_mfma_f32_32x32x16_bf16 v[{O}:{O+15}], v[{VB[b]}:{VB[b]+3}], v[{P+4}:{P+7}], v[{O}:{O+15}]"]
    def half(i, c, do_qk, do_pv, pre=None, mid=None):
        S = S_[c]; P = P_[c]; cn = 1 - c
        bq = (i + c) & 1
        bv = (i + 1) & 1 if c == 0 else i & 1
        mq = qk(cn, bq) if do_qk else [None, None]
        mp = pv(cn, bv) if do_pv else [None, None]
        slots = [mq[0], mq[1], mp[0], mp[1]]
        for s in range(4):
            if s == 0 and do_qk: a.wait_lg(f"k{bq}")
            if s == 2 and do_pv: a.wait_lg(f"v{bv}")
            if slots[s]: a(slots[s])
            if s == 0 and pre: pre()
            if s == 2 and mid: mid()
            for e in range(4): a(f"v_exp_f32 v{S+4*s+e}, v{S+4*s+e}")
            if s > 0:
                for k in range(2): a(f"v_cvt_pk_bf16_f32 v{P+2*(s-1)+k}, v{S+4*(s-1)+2*k}, v{S+4*(s-1)+2*k+1}")
        for k in range(2): a(f"v_cvt_pk_bf16_f32 v{P+6+k}, v{S+12+2*k}, v{S+12+2*k+1}")
    rdK(0, 0)
    a.wait_vm("q")
    a.wait_lg("k0")
    for m in qk(0, 0): a(m)
    a("s_nop 7"); a("s_nop 3")
    uid = [0]
    def body(first, last, dma):
        uid[0] += 1; u = uid[0]
        for i in range(4):
            def pre0():
                if i == 3:
                    if not last:
                        a(f"v_add_u32 v{aK1}, s46, v{aK1}"); a(f"v_add_u32 v{aK2}, s46, v{aK2}")
                        rdK(0, 0)
                else:
                    rdK(i + 1, (i + 1) & 1)
                rdV(i, i & 1)
                if i == 3 and not last: a(f"v_add_u32 v{aV}, s46, v{aV}")
                if i == 0 and dma and not first: mk.chk_issue(a, 4)
                if i == 2 and not last: mk.chk_issue(a, 4)
                if i == 3 and not last and PACE: mk.chk_issue(a, 0, v=13)
            for c in (0, 1):
                hs = 2 * i + c
                def mid():
                    if hs == 1 and dma:
                        if not first: mk.chk(a, f"w{u}", 4, "s52")
                        for j in range(3):
                            a(f"s_add_u32 m0, s49, {j*1024}"); a(f"s_add_u32 s42, s48, {j*1024}")
                            a(f"buffer_load_dwordx4 v5, s[28:31], s42 offen{CFG.SL} lds", tag="kvn")
                    if hs == 3 and not last:
                        a(f"s_waitcnt vmcnt({3 if dma else 0})"); mk.arrive(a, 4, 14); a("s_add_u32 s52, s52, s53")
                    if hs == 5 and not last: mk.chk(a, f"r{u}", 4, "s52")
                    if hs == 7 and not last:
                        mk.arrive(a, 4, 14); a("s_add_u32 s52, s52, s53")
                if c == 0: half(i, 0, True, not (first and i == 0), pre=pre0, mid=mid)
                else: half(i, 1, not (last and i == 3), True, mid=mid)
    def advance():
        a("s_add_u32 s47, s47, 1"); a("s_cmp_eq_u32 s47, 3"); a("s_cselect_b32 s47, 0, s47")
        a("s_cmp_eq_u32 s47, 2"); a(f"s_cselect_b32 s46, {(-2*GRP) & 0xffffffff:#x}, s63")
        a(f"s_add_u32 s48, s48, {GRP}")
        a(f"s_add_u32 s49, s49, {GRP}"); a(f"s_add_u32 s40, s44, {3*GRP}"); a("s_cmp_eq_u32 s49, s40"); a("s_cselect_b32 s49, s44, s49")
        if PACE:
            uid[0] += 1
            a("s_add_u32 s54, s54, s57")
            mk.chk(a, f"p{uid[0]}", 0, "s54", v=13, sleep=2)
    a("s_mov_b32 s47, 0"); a(f"s_mov_b32 s46, {GRP}"); a(f"s_mov_b32 s63, {GRP}"); a(f"s_add_u32 s48, s45, {2*GRP}"); a(f"s_add_u32 s49, s44, {2*GRP}")
    a("s_mov_b32 s53, 0x01010101"); a("s_mov_b32 s52, 0x02020202")
    a(f"s_mov_b32 s54, {PACE0*0x01010101:#x}"); a(f"s_mov_b32 s57, {PACE*0x01010101:#x}")
    a("s_bfe_u32 s62, s2, 0x20003"); a("s_sub_u32 s62, 13, s62"); a("s_cmp_lg_u32 s36, 0"); a("s_cselect_b32 s62, 99, s62")
    body(True, False, True)
    advance()
    a("s_mov_b32 s50, 13")
    lg_in = list(a.lgq)
    i0 = len(a.items)
    a.label("L_at_loop")
    body(False, False, True)
    a("s_cmp_lg_u32 s50, s62"); a("s_cbranch_scc1 L_at_nopk")
    a("v_mov_b32 v12, 128"); a("v_mov_b32 v10, 4096"); a("s_mov_b64 exec, 1"); a("buffer_atomic_add v10, v12, s[32:35], 0 offen"); a("s_mov_b64 exec, -1")
    a.label("L_at_nopk")
    advance()
    a("s_sub_u32 s50, s50, 1"); a("s_cmp_lg_u32 s50, 0"); a("s_cbranch_scc1 L_at_loop")
    assert a.lgq == lg_in, (a.lgq, lg_in)
    loop_ins = [x for x in a.items[i0:] if not isinstance(x, str)]
    assert check_backedge(loop_ins, loop_ins) == 0
    body(False, False, False)
    advance()
    body(False, True, False)
    for m in pv(1, 1): a(m)
    a("s_setprio 0")
    stamps.stamp(a, 3)
    a("s_nop 15")
    a(f"v_min_f32 v12, v{O_[0]+10}, v{O_[1]+10}")
    a(f"s_mov_b32 s51, {LTHR:#x}")
    a("v_cmp_nle_f32 vcc, s51, v12")
    a("s_nop 4")
    a("s_cbranch_vccz L_at_fin")
    fallback(a)
    a.label("L_at_fin")
    a(f"s_mul_i32 s43, s39, {NSTEP}"); a("s_lshl_b32 s40, s38, 1"); a("s_add_u32 s41, s43, s40"); a("s_add_u32 s41, s41, 288"); a("s_lshl_b32 s41, s41, 10")
    a("s_lshr_b32 s42, s40, 3"); a("s_add_u32 s43, s43, s42"); a("s_add_u32 s43, s43, 320"); a("s_lshl_b32 s43, s43, 10")
    a("s_bfe_u32 s42, s40, 0x10002"); a("s_lshl_b32 s42, s42, 9"); a("s_add_u32 s43, s43, s42")
    a("s_and_b32 s42, s40, 3"); a("s_lshl_b32 s42, s42, 2"); a("s_add_u32 s43, s43, s42")
    for c in (0, 1):
        O = O_[c]; T = S_[c]
        a(f"v_rcp_f32 v{T}, v{O+10}")
        for k in range(10): a(f"v_mul_f32 v{O+k}, v{O+k}, v{T}")
        for k in range(5): a(f"v_cvt_pk_bf16_f32 v{T+4+k}, v{O+2*k}, v{O+2*k+1}")
        a(f"buffer_store_dwordx4 v[{T+4}:{T+7}], v5, s[24:27], s41 offen offset:{c*1024}{CFG.SS}")
    a("s_mov_b32 exec_hi, 0")
    a(f"v_mov_b32 v{S_[0]+9}, v{S_[1]+8}")
    a(f"buffer_store_dwordx2 v[{S_[0]+8}:{S_[0]+9}], v5, s[24:27], s43 offen{CFG.SS}")
    a("s_mov_b32 exec_hi, -1")
    a("s_waitcnt vmcnt(0)")
    mk.arrive(a, 4, 14); a("s_add_u32 s52, s52, s53")
    a("s_cmp_lg_u32 s36, 0"); a("s_cbranch_scc1 L_at_nopub")
    a.lgq = []
    mk.chk_issue(a, 4); mk.chk(a, "fin", 4, "s52", sleep=1)
    a("s_lshl_b32 s40, s37, 4"); a("s_and_b32 s41, s38, 12"); a("s_add_u32 s40, s40, s41"); a("s_lshl_b32 s40, s40, 7")
    a("s_and_b32 s41, s38, 3"); a("s_lshl_b32 s41, s41, 2"); a("s_add_u32 s40, s40, s41"); a(f"s_add_u32 s40, s40, {FL_REL + 32}")
    mk.flag_send(a, 12, 40, 128, 12)
    a.label("L_at_nopub")
    for i in (4, 5): stamps.stamp(a, i)
    stamps.flush(a, 0, 55); stamps.tb_flush(a, 14, 55)

def fallback(a):
    a("v_and_b32 v6, 31, v1"); a("v_lshlrev_b32 v6, 2, v6")
    M = [P_[0], P_[1]]
    for c in (0, 1): a(f"v_mov_b32 v{M[c]}, 0xff800000")
    a(f"v_mov_b32 v{K2[0]+1}, 0")
    a(f"s_mov_b32 s42, {KV_OFF}")
    a.label("L_fb1")
    a(f"buffer_load_dwordx4 v[{K1[0]}:{K1[0]+3}], v5, s[28:31], s42 offen{CFG.SL}")
    a(f"buffer_load_dword v{K2[0]}, v6, s[28:31], s42 offen offset:1024{CFG.SL}")
    a("s_waitcnt vmcnt(0)")
    for c in (0, 1):
        S = S_[c]
        a(f"v_mfma_f32_32x32x16_bf16 v[{S}:{S+15}], v[{K1[0]}:{K1[0]+3}], v[{Q1[c]}:{Q1[c]+3}], 0")
        a(f"v_mfma_f32_32x32x16_bf16 v[{S}:{S+15}], v[{K2[0]}:{K2[0]+3}], v[{Q2[c]}:{Q2[c]+3}], v[{S}:{S+15}]")
    for c in (0, 1):
        S = S_[c]
        for k in range(8): a(f"v_max3_f32 v{M[c]}, v{M[c]}, v{S+2*k}, v{S+2*k+1}")
    a(f"s_add_u32 s42, s42, {KV_PITCH}"); a(f"s_cmp_lt_u32 s42, {KV_OFF + KV_BYTES}"); a("s_cbranch_scc1 L_fb1")
    a("v_cmp_gt_u32 vcc, 32, v1")
    a("s_mov_b32 s54, 0xffff0000")
    for c in (0, 1):
        m = M[c]; t = m + 1
        a(f"v_mov_b32 v{t}, v{m}"); a(f"v_permlane32_swap_b32 v{m}, v{t}"); a(f"v_max_f32 v{m}, v{m}, v{t}")
        a(f"v_sub_f32 v{m}, 0, v{m}")
        a(f"v_and_b32 v{t}, s54, v{m}"); a(f"v_sub_f32 v{m}, v{m}, v{t}")
        a(f"v_and_b32 v{t+1}, s54, v{m}"); a(f"v_sub_f32 v{m}, v{m}, v{t+1}")
        a(f"v_lshrrev_b32 v{t}, 16, v{t}"); a(f"v_or_b32 v{t}, v{t}, v{t+1}")
        a(f"v_lshrrev_b32 v{m}, 16, v{m}")
        a(f"v_cndmask_b32 v{Q2[c]+1}, 0, v{t}, vcc"); a(f"v_cndmask_b32 v{Q2[c]+2}, 0, v{m}, vcc")
        for k in range(16): a(f"v_mov_b32 v{O_[c]+k}, 0")
    a(f"v_mov_b32 v{K2[0]+1}, 0x3f803f80"); a(f"v_mov_b32 v{K2[0]+2}, 0x3f80")
    a(f"s_mov_b32 s42, {KV_OFF}")
    a.label("L_fb2")
    a(f"buffer_load_dwordx4 v[{K1[0]}:{K1[0]+3}], v5, s[28:31], s42 offen{CFG.SL}")
    a(f"buffer_load_dword v{K2[0]}, v6, s[28:31], s42 offen offset:1024{CFG.SL}")
    a(f"buffer_load_dwordx4 v[{VA[0]}:{VA[0]+3}], v9, s[28:31], s42 offen offset:1280{CFG.SL}")
    a(f"buffer_load_dwordx4 v[{VB[0]}:{VB[0]+3}], v9, s[28:31], s42 offen offset:{1280+608}{CFG.SL}")
    a("s_waitcnt vmcnt(0)")
    for c in (0, 1):
        S = S_[c]
        a(f"v_mfma_f32_32x32x16_bf16 v[{S}:{S+15}], v[{K1[0]}:{K1[0]+3}], v[{Q1[c]}:{Q1[c]+3}], 0")
        a(f"v_mfma_f32_32x32x16_bf16 v[{S}:{S+15}], v[{K2[0]}:{K2[0]+3}], v[{Q2[c]}:{Q2[c]+3}], v[{S}:{S+15}]")
    for c in (0, 1):
        S = S_[c]; P = P_[c]; O = O_[c]
        for k in range(16): a(f"v_exp_f32 v{S+k}, v{S+k}")
        for k in range(8): a(f"v_cvt_pk_bf16_f32 v{P+k}, v{S+2*k}, v{S+2*k+1}")
        a(f"v_mfma_f32_32x32x16_bf16 v[{O}:{O+15}], v[{VA[0]}:{VA[0]+3}], v[{P}:{P+3}], v[{O}:{O+15}]")
        a(f"v_mfma_f32_32x32x16_bf16 v[{O}:{O+15}], v[{VB[0]}:{VB[0]+3}], v[{P+4}:{P+7}], v[{O}:{O+15}]")
    a("s_nop 7")
    a(f"s_add_u32 s42, s42, {KV_PITCH}"); a(f"s_cmp_lt_u32 s42, {KV_OFF + KV_BYTES}"); a("s_cbranch_scc1 L_fb2")
    a("s_nop 15")
    a.vmq = []
```

```python
import re

TRANS = ("v_exp_f32", "v_log_f32", "v_rcp_f32", "v_rsq_f32", "v_sqrt_f32", "v_sin_f32", "v_cos_f32")

def regs_of(tok):
    tok = tok.strip()
    tok = re.sub(r"^-", "", tok)
    m = re.match(r"^abs\((.*)\)$", tok)
    if m: tok = m.group(1)
    m = re.match(r"^\|(.*)\|$", tok)
    if m: tok = m.group(1)
    m = re.match(r"^([vsa])(\d+)$", tok)
    if m: return {(m.group(1), int(m.group(2)))}
    m = re.match(r"^([vsa])\[(\d+):(\d+)\]$", tok)
    if m: return {(m.group(1), i) for i in range(int(m.group(2)), int(m.group(3)) + 1)}
    if tok == "vcc": return {("s", "vcc")}
    if tok in ("exec", "exec_lo", "exec_hi"): return {("s", "exec")}
    if tok == "m0": return {("s", "m0")}
    return set()

class Ins:
    __slots__ = ("text", "op", "rd", "wr", "kind", "passes", "srcc", "srcab", "states")
    def __init__(self, text):
        self.text = text
        t = text.split(";")[0].strip()
        parts = t.split(None, 1)
        self.op = op = parts[0]
        ops = []
        if len(parts) > 1:
            rest = parts[1]
            cur = ""; depth = 0
            for ch in rest:
                if ch in "[(": depth += 1
                if ch in "])": depth -= 1
                if ch == "," and depth == 0: ops.append(cur.strip()); cur = ""
                else: cur += ch
            ops.append(cur.strip())
            last = ops[-1].split()
            ops[-1] = last[0] if last else ""
            mods = last[1:]
        else:
            mods = []
        self.rd = set(); self.wr = set(); self.passes = 0; self.srcc = set(); self.srcab = set(); self.states = 1
        R = [regs_of(o) for o in ops]
        base = re.sub(r"_(e32|e64|dpp|sdwa)$", "", op)
        if op == "s_nop":
            self.kind = "nop"; self.states = int(ops[0], 0) + 1
        elif op.startswith("v_mfma"):
            self.kind = "mfma"; self.wr = R[0]; self.srcab = R[1] | R[2]; self.srcc = R[3]; self.rd = self.srcab | self.srcc
            self.passes = 8 if "32x32x16" in op else 4 if "16x16x32" in op else None
            assert self.passes
        elif op.startswith("v_cmp"):
            self.kind = "valu"; self.wr = R[0]; self.rd = set().union(*R[1:])
        elif op.startswith("v_readfirstlane") or op.startswith("v_readlane"):
            self.kind = "valu_rl"; self.wr = R[0]; self.rd = set().union(*R[1:])
        elif op.startswith("v_permlane"):
            self.kind = "valu_perm"; self.wr = R[0] | R[1]; self.rd = R[0] | R[1]
        elif op.startswith("v_"):
            self.kind = "trans" if base in TRANS else "valu"
            if "dpp" in op or any(m.startswith(("row_", "quad_perm")) for m in mods): self.kind = "valu_dpp"
            self.wr = R[0]; self.rd = set().union(*R[1:]) if len(R) > 1 else set()
            if base in ("v_fmac_f32", "v_dot2c_f32_bf16", "v_pk_fmac_f16"): self.rd |= R[0]
            if base in ("v_add_co_u32", "v_sub_co_u32", "v_addc_co_u32"): self.wr |= R[1]
            if base == "v_cndmask_b32" and len(ops) == 3: self.rd |= {("s", "vcc")}
        elif op.startswith("ds_"):
            self.kind = "ds"
            if op.startswith(("ds_read", "ds_bpermute", "ds_swizzle", "ds_permute")) or "_rtn" in op:
                self.wr = R[0]; self.rd = set().union(*R[1:])
            else:
                self.rd = set().union(*R)
        elif op.startswith(("buffer_", "global_")):
            self.kind = "vmem"
            if "lds" in mods or "_lds_" in op:
                self.kind = "vmem_lds"; self.rd = set().union(*R) | {("s", "m0")}
            elif "load" in op:
                self.wr = R[0]; self.rd = set().union(*R[1:])
            elif "atomic" in op:
                self.rd = set().union(*R)
                if "sc0" in mods: self.wr = R[0]
            elif "store" in op:
                self.kind = "vmem_store"; self.rd = set().union(*R)
                self.srcc = (R[0] if op.startswith("buffer_") else R[1]) if ("x4" in op or "x3" in op) else set()
            else:
                self.rd = set().union(*R) if R else set()
        elif op.startswith("s_"):
            self.kind = "salu"
            if op.startswith(("s_cmp", "s_cbranch", "s_branch", "s_waitcnt", "s_barrier", "s_endpgm", "s_setprio", "s_sleep", "s_bitcmp")):
                self.rd = set().union(*R) if R else set()
            else:
                self.wr = R[0] if R else set(); self.rd = set().union(*R[1:]) if len(R) > 1 else set()
                if "saveexec" in op: self.wr |= {("s", "exec")}
        else:
            raise ValueError("unknown op " + text)

def need_states(p, c):
    n = 0
    pv = p.kind in ("valu", "trans", "valu_rl", "valu_perm", "valu_dpp")
    cv = c.kind in ("valu", "trans", "valu_rl", "valu_perm", "valu_dpp")
    vw = {r for r in p.wr if r[0] in "va"}
    sw = {r for r in p.wr if r[0] == "s"}
    if pv:
        if c.kind == "mfma" and vw & c.rd: n = max(n, 2)
        if c.kind == "valu_perm" and vw & c.rd: n = max(n, 2)
        if c.kind == "valu_dpp" and vw & c.rd: n = max(n, 2)
        if c.kind == "valu_rl" and vw & c.rd: n = max(n, 1)
        if p.kind == "trans" and cv and c.kind != "trans" and vw & c.rd: n = max(n, 1)
        if p.kind == "trans" and c.kind == "trans" and vw & c.rd: n = max(n, 1)
        if sw & c.rd:
            if cv: n = max(n, 4 if c.kind == "valu_rl" else 2)
            if c.kind.startswith("vmem"): n = max(n, 5)
            if c.kind == "salu": n = max(n, 2)
        if ("s", "exec") in sw: n = max(n, 5)
    if p.kind == "mfma":
        big = {8: 12, 4: 8}[p.passes]; ovl = {8: 10, 4: 6}[p.passes]; war = {8: 7, 4: 3}[p.passes]
        if c.kind == "mfma":
            if p.wr & c.srcab: n = max(n, big)
            if p.wr & c.srcc and not (p.wr == c.srcc and p.passes == c.passes): n = max(n, ovl)
            if p.wr & c.wr and not (p.wr == c.srcc and p.passes == c.passes): n = max(n, ovl)
        else:
            if p.wr & (c.rd | c.wr): n = max(n, big)
            if cv and p.srcc & c.wr: n = max(n, war)
            if c.kind in ("ds", "vmem") and p.srcc & c.wr: n = max(n, war)
    if p.kind == "salu" and ("s", "m0") in p.wr and c.kind == "vmem_lds": n = max(n, 1)
    if p.kind == "salu" and ("s", "exec") in p.wr and c.kind in ("valu_dpp","valu_perm","valu_rl"): n = max(n, 1)
    if p.kind == "vmem_store" and p.srcc & c.wr: n = max(n, 2)
    return n

class Asm:
    def __init__(self):
        self.items = []
        self.vmq = []
        self.lgq = []
    def raw(self, s): self.items.append(s)
    def label(self, s): self.items.append(s + ":")
    def __call__(self, text, tag=None):
        ins = Ins(text)
        self.items.append(ins)
        if ins.kind.startswith("vmem") and not ins.op.startswith(("buffer_inv","buffer_wbl2")): self.vmq.append(tag)
        elif ins.kind == "ds": self.lgq.append(tag)
        return ins
    def wait_vm(self, tags, extra=""):
        if not isinstance(tags, (list, tuple, set)): tags = [tags]
        idx = [i for i, t in enumerate(self.vmq) if t in tags]
        if not idx: return
        n = len(self.vmq) - 1 - max(idx)
        assert n <= 63
        self(f"s_waitcnt vmcnt({n})")
        self.vmq = self.vmq[max(idx) + 1:]
    def wait_vm0(self):
        self("s_waitcnt vmcnt(0)"); self.vmq = []
    def wait_lg(self, tags):
        if not isinstance(tags, (list, tuple, set)): tags = [tags]
        idx = [i for i, t in enumerate(self.lgq) if t in tags]
        if not idx: return
        n = len(self.lgq) - 1 - max(idx)
        n = min(n, 15)
        self(f"s_waitcnt lgkmcnt({n})")
        self.lgq = self.lgq[len(self.lgq) - n:] if n else []
    def wait_lg0(self):
        self("s_waitcnt lgkmcnt(0)"); self.lgq = []
    def text(self):
        out = []
        hist = []
        for it in self.items:
            if isinstance(it, str):
                out.append(it); continue
            need = 0
            dist = 0
            for p in reversed(hist):
                n = need_states(p, it)
                if n - dist > need: need = n - dist
                dist += p.states
                if dist > 24: break
            while need > 0:
                k = min(need, 16)
                nop = Ins(f"s_nop {k-1}")
                out.append("    " + nop.text); hist.append(nop); need -= k
            out.append("    " + it.text); hist.append(it)
            if len(hist) > 40: hist = hist[-40:]
        return "\n".join(out) + "\n"

def check_backedge(items_tail, items_head):
    need = 0
    for ci, c in enumerate(items_head[:24]):
        d0 = sum(x.states for x in items_head[:ci])
        dist = d0
        for p in reversed(items_tail[-24:]):
            n = need_states(p, c)
            if n - dist > need: need = n - dist
            dist += p.states
    return need

def kernel_header(name):
    return [".text", f".globl {name}", ".p2align 8", f".type {name},@function", f"{name}:"]

def kernel_desc(name, vgpr, sgpr=102, acc=None):
    if acc is None: acc = (vgpr + 3) // 4 * 4
    return "\n".join(['.section .rodata,"a"', ".p2align 6", f".amdhsa_kernel {name}",
        f"  .amdhsa_next_free_vgpr {vgpr}", f"  .amdhsa_next_free_sgpr {sgpr}", f"  .amdhsa_accum_offset {acc}",
        "  .amdhsa_group_segment_fixed_size 0", "  .amdhsa_kernarg_size 96", "  .amdhsa_user_sgpr_count 2",
        "  .amdhsa_user_sgpr_kernarg_segment_ptr 1", "  .amdhsa_system_sgpr_workgroup_id_x 1", ".end_amdhsa_kernel"]) + "\n"
```

```python
S = 2048; D = 576; F = 4608; NH = 32; DH = 18
NSTEP = 324
H_OFF = 0
H_BYTES = 64 * NSTEP * 1024
SM_OFF = 0x1800000
KV_OFF = 0
KV_PITCH = 3072
KV_BYTES = 64 * KV_PITCH
KMAX_OFF = KV_OFF + KV_BYTES
Q_OFF = KMAX_OFF + 1024
Q_PITCH = 1536
Q_BYTES = 64 * 32 * Q_PITCH
SM_BYTES = Q_OFF + Q_BYTES
PART_OFF = 0x2000000
PART_BYTES = 64 * 4 * 4 * 9 * 1024
PK_OFF = 0x2C00000
PK_STREAM = 41 * 9216
FL_REL = 16 * PK_STREAM + 4096
PK_BYTES = FL_REL + 256 * 128
import math
QSCALE = math.log2(math.e) / math.sqrt(18.0)
TS_OFF = 0x3800000
TS_KPITCH = 256 * 8 * 64
```

```python
from dsl import *
from layout import *
import stamps, struct
def f32(x): return struct.unpack("<I", struct.pack("<f", x))[0]
EXP = set()
import cfg as CFG

XB = 112; ACC = 48; FR = 16; NFR = 8
LB = 1024
SLOT = 16384; R = 7; KVIMG = LB + 7 * SLOT; PF = 6
NCH = 45
RING2 = 12 * 9216; ORG2 = 73728
ACC2 = 184; BR = 112
NQ = 93
PRIO = True
HL = 55; OL = 60
def X(t): return f"v[{XB+4*t}:{XB+4*t+3}]"
def acc(c): return f"v[{ACC+16*c}:{ACC+16*c+15}]"
def acc2(u): return f"v[{ACC2+4*u}:{ACC2+4*u+3}]"

def srd(a, d, p, nbytes, off=0):
    if off: a(f"s_add_u32 s{d}, s{p}, {off}"); a(f"s_addc_u32 s{d+1}, s{p+1}, 0")
    else: a(f"s_mov_b32 s{d}, s{p}"); a(f"s_mov_b32 s{d+1}, s{p+1}")
    a(f"s_mov_b32 s{d+2}, {nbytes}"); a(f"s_mov_b32 s{d+3}, 0x20000")

def common(a):
    a("s_cmp_ge_u32 s2, 256"); a("s_cbranch_scc1 L_end")
    a("s_load_dwordx16 s[64:79], s[0:1], 0"); a("s_load_dwordx8 s[80:87], s[0:1], 64")
    a("v_lshrrev_b32 v2, 6, v0"); a("v_and_b32 v1, 63, v0"); a("v_readfirstlane_b32 s55, v2")
    stamps.stamp(a, 0)
    a("s_and_b32 s40, s2, 7"); a("s_lshr_b32 s41, s2, 3")
    a("s_and_b32 s37, s40, 1"); a("s_lshl_b32 s37, s37, 3"); a("s_and_b32 s42, s41, 7"); a("s_add_u32 s37, s37, s42")
    a("s_lshr_b32 s38, s40, 1"); a("s_lshl_b32 s38, s38, 2"); a("s_lshr_b32 s42, s41, 3"); a("s_add_u32 s38, s38, s42")
    a("s_and_b32 s36, s55, 3"); a("s_mov_b32 s3, 0")
    a("s_lshl_b32 s39, s37, 2"); a("s_add_u32 s39, s39, s36")
    a("v_lshlrev_b32 v11, 4, v1")
    a("s_waitcnt lgkmcnt(0)")
    srd(a, 24, 86, H_BYTES, H_OFF); srd(a, 28, 86, SM_BYTES, SM_OFF); srd(a, 32, 84, 256)
    a("s_lshl_b32 s40, s36, 3"); a("s_lshl_b32 s40, 1, s40"); a("v_mov_b32 v0, s40")
    a("v_mov_b32 v2, 0"); a("v_mov_b32 v3, 0"); a("ds_write_b64 v2, v[2:3]")
    stamps.tb_init(a, 12)
    a("s_cmp_ge_u32 s55, 4"); a("s_cbranch_scc1 L_at")

def atomic_inc(a, label, off_expr_sgpr, val, vt=13):
    a(f"v_mov_b32 v{vt}, {off_expr_sgpr}"); a(f"v_mov_b32 v{vt+1}, {val}")
    a("s_mov_b64 exec, 1")
    a(f"buffer_atomic_add v{vt+1}, v{vt}, s[32:35], 0 offen")
    a("s_mov_b64 exec, -1")
    a.vmq = a.vmq[:-1]

def poll_issue(a, off, tag, va=14, vv=15):
    return [f"v_mov_b32 v{va}, {off}", (f"buffer_load_dword v{vv}, v{va}, s[32:35], 0 offen{CFG.SP}", tag)]
def poll_check(a, name, tag, shift, width, target, va=14, vv=15):
    a.wait_vm(tag)
    a("s_mov_b32 s56, 0")
    a.label(f"L_{name}_chk")
    a(f"v_readfirstlane_b32 s40, v{vv}")
    a(f"s_bfe_u32 s40, s40, {shift | (width << 16):#x}")
    a(f"s_cmp_ge_u32 s40, {target}")
    a(f"s_cbranch_scc1 L_{name}_ok")
    a("s_add_u32 s56, s56, 1"); a("s_cmp_ge_u32 s56, 0x80000"); a(f"s_cbranch_scc1 L_{name}_ok")
    a("s_sleep 2")
    a(f"buffer_load_dword v{vv}, v{va}, s[32:35], 0 offen{CFG.SP}"); a.vmq = a.vmq[:-1]
    a("s_waitcnt vmcnt(0)")
    a(f"s_branch L_{name}_chk")
    a.label(f"L_{name}_ok")

def arrive(a, off, vtb=12):
    stamps.mark(a, vtb)
    a("s_mov_b64 exec, 1"); a(f"ds_add_u32 v11, v0 offset:{off}"); a("s_mov_b64 exec, -1")
def chk_issue(a, off, v=15): a(f"ds_read_b32 v{v}, v11 offset:{off}", tag="chk")
def chk(a, name, off, k, v=15, sleep=0):
    a.wait_lg("chk")
    a.label(f"L_c{name}")
    a(f"v_readfirstlane_b32 s40, v{v}")
    a("s_or_b32 s40, s40, 0x80808080"); a(f"s_sub_u32 s40, s40, {k * 0x01010101:#x}" if isinstance(k, int) else f"s_sub_u32 s40, s40, {k}")
    a("s_andn2_b32 s40, 0x80808080, s40")
    a(f"s_cbranch_scc0 L_c{name}_ok")
    a("s_add_u32 s3, s3, 1"); a("s_cmp_ge_u32 s3, 0x400000"); a(f"s_cbranch_scc1 L_c{name}_ok")
    if sleep: a(f"s_sleep {sleep}")
    a(f"ds_read_b32 v{v}, v11 offset:{off}"); a.lgq = a.lgq[:-1]
    a("s_waitcnt lgkmcnt(0)")
    a(f"s_branch L_c{name}")
    a.label(f"L_c{name}_ok")

def flag_send(a, srd_, base_sgpr, stride, vt=13):
    a(f"v_mul_u32_u24 v{vt}, {stride}, v1"); a(f"v_mov_b32 v{vt+1}, 1")
    a("s_mov_b64 exec, 15")
    a(f"buffer_store_dword v{vt+1}, v{vt}, s[{srd_}:{srd_+3}], s{base_sgpr} offen{CFG.SS}")
    a("s_mov_b64 exec, -1")
    a.vmq = a.vmq[:-1]
def flag_issue(srd_, line_sgpr, off, tag, va=14, vv=13):
    return [f"v_and_b32 v{va}, 3, v1", f"v_lshlrev_b32 v{va}, 2, v{va}",
            (f"buffer_load_dword v{vv}, v{va}, s[{srd_}:{srd_+3}], s{line_sgpr} offen offset:{off}{CFG.SP}", tag)]
def flag_check(a, name, tag, srd_, line_sgpr, off, va=14, vv=13):
    a.wait_vm(tag)
    a.label(f"L_{name}_chk")
    a(f"v_cmp_ne_u32 vcc, 1, v{vv}")
    a("s_nop 4")
    a(f"s_cbranch_vccz L_{name}_ok")
    a("s_add_u32 s3, s3, 16"); a("s_cmp_ge_u32 s3, 0x400000"); a(f"s_cbranch_scc1 L_{name}_ok")
    a("s_sleep 1")
    a(f"buffer_load_dword v{vv}, v{va}, s[{srd_}:{srd_+3}], s{line_sgpr} offen offset:{off}{CFG.SP}"); a.vmq = a.vmq[:-1]
    a("s_waitcnt vmcnt(0)")
    a(f"s_branch L_{name}_chk")
    a.label(f"L_{name}_ok")

def gen_g(a):
    srd(a, 4, 64, S * D * 2); srd(a, 8, 66, D * D * 2); srd(a, 12, 76, D * F * 2); srd(a, 16, 78, D * F * 2)
    a("s_bitcmp1_b32 s38, 0"); a("s_cselect_b32 s20, s70, s68"); a("s_cselect_b32 s21, s71, s69")
    a(f"s_mov_b32 s22, {D*DH*2}"); a("s_mov_b32 s23, 0x20000")
    a("s_lshr_b32 s62, s2, 3")
    for _ in range(3): a("s_cmp_ge_u32 s62, 9"); a("s_cselect_b32 s40, 9, 0"); a("s_sub_u32 s62, s62, s40")
    if "norot" in EXP: a("s_mov_b32 s62, 0")
    a(f"s_mul_i32 s44, s39, {32*1152}")
    a("s_lshl_b32 s45, s36, 12"); a(f"s_add_u32 s45, s45, {LB}")
    a("v_lshrrev_b32 v2, 3, v1"); a("v_and_b32 v3, 7, v1"); a("v_lshrrev_b32 v4, 1, v2"); a("v_xor_b32 v3, v3, v4")
    a("v_mul_u32_u24 v5, 1152, v2"); a("v_lshl_add_u32 v12, v3, 4, v5"); a("v_xor_b32 v13, 64, v12")
    a("s_cmp_ge_u32 s38, 2"); a("s_cbranch_scc1 L_g_nokvdma")
    a("v_lshrrev_b32 v3, 2, v1"); a("v_mul_u32_u24 v3, 36, v3"); a("v_and_b32 v4, 3, v1"); a("v_lshl_add_u32 v14, v4, 4, v3")
    a(f"s_mul_i32 s40, s36, {9*1024}"); a(f"s_add_u32 s40, s40, {KVIMG}")
    a("s_mul_i32 s41, s36, 9"); a("s_lshl_b32 s42, s62, 2"); a("s_add_u32 s41, s41, s42")
    for t in range(9):
        a(f"s_add_u32 s42, s41, {t}"); a("s_cmp_ge_u32 s42, 36"); a("s_cselect_b32 s43, 36, 0"); a("s_sub_u32 s42, s42, s43"); a("s_mul_i32 s42, s42, 576")
        a(f"s_add_u32 m0, s40, {t*1024}")
        a("buffer_load_dwordx4 v14, s[20:23], s42 offen lds")
    a.label("L_g_nokvdma")
    a.vmq = []
    for c in range(9):
        a(f"s_add_u32 s{64+c}, s62, {c}"); a(f"s_cmp_ge_u32 s{64+c}, 9"); a("s_cselect_b32 s40, 9, 0"); a(f"s_sub_u32 s{64+c}, s{64+c}, s40")
    def xdma(c, slot):
        a(f"s_lshl_b32 s43, s{64+c}, 7"); a("s_add_u32 s43, s43, s44")
        for i in range(4):
            a(f"s_add_u32 m0, s45, {slot*SLOT + i*1024}")
            a(f"s_add_u32 s42, s43, {8*i*1152}")
            a(f"buffer_load_dwordx4 v{12 + (i&1)}, s[4:7], s42 offen lds", tag=f"x{c}")
    for c in range(7): xdma(c, c)
    a(f"s_mul_i32 s46, s36, {16*9216}"); a("s_mul_i32 s40, s38, 576"); a("s_add_u32 s46, s46, s40")
    a("s_and_b32 s40, s38, 1")
    a("s_lshl_b32 s41, s40, 6"); a("s_add_u32 s47, s46, s41")
    a("s_xor_b32 s41, s40, 1"); a("s_lshl_b32 s41, s41, 9"); a("s_add_u32 s48, s46, s41")
    a(f"s_mul_i32 s49, s36, {16*1152}"); a("s_mul_i32 s41, s38, 72"); a("s_add_u32 s49, s49, s41")
    a(f"s_mul_i32 s51, s39, {NSTEP*1024}")
    a(f"s_mul_i32 s41, s38, {18*1024}"); a("s_add_u32 s50, s51, s41")
    a("s_mov_b32 s53, 0x3f803f80"); a("s_mov_b32 s54, 0xffff0000")
    a("v_and_b32 v2, 31, v1"); a("v_lshrrev_b32 v3, 5, v1"); a("v_bfe_u32 v4, v1, 1, 3"); a("v_xor_b32 v3, v3, v4")
    a("v_lshlrev_b32 v2, 7, v2"); a("v_lshl_add_u32 v2, v3, 4, v2"); a("v_add_u32 v2, s45, v2")
    a("v_xor_b32 v3, 32, v2"); a("v_xor_b32 v4, 64, v2"); a("v_xor_b32 v5, 96, v2")
    for k in range(4): a(f"v_add_u32 v{6+k}, {4*SLOT}, v{2+k}")
    st = ACC
    for k in range(4): a(f"v_mov_b32 v{st+k}, 0")
    def stats(c):
        for t in range(4*c, 4*c+4):
            for k in range(4):
                r = XB + 4*t + k
                a(f"v_dot2c_f32_bf16 v{st + (k&1)}, s53, v{r}")
                a(f"v_dot2c_f32_bf16 v{st + 2 + (k&1)}, v{r}, v{r}")
    for c in range(9):
        slot = c if c < 7 else c - 7
        a.wait_vm(f"x{c}")
        for tt in range(4):
            if slot < 4: a(f"ds_read_b128 {X(4*c+tt)}, v{2+tt} offset:{slot*SLOT}", tag=f"xr{c}")
            else: a(f"ds_read_b128 {X(4*c+tt)}, v{6+tt} offset:{(slot-4)*SLOT}", tag=f"xr{c}")
        if c < 2:
            a.wait_lg(f"xr{c}"); xdma(7 + c, c)
        if c > 0:
            a.wait_lg(f"xr{c-1}"); stats(c - 1)
    a("v_lshrrev_b32 v14, 3, v1"); a("v_bfe_u32 v15, v1, 1, 2"); a("v_and_b32 v13, 1, v1"); a("v_lshlrev_b32 v13, 4, v13")
    a.wait_lg0()
    stamps.stamp(a, 1)
    a("s_barrier"); nbar = 1
    a("v_and_b32 v5, 2, v14"); a("v_xor_b32 v5, v15, v5")
    a("v_lshrrev_b32 v4, 1, v5"); a("v_mul_u32_u24 v4, 36, v4"); a("v_and_b32 v5, 1, v5"); a("v_lshl_add_u32 v4, v5, 5, v4")
    a("v_mul_u32_u24 v5, 1152, v14"); a("v_add3_u32 v6, v5, v4, v13")
    a("v_lshrrev_b32 v2, 2, v1"); a("v_mul_u32_u24 v2, 9216, v2"); a("v_and_b32 v3, 3, v1"); a("v_lshl_add_u32 v7, v3, 4, v2"); a("v_xor_b32 v8, 32, v7")
    a("v_bfe_u32 v5, v14, 1, 1"); a("v_xor_b32 v5, v15, v5"); a("v_lshl_add_u32 v5, v5, 5, v13")
    a("v_mul_u32_u24 v4, 9216, v14"); a("v_add_u32 v9, v4, v5"); a("v_xor_b32 v10, 64, v9")
    for c in range(9): a(f"s_mul_i32 s{64+c}, s{64+c}, {64*9216}")

    def wdma(g):
        p, c = divmod(g, 9); slot = g % R
        out = []
        for i in range(4):
            pre = []
            if p == 0:
                if i < 2:
                    pre = [f"s_lshr_b32 s43, s{64+c}, 3", f"s_add_u32 s43, s43, s49"] if i == 0 else []
                    const, v, srd_ = 8*i*1152, 6, 8
                else:
                    pre = [f"s_add_u32 s43, s{64+c}, s48"] if i == 2 else []
                    const, v, srd_ = 0, (7 if i == 2 else 8), (12 if i == 2 else 16)
            else:
                pre = [f"s_add_u32 s43, s{64+c}, s47"] if i == 0 else []
                const, v, srd_ = 8*(i&1)*9216 + 128*(p-1), (9 if i < 2 else 10), (12 if i < 2 else 16)
            out.append(pre + [f"s_add_u32 m0, s45, {slot*SLOT + i*1024}", f"s_add_u32 s42, s43, {const}",
                        (f"buffer_load_dwordx4 v{v}, s[{srd_}:{srd_+3}], s42 offen lds", f"w{g}")])
        return out
    def emit_group(grp):
        for x in grp:
            if isinstance(x, tuple): a(x[0], tag=x[1])
            elif callable(x): x()
            else: a(x)
    pre_dma = sum((wdma(g) for g in range(R)), [])
    for _ in range(4): emit_group(pre_dma.pop(0))
    stats(8)
    a("s_nop 2")
    a(f"v_add_f32 v{st}, v{st}, v{st+1}"); a(f"v_add_f32 v{st+2}, v{st+2}, v{st+3}")
    a(f"v_mov_b32 v{st+1}, v{st}"); a(f"v_mov_b32 v{st+3}, v{st+2}")
    a(f"v_permlane32_swap_b32 v{st}, v{st+1}"); a(f"v_permlane32_swap_b32 v{st+2}, v{st+3}")
    a(f"v_add_f32 v{st}, v{st}, v{st+1}"); a(f"v_add_f32 v{st+2}, v{st+2}, v{st+3}")
    a(f"v_mul_f32 v{st}, {f32(1.0/576):#x}, v{st}"); a(f"v_mul_f32 v{st+2}, {f32(1.0/576):#x}, v{st+2}")
    a(f"v_fma_f32 v{st+2}, -v{st}, v{st}, v{st+2}"); a(f"v_max_f32 v{st+2}, 0, v{st+2}"); a(f"v_add_f32 v{st+2}, {f32(1e-5):#x}, v{st+2}")
    a(f"v_rsq_f32 v{st+2}, v{st+2}")
    a(f"v_mul_f32 v{st+4}, v{st}, v{st+2}"); a(f"v_sub_f32 v{st+4}, 0, v{st+4}")
    a(f"v_mov_b32 v{st+3}, v{st+2}"); a(f"v_mov_b32 v{st+5}, v{st+4}")
    T = ACC + 8
    for r0 in range(0, 144, 4):
        for k in range(4):
            r = XB + r0 + k; t = T + 2*k
            a(f"v_lshlrev_b32 v{t}, 16, v{r}"); a(f"v_and_b32 v{t+1}, s54, v{r}")
        if pre_dma: emit_group(pre_dma.pop(0))
        for k in range(4):
            t = T + 2*k
            a(f"v_pk_fma_f32 v[{t}:{t+1}], v[{t}:{t+1}], v[{st+2}:{st+3}], v[{st+4}:{st+5}]")
        for k in range(4):
            r = XB + r0 + k; t = T + 2*k
            a(f"v_cvt_pk_bf16_f32 v{r}, v{t}, v{t+1}")
    assert not pre_dma
    stamps.stamp(a, 2)
    a("s_mov_b32 s60, -1"); a("s_mov_b32 s61, 0")
    a("s_cmp_ge_u32 s38, 2"); a("s_cbranch_scc1 L_g_nokv")
    a("v_lshrrev_b32 v2, 5, v1"); a("v_lshlrev_b32 v2, 3, v2"); a("v_bfe_u32 v3, v1, 2, 2"); a("v_add_u32 v2, v2, v3"); a("v_lshlrev_b32 v2, 6, v2")
    a("v_bfe_u32 v3, v1, 4, 1"); a("v_lshl_add_u32 v2, v3, 5, v2"); a("v_and_b32 v3, 3, v1"); a("v_lshl_add_u32 v2, v3, 3, v2")
    a(f"v_add_u32 v2, {KVIMG}, v2")
    a(f"s_mul_i32 s43, s39, {KV_PITCH}"); a(f"s_add_u32 s43, s43, {KV_OFF}")
    saved_vmq = list(a.vmq)
    def kvpass(isV):
        def rd(t):
            b = FR + 4 * (t % NFR)
            a(f"ds_read_b64_tr_b16 v[{b}:{b+1}], v2 offset:{t*1024}", tag=f"kv{t}")
            a(f"ds_read_b64_tr_b16 v[{b+2}:{b+3}], v2 offset:{t*1024+256}", tag=f"kv{t}")
        for t in range(PF): rd(t)
        for t in range(36):
            b = FR + 4 * (t % NFR)
            a.wait_lg(f"kv{t}")
            cc = "0" if t == 0 else acc(0)
            if isV: a(f"v_mfma_f32_32x32x16_bf16 {acc(0)}, {X(t)}, v[{b}:{b+3}], {cc}")
            else: a(f"v_mfma_f32_32x32x16_bf16 {acc(0)}, v[{b}:{b+3}], {X(t)}, {cc}")
            if t + PF < 36: rd(t + PF)
    a("s_cmp_eq_u32 s38, 1"); a("s_cbranch_scc1 L_g_v")
    kvpass(False)
    B = ACC; T = ACC + 16
    for k in range(5): a(f"v_cvt_pk_bf16_f32 v{T+k}, v{B+2*k}, v{B+2*k+1}")
    a(f"buffer_store_dwordx4 v[{T}:{T+3}], v11, s[28:31], s43 offen{CFG.SS}")
    a(f"v_lshlrev_b32 v3, 2, v1")
    a(f"buffer_store_dword v{T+4}, v3, s[28:31], s43 offen offset:1024{CFG.SS}")
    a(f"v_mul_f32 v{T+8}, v{B+8}, v{B+8}"); a(f"v_fmac_f32 v{T+8}, v{B+9}, v{B+9}"); a(f"v_cndmask_b32 v{T+8}, 0, v{T+8}, s[60:61]")
    for k in range(8): a(f"v_fmac_f32 v{T+8}, v{B+k}, v{B+k}")
    a(f"v_mov_b32 v{T+9}, v{T+8}"); a(f"v_permlane32_swap_b32 v{T+8}, v{T+9}"); a(f"v_add_f32 v{T+8}, v{T+8}, v{T+9}")
    for off in (0x041F, 0x081F, 0x101F, 0x201F, 0x401F):
        a(f"ds_swizzle_b32 v{T+9}, v{T+8} offset:{off:#x}"); a.wait_lg0(); a(f"v_max_f32 v{T+8}, v{T+8}, v{T+9}")
    a(f"s_lshl_b32 s42, s39, 2"); a(f"s_add_u32 s42, s42, {KMAX_OFF}")
    a("v_mov_b32 v3, 0")
    a(f"buffer_store_dword v{T+8}, v3, s[28:31], s42 offen{CFG.SS}")
    a("s_branch L_g_kvdone")
    a.label("L_g_v")
    a.lgq = []
    kvpass(True)
    for k in range(8): a(f"v_cvt_pk_bf16_f32 v{T+k}, v{B+2*k}, v{B+2*k+1}")
    a("v_and_b32 v3, 31, v1"); a("v_cmp_eq_u32 vcc, 18, v3"); a("v_mov_b32 v4, s53")
    for k in range(8): a(f"v_cndmask_b32 v{T+k}, v{T+k}, v4, vcc")
    a("v_lshrrev_b32 v4, 5, v1"); a("v_mul_u32_u24 v4, 304, v4"); a("v_lshl_add_u32 v4, v3, 4, v4")
    a("v_cmp_gt_u32 vcc, 19, v3")
    a("s_and_saveexec_b64 s[56:57], vcc")
    a(f"buffer_store_dwordx4 v[{T}:{T+3}], v4, s[28:31], s43 offen offset:1280{CFG.SS}")
    a(f"buffer_store_dwordx4 v[{T+4}:{T+7}], v4, s[28:31], s43 offen offset:{1280+608}{CFG.SS}")
    a("s_mov_b64 exec, s[56:57]")
    a.label("L_g_kvdone")
    a("s_waitcnt vmcnt(0)")
    a.label("L_g_nokv")
    a("s_nop 7"); a("s_nop 7")
    a.vmq = saved_vmq; a.lgq = []
    def tr_addrs(p):
        if p == 0:
            return ["v_lshrrev_b32 v13, 5, v1", "v_lshlrev_b32 v2, 10, v13", "v_bfe_u32 v14, v1, 2, 2", "v_lshl_add_u32 v2, v14, 7, v2",
                    "v_and_b32 v15, 2, v14", "v_bfe_u32 v3, v1, 4, 1", "v_xor_b32 v15, v15, v3", "v_lshl_add_u32 v2, v15, 5, v2",
                    "v_and_b32 v15, 3, v1", "v_lshl_add_u32 v2, v15, 3, v2", f"v_add_u32 v2, {LB}, v2", "v_xor_b32 v3, 64, v2",
                    "v_lshl_add_u32 v4, v13, 3, v14", "v_lshlrev_b32 v4, 6, v4", "v_bfe_u32 v13, v1, 4, 1", "v_mul_u32_u24 v13, 1056, v13",
                    "v_add_u32 v4, v4, v13", f"v_add_u32 v4, {2048+LB}, v4", "v_lshl_add_u32 v4, v15, 3, v4", "v_xor_b32 v5, 32, v4"]
        return ["v_bfe_u32 v13, v1, 4, 1", "v_lshrrev_b32 v14, 5, v1", "v_lshl_add_u32 v14, v13, 1, v14", "v_lshlrev_b32 v2, 10, v14",
                "v_bfe_u32 v14, v1, 2, 2", "v_lshl_add_u32 v2, v14, 7, v2", "v_lshrrev_b32 v14, 1, v14", "v_lshl_add_u32 v14, v13, 1, v14",
                "v_lshl_add_u32 v2, v14, 5, v2", "v_and_b32 v14, 3, v1", "v_lshl_add_u32 v2, v14, 3, v2", f"v_add_u32 v2, {LB}, v2",
                "v_xor_b32 v3, 32, v2", "v_xor_b32 v4, 64, v2", "v_xor_b32 v5, 96, v2"]
    for x in tr_addrs(0): a(x)
    a.wait_vm(["w0", "w1"])
    a("s_barrier"); nbar += 1
    stamps.stamp(a, 3)
    a("s_cmp_ge_u32 s38, 2"); a("s_cbranch_scc1 L_g_nopub"); a("s_cmp_lg_u32 s36, 0"); a("s_cbranch_scc1 L_g_nopub")
    atomic_inc(a, "kv", "0", 4096)
    a.label("L_g_nopub")

    order = [(0, t) for t in range(4)] + [(s, t) for t in range(4) for s in (1, 2, 3)]
    frs = [("a", g, s, t) for g in range(NCH) for (s, t) in order] + [("b", pos, nt, 0) for pos in range(41) for nt in range(9)]
    N1 = NCH * 16
    state = {"slot": 0, "pass": 0}
    def rd(n):
        kind, g, s, t = frs[n]
        b = FR + 4 * (n % NFR)
        if kind == "b":
            j = (g + 8) % 12
            if j < 6: a(f"ds_read_b128 v[{b}:{b+3}], v11 offset:{LB + j*9216 + s*1024}", tag=f"f{n}")
            else: a(f"ds_read_b128 v[{b}:{b+3}], v6 offset:{LB + (j-6)*9216 + s*1024}", tag=f"f{n}")
            return
        p = g // 9; slot = g % R
        if p == 1 and state["pass"] == 0:
            for x in tr_addrs(1): a(x)
            state["slot"] = 0
        state["pass"] = p
        if slot != state["slot"]:
            d = (slot - state["slot"]) * SLOT
            for k in range(4):
                if d > 0: a(f"v_add_u32 v{2+k}, {d}, v{2+k}")
                else: a(f"v_subrev_u32 v{2+k}, {-d}, v{2+k}")
            state["slot"] = slot
        jj = 256 if (p == 0 and t >= 2) else 512
        a(f"ds_read_b64_tr_b16 v[{b}:{b+1}], v{2+t} offset:{s*4096}", tag=f"f{n}")
        a(f"ds_read_b64_tr_b16 v[{b+2}:{b+3}], v{2+t} offset:{s*4096+jj}", tag=f"f{n}")
    fill = []
    def gu_epi(t, pi, p):
        B = ACC + 16*t
        L = []
        for i in range(8): L.append(f"v_max_f32 v{B+i}, 0, v{B+i}")
        for i in range(8): L.append(f"v_mul_f32 v{B+i}, v{B+i}, v{B+8+i}")
        for k in range(4): L.append(f"v_cvt_pk_bf16_f32 v{B+8+k}, v{B+2*k}, v{B+2*k+1}")
        L.append(f"s_add_u32 s52, s50, {pi*1024}")
        L.append((f"buffer_store_dwordx4 v[{B+8}:{B+11}], v11, s[24:27], s52 offen{CFG.SS}", f"hst{p}"))
        return L
    def q_epi(t):
        B = ACC + 16*t
        L = []
        for i in range(10): L.append(f"v_mul_f32 v{B+i}, {f32(QSCALE):#x}, v{B+i}")
        n = B + 10
        L += [f"v_mul_f32 v{n}, v{B+8}, v{B+8}", f"v_fmac_f32 v{n}, v{B+9}, v{B+9}", f"v_cndmask_b32 v{n}, 0, v{n}, s[60:61]"]
        for k in range(8): L.append(f"v_fmac_f32 v{n}, v{B+k}, v{B+k}")
        L += [f"v_mov_b32 v{n+1}, v{n}", f"v_permlane32_swap_b32 v{n}, v{n+1}", f"v_add_f32 v{n}, v{n}, v{n+1}",
              f"v_sqrt_f32 v{n}, v{n}", f"v_mul_f32 v{n}, {f32(-(1+1/64.)):#x}, v{n}",
              f"v_cndmask_b32 v{n}, 0, v{n}, s[60:61]", f"v_cndmask_b32 v{B+8}, 0, v{B+8}, s[60:61]", f"v_cndmask_b32 v{B+9}, 0, v{B+9}, s[60:61]", f"v_mov_b32 v{n+1}, 0"]
        for k in range(4): L.append(f"v_cvt_pk_bf16_f32 v{B+12+k}, v{B+2*k}, v{B+2*k+1}")
        L += [f"v_cvt_pk_bf16_f32 v{B}, v{B+8}, v{B+9}", f"v_cvt_pk_bf16_f32 v{B+1}, v{n}, v{n+1}"]
        L += [f"s_lshl_b32 s52, s39, 5", f"s_lshl_b32 s40, s38, 1", f"s_add_u32 s52, s52, s40", f"s_add_u32 s52, s52, {t}",
              f"s_mul_i32 s52, s52, {Q_PITCH}", f"s_add_u32 s52, s52, {Q_OFF}",
              (f"buffer_store_dwordx4 v[{B+12}:{B+15}], v11, s[28:31], s52 offen", "qst"),
              f"v_lshlrev_b32 v{B+2}, 3, v1",
              (f"buffer_store_dwordx2 v[{B}:{B+1}], v{B+2}, s[28:31], s52 offen offset:1024", "qst")]
        return L
    def emit_fill(nmax, upto_tile=None):
        k = 0
        while fill and (k < nmax or (upto_tile is not None and any(f[0] == upto_tile for f in fill))):
            L = fill[0][2]
            x = L.pop(0)
            if isinstance(x, tuple): a(x[0], tag=x[1])
            else: a(x)
            if not L: fill.pop(0)
            k += 1
    def g2_setup():
        L = []
        A = L.append
        A("s_lshr_b32 s73, s38, 2"); A("s_and_b32 s74, s38, 3")
        A(f"s_add_u32 s8, s86, {PK_OFF}"); A("s_addc_u32 s9, s87, 0"); A(f"s_mov_b32 s10, {PK_BYTES}"); A("s_mov_b32 s11, 0x20000")
        A("s_mov_b32 s20, s82"); A("s_mov_b32 s21, s83"); A(f"s_mov_b32 s22, {S*D*2}"); A("s_mov_b32 s23, 0x20000")
        A(f"s_add_u32 s28, s86, {PART_OFF}"); A("s_addc_u32 s29, s87, 0"); A(f"s_mov_b32 s30, {PART_BYTES}"); A("s_mov_b32 s31, 0x20000")
        A("s_lshl_b32 s63, s36, 10")
        A(f"s_mul_i32 s75, s38, {PK_STREAM}"); A("s_add_u32 s75, s75, s63")
        for k in range(4):
            A(f"s_add_u32 s40, s74, {k}"); A("s_and_b32 s40, s40, 3"); A("s_lshl_b32 s41, s73, 2"); A("s_add_u32 s40, s40, s41")
            A(f"s_mul_i32 s40, s40, {18*1024}"); A(f"s_add_u32 s{76+k}, s40, s51")
        A("s_lshl_b32 s40, s73, 13"); A("s_add_u32 s40, s40, s51"); A(f"s_add_u32 s48, s40, {288*1024}")
        A("s_lshl_b32 s40, s73, 10"); A("s_add_u32 s40, s40, s51"); A(f"s_add_u32 s49, s40, {320*1024}")
        A("s_lshl_b32 s40, s37, 4"); A("s_add_u32 s41, s40, s38"); A("s_lshl_b32 s41, s41, 7"); A(f"s_add_u32 s44, s41, {FL_REL}")
        A("s_and_b32 s41, s38, 12"); A("s_add_u32 s41, s41, s40"); A("s_lshl_b32 s41, s41, 7"); A("s_lshl_b32 s46, s74, 2")
        A("s_add_u32 s41, s41, s46"); A(f"s_add_u32 s46, s41, {FL_REL}")
        A("s_add_u32 s41, s40, s74"); A("s_lshl_b32 s41, s41, 7"); A("s_lshl_b32 s62, s73, 2")
        A("s_add_u32 s41, s41, s62"); A(f"s_add_u32 s62, s41, {FL_REL + 48}")
        A("v_add_u32 v6, 55296, v11")
        A("v_lshrrev_b32 v13, 4, v1"); A("v_lshrrev_b32 v8, 1, v13"); A("v_and_b32 v13, 1, v13"); A("v_lshlrev_b32 v7, 10, v8"); A("v_lshl_add_u32 v7, v13, 9, v7")
        A("v_and_b32 v13, 15, v1"); A("v_lshl_add_u32 v7, v13, 4, v7")
        A("v_lshlrev_b32 v8, 30, v8"); A("v_add_u32 v8, v8, v7")
        groups = []; cur = []
        for x in L:
            if len(cur) >= 4 and not x.startswith("s_addc"): groups.append(cur); cur = []
            cur.append(x)
        return groups + [cur]
    def quad(k):
        return [f"s_add_u32 m0, s63, {LB + (ORG2 + 4096*k) % RING2}", f"s_add_u32 s42, s75, {4096*k}",
                (f"buffer_load_dwordx4 v11, s[8:11], s42 offen{CFG.SL} lds", f"q{k}")]
    def bload(pos):
        if pos < 28: pre = f"s_add_u32 s42, s{76 + pos//7}, {(pos%7)*2048}"
        elif pos < 36: pre = f"s_add_u32 s42, s{76 + (pos-28)//2}, {(7 + (pos-28)%2)*2048}"
        elif pos < 40: pre = f"s_add_u32 s42, s48, {(pos-36)*2048}"
        else: pre = "s_mov_b32 s42, s49"
        b = BR + 8 * (pos % 8); v = 8 if pos == 40 else 7
        return [pre, (f"buffer_load_dwordx4 v[{b}:{b+3}], v{v}, s[24:27], s42 offen{CFG.SL}", f"b{pos}"),
                (f"buffer_load_dwordx4 v[{b+4}:{b+7}], v{v}, s[24:27], s42 offen offset:256{CFG.SL}", f"b{pos}")]
    def quads_for_step(s_): return min(NQ - 1, ((s_ + 1) * 9216 + 4095) // 4096 - 1)
    side = []
    st2 = {"q": 0, "b": 0, "landed": -1}
    def push_quads(upto):
        while st2["q"] <= min(upto, NQ - 1): side.append(quad(st2["q"])); st2["q"] += 1
    def push_b(upto):
        while st2["b"] <= min(upto, 40): side.append(bload(st2["b"])); st2["b"] += 1
    def flush_side():
        while side: emit_group(side.pop(0))
    def land(kq):
        kq = min(kq, st2["q"] - 1 - sum(1 for g in side if isinstance(g[-1], tuple) and g[-1][1].startswith("q")))
        if kq < 0: return
        a.wait_vm([f"q{k}" for k in range(kq + 1)])
        s_ = -1
        while s_ + 1 <= 40 and quads_for_step(s_ + 1) <= kq: s_ += 1
        st2["landed_next"] = s_
    nissued = 0
    lim = {"a": 1}
    def issue_reads(upto):
        nonlocal nissued
        while nissued < min(upto, len(frs)):
            kind, g, s, t = frs[nissued]
            if kind == "b" and g > st2["landed"]: break
            if kind == "a" and g > lim["a"]: break
            rd(nissued); nissued += 1
    def do_arrive(I):
        flush_side()
        if I + 2 < NCH: a.wait_vm(f"w{I+2}")
        if I == 9: a.wait_vm("qst")
        if I == 38: a.wait_vm("hst3")
        if I == 48: assert not fill; a.wait_vm("hst4")
        if I >= 43:
            sl = min(2 * (I - 43) + 1, 40)
            kq = quads_for_step(sl)
            assert kq < st2["q"], (I, kq, st2)
            a.wait_vm([f"q{k}" for k in range(kq + 1)])
            st2["pend"][I] = sl
        arrive(a, 0)
    st2["pend"] = {}
    def do_check(I):
        chk(a, f"g{I}", 0, I)
        lim["a"] = I + 1
        if I - 1 in st2["pend"]: st2["landed"] = st2["pend"][I - 1]
        if I - 1 + R < NCH: side.extend(wdma(I - 1 + R))
        if I == 20: side.extend(g2_setup())
        if I == 36: side.append(poll_issue(a, 128, "pkp", 14, 13))
        if I == 39: poll_check(a, "pk", "pkp", 12, 20, 256, 14, 13)
        if I == 40: push_quads(1); push_b(2)
        if I == 41: push_quads(5); push_b(4)
        if I == 42: push_quads(8); push_b(6)
        if I == 43: push_quads(12)
        if I == 44: push_quads(16)
        if I == 45: push_quads(20)
        if I >= 46: push_quads((2 * (I - 45) * 9216 + RING2) // 4096 - 1)
        if I in (39, 49):
            a("s_cmp_lg_u32 s36, 0"); a(f"s_cbranch_scc1 L_g_nohp{I}")
            if I == 49: a("s_add_u32 s46, s46, 16")
            flag_send(a, 8, 46, 128); a.label(f"L_g_nohp{I}")
        if I == 42: side.append(flag_issue(8, 44, 0, "hp"))
        if I == 44: flag_check(a, "h", "hp", 8, 44, 0); st2["bcap"] = 27
        if I == HL - 1: side.append(flag_issue(8, 44, 16, "hl"))
        if I == HL: flag_check(a, "hl", "hl", 8, 44, 16); st2["bcap"] = 35
        if I == OL - 1: side.append(flag_issue(8, 44, 32, "op"))
        if I == OL: flag_check(a, "o", "op", 8, 44, 32); st2["bcap"] = 40
    st2["bcap"] = 6
    issue_reads(PF)
    for n, (kind, g, s, t) in enumerate(frs):
        b = FR + 4 * (n % NFR)
        if kind == "a":
            p, c = divmod(g, 9)
            first = (c == 0 and s == 0)
            if first: emit_fill(0, upto_tile=t)
            a.wait_lg(f"f{n}")
            a(f"v_mfma_f32_32x32x16_bf16 {acc(t)}, v[{b}:{b+3}], {X(4*c+s)}, {'0' if first else acc(t)}")
            if n % 16 == 6 and g > 0: chk_issue(a, 0)
            if n % 16 == 9 and g > 0: do_check(g)
            issue_reads(n + 1 + PF)
            if side: emit_group(side.pop(0))
            for f in fill: f[1] -= 1
            if fill and fill[0][1] <= 0: emit_fill(7)
            if c == 8 and s == 3:
                L = q_epi(t) if (p == 0 and t < 2) else gu_epi(t, (t - 2) if p == 0 else 2 + 4*(p-1) + t, p)
                if PRIO and t == 0: L = ["s_setprio 2"] + L
                if PRIO and t == 3: L = L + ["s_setprio 0"]
                fill.append([t, 1, L])
            if n % 16 == 15:
                do_arrive(g)
                if g == 8: stamps.stamp(a, 4)
        else:
            pos, nt = g, s
            I = NCH + pos // 2; m = (pos % 2) * 9 + nt
            if nt == 0:
                if pos == 0: stamps.stamp(a, 5)
                assert st2["b"] > pos, pos
                if any(isinstance(x[-1], tuple) and x[-1][1] == f"b{pos}" for x in side): flush_side()
                a.wait_vm(f"b{pos}")
            assert nissued > n, (pos, nt, st2)
            a.wait_lg(f"f{n}")
            for rh in range(2):
                bb = BR + 8 * (pos % 8) + 4 * rh
                u = rh * 9 + nt
                a(f"v_mfma_f32_16x16x32_bf16 {acc2(u)}, v[{b}:{b+3}], v[{bb}:{bb+3}], {'0' if pos == 0 else acc2(u)}")
                if rh == 0:
                    if m == 8 and pos < 40: chk_issue(a, 0)
                    if m == 11: do_check(I)
                    issue_reads(n + 1 + PF)
                elif fill: emit_fill(7)
                elif side: emit_group(side.pop(0))
            if nt == 8:
                if pos % 2 == 1 and pos < 39: do_arrive(I)
                push_b(min(pos + 8, st2["bcap"]))
    flush_side()
    finish(a)
    return nbar

def finish(a):
    a("s_nop 7")
    a("s_waitcnt vmcnt(0) lgkmcnt(0)"); a.vmq = []; a.lgq = []
    a("s_barrier")
    a("s_lshl_b32 s40, s37, 2"); a("s_add_u32 s40, s40, s73"); a(f"s_mul_i32 s47, s40, {32*1152}"); a("s_mul_i32 s41, s74, 288"); a("s_add_u32 s47, s47, s41")
    a("v_and_b32 v3, 15, v1"); a("v_mul_u32_u24 v3, 1152, v3"); a("v_lshrrev_b32 v4, 4, v1"); a("v_lshl_add_u32 v5, v4, 3, v3")
    XR = 16
    for k in range(3):
        for e in range(2):
            d = 64 + 2*k + e
            a(f"s_lshl_b32 s40, s36, 1"); a(f"s_add_u32 s40, s40, {8*k+e}")
            a("s_cmp_ge_u32 s40, 9"); a("s_cselect_b32 s41, 9, 0"); a(f"s_cselect_b32 s42, {16*1152}, 0")
            a("s_sub_u32 s41, s40, s41"); a("s_lshl_b32 s41, s41, 5"); a("s_add_u32 s41, s41, s42"); a(f"s_add_u32 s{d}, s41, s47")
            a(f"buffer_load_dwordx2 v[{XR+4*k+2*e}:{XR+4*k+2*e+1}], v5, s[4:7], s{d} offen")
    a("s_lshl_b32 s40, s37, 2"); a("s_add_u32 s40, s40, s74"); a(f"s_mul_i32 s70, s40, {16*9216}")
    a("s_cmp_eq_u32 s36, s73"); a("s_cbranch_scc1 L_g_own")
    a(f"s_lshl_b32 s41, s73, 2"); a("s_add_u32 s41, s41, s36"); a("s_mul_i32 s41, s41, 9216"); a("s_add_u32 s41, s41, s70")
    for r in range(9):
        T = 48 + 4 * (r % 4)
        for k in range(4): a(f"v_cvt_pk_bf16_f32 v{T+k}, v{ACC2+8*r+2*k}, v{ACC2+8*r+2*k+1}")
        a(f"s_add_u32 s42, s41, {r*1024}")
        a(f"buffer_store_dwordx4 v[{T}:{T+3}], v11, s[28:31], s42 offen{CFG.SS}")
    a("s_branch L_g_st")
    a.label("L_g_own")
    for u in range(18): a(f"ds_write_b128 v11, {acc2(u)} offset:{LB + u*1024}")
    a.label("L_g_st")
    a("s_waitcnt vmcnt(0) lgkmcnt(0)"); a.vmq = []; a.lgq = []
    a("s_barrier")
    a("s_cmp_lg_u32 s36, 0"); a("s_cbranch_scc1 L_g_nored"); flag_send(a, 8, 62, 512); a.label("L_g_nored")
    OW = 64
    a("s_lshl_b32 s40, s36, 11"); a("v_add_u32 v6, s40, v11")
    for k in range(3):
        for e in range(2): a(f"ds_read_b128 v[{OW+8*k+4*e}:{OW+8*k+4*e+3}], v6 offset:{LB + k*8192+e*1024}")
    for x in flag_issue(8, 44, 48, "rp"):
        a(x[0], tag=x[1]) if isinstance(x, tuple) else a(x)
    flag_check(a, "r", "rp", 8, 44, 48)
    G = 96
    a("s_mul_i32 s41, s73, 9216"); a("s_add_u32 s41, s41, s70"); a("s_lshl_b32 s42, s36, 10"); a("s_add_u32 s41, s41, s42")
    for j in range(3):
        a(f"s_add_u32 s40, s73, {j+1}"); a("s_and_b32 s40, s40, 3"); a(f"s_mul_i32 s40, s40, {4*9216}"); a(f"s_add_u32 s{71+j if j < 2 else 43}, s40, s41")
    sj = [71, 72, 43]
    def loads(k):
        for j in range(3):
            r = G + 12*k + 4*j
            a(f"s_add_u32 s42, s{sj[j]}, {k*4096}")
            a(f"buffer_load_dwordx4 v[{r}:{r+3}], v11, s[28:31], s42 offen{CFG.SL}", tag=f"g{k}")
    def fin(k):
        a.wait_vm(f"g{k}")
        o = OW + 8*k; T = 140
        srcs = [G + 12*k + 4*j for j in range(3)] + [XR + 4*k]
        for r in srcs:
            for q in range(4):
                a(f"v_lshlrev_b32 v{T+2*q}, 16, v{r+q}"); a(f"v_and_b32 v{T+2*q+1}, s54, v{r+q}")
            for q in range(8): a(f"v_add_f32 v{o+q}, v{o+q}, v{T+q}")
        for q in range(4): a(f"v_cvt_pk_bf16_f32 v{T+8+q}, v{o+2*q}, v{o+2*q+1}")
        for e in range(2): a(f"buffer_store_dwordx2 v[{T+8+2*e}:{T+9+2*e}], v5, s[20:23], s{64+2*k+e} offen")
        a("s_nop 1")
    loads(0); loads(1)
    a.wait_lg0()
    a("s_cmp_lg_u32 s36, 0"); a("s_cbranch_scc1 L_g_no3")
    sv = list(a.vmq)
    loads(2); fin(2)
    a.label("L_g_no3")
    a.vmq = sv
    fin(0); fin(1)
    stamps.flush(a, 0, 55); stamps.tb_flush(a, 12, 55)
    a("s_endpgm")
```

```python
from layout import *
ENABLE = False
def stamp(a, i):
    if not ENABLE: return
    a(f"s_memrealtime s[{88+2*i}:{89+2*i}]")
    if i == 0: a("s_memtime s[58:59]")
def flush(a, kidx, wave_sgpr_full, n=7, ws=86):
    if not ENABLE: return
    a("s_waitcnt vmcnt(0) lgkmcnt(0)")
    a(f"s_memrealtime s[{88+2*(n-1)}:{89+2*(n-1)}]")
    a(f"s_memtime s[60:61]")
    a("s_waitcnt lgkmcnt(0)")
    a("s_sub_u32 s60, s60, s58")
    a(f"s_add_u32 s4, s{ws}, {TS_OFF + kidx*TS_KPITCH}"); a(f"s_addc_u32 s5, s{ws+1}, 0"); a(f"s_mov_b32 s6, {TS_KPITCH}"); a("s_mov_b32 s7, 0x20000")
    a(f"s_lshl_b32 s40, s2, 3"); a(f"s_add_u32 s40, s40, s{wave_sgpr_full}"); a("s_lshl_b32 s40, s40, 6")
    for i in range(7): a(f"v_mov_b32 v{16+i}, s{88+2*min(i,n-1)}")
    a("v_mov_b32 v23, s60")
    a("v_mov_b32 v2, 0")
    for k in range(2): a(f"buffer_store_dwordx4 v[{16+4*k}:{19+4*k}], v2, s[4:7], s40 offen offset:{16*k}")
TB = False
def mark(a, vt):
    if TB:
        a("s_mov_b32 m0, s59"); a(f"v_writelane_b32 v{vt}, s98, m0"); a("s_add_u32 s59, s59, 1"); a("s_min_u32 s59, s59, 63")
        a("s_memrealtime s[98:99]")
def tb_init(a, vt):
    if TB:
        a("s_mov_b32 s59, 0"); a("s_memrealtime s[98:99]"); a("s_waitcnt lgkmcnt(0)")
def tb_flush(a, vt, wave, ws=86):
    if not TB: return
    a("s_waitcnt vmcnt(0) lgkmcnt(0)")
    a("s_mov_b32 m0, s59"); a(f"v_writelane_b32 v{vt}, s98, m0")
    a("s_memrealtime s[98:99]"); a("s_waitcnt lgkmcnt(0)"); a(f"v_writelane_b32 v{vt}, s98, 63")
    a(f"s_add_u32 s4, s{ws}, {TS_OFF + TS_KPITCH}"); a(f"s_addc_u32 s5, s{ws+1}, 0"); a(f"s_mov_b32 s6, {256*8*256}"); a("s_mov_b32 s7, 0x20000")
    a(f"s_lshl_b32 s40, s2, 3"); a(f"s_add_u32 s40, s40, s{wave}"); a("s_lshl_b32 s40, s40, 8")
    a("v_lshlrev_b32 v2, 2, v1")
    a(f"buffer_store_dword v{vt}, v2, s[4:7], s40 offen")
```

```python
from dsl import *
from layout import *
import mk, at2, stamps, sys
NAME = "parallel_sum__grouped_kv_mqa__glu_gated_reglu__prompt_kernel"
def build(ts=False, exp=()):
    stamps.ENABLE = ts
    mk.EXP = set(exp)
    a = Asm()
    for l in kernel_header(NAME): a.raw(l)
    mk.common(a)
    mk.gen_g(a)
    at2.gen_at(a)
    a.label("L_end"); a("s_endpgm")
    hdr = open("parallel_sum__grouped_kv_mqa__glu_gated_reglu__prompt.s.ref").read().split("; Override launch")[0]
    return (hdr + "; @launch grid=(256,1,1) block=(512,1,1) lds=163840\n" + '.amdgcn_target "amdgcn-amd-amdhsa--gfx950"\n' + a.text() + kernel_desc(NAME, 256)), None
import cfg
if __name__ == "__main__":
    t, info = build(ts=True); open("mk_ts.s", "w").write(t)
    t, info = build(); open("mk.s", "w").write(t)
    stamps.TB = True
    t, info = build(); open("mk_tb.s", "w").write(t)
    stamps.TB = False
    print(info)
```

```python
from dsl import *
from layout import *
import stamps, struct
def f32(x): return struct.unpack("<I", struct.pack("<f", x))[0]

import mk
ATB = mk.KVIMG
GRP = 4 * KV_PITCH
Q1 = [16, 24]; Q2 = [20, 28]
S_ = [32, 48]; P_ = [64, 72]; O_ = [80, 96]
K1 = [112, 120]; K2 = [116, 124]
VA = [128, 136]; VB = [132, 140]
aK1, aK2, aV = 2, 3, 4
LTHR = f32(2.0 ** -60)


import cfg as CFG
def srd(a, d, p, nbytes, off=0):
    if off: a(f"s_add_u32 s{d}, s{p}, {off}"); a(f"s_addc_u32 s{d+1}, s{p+1}, 0")
    else: a(f"s_mov_b32 s{d}, s{p}"); a(f"s_mov_b32 s{d+1}, s{p+1}")
    a(f"s_mov_b32 s{d+2}, {nbytes}"); a(f"s_mov_b32 s{d+3}, 0x20000")

def pack_issue(a, r):
    a(f"s_lshl_b32 s40, s2, 2"); a("s_add_u32 s40, s40, s36")
    if r: a("s_add_u32 s40, s40, 1024"); a("s_cmp_ge_u32 s40, 1476"); a("s_cbranch_scc1 L_pk_skip")
    a("s_mul_hi_u32 s41, s40, s60"); a("s_mul_i32 s42, s41, 9"); a("s_sub_u32 s42, s40, s42")
    a("s_mul_hi_u32 s43, s41, s60"); a("s_mul_i32 s44, s43, 9"); a("s_sub_u32 s44, s41, s44")
    a("s_add_u32 s45, s44, 1"); a("s_cmp_eq_u32 s45, 9"); a("s_cselect_b32 s45, 0, s45")
    a("s_bitcmp1_b32 s43, 0"); a("s_cselect_b32 s45, s44, s45")
    a("s_lshr_b32 s46, s43, 2"); a("s_and_b32 s47, s43, 3"); a("s_lshl_b32 s48, s41, 5")
    a("s_mov_b32 s49, 0")
    a("s_cmp_lt_u32 s41, 144"); a(f"s_cbranch_scc1 L_pk_h{r}")
    a("s_sub_u32 s44, s41, 144"); a("s_mul_hi_u32 s46, s44, s61"); a("s_mul_i32 s43, s46, 5"); a("s_sub_u32 s44, s44, s43")
    a("s_add_u32 s45, s44, 36")
    a("s_mul_i32 s48, s46, 144"); a("s_mul_i32 s43, s44, 36")
    a("s_cmp_eq_u32 s44, 4"); a("s_cselect_b32 s49, 2, 1"); a("s_cselect_b32 s43, 0, s43"); a("s_add_u32 s48, s48, s43")
    a.label(f"L_pk_h{r}")
    a("s_cmp_lt_u32 s45, 7"); a("s_cselect_b32 s52, 7, 2"); a("s_cselect_b32 s43, 0, 21")
    a("s_cmp_eq_u32 s49, 0"); a("s_cselect_b32 s52, s52, 0"); a("s_cselect_b32 s43, s43, 0"); a("s_add_u32 s45, s45, s43")
    a("s_cmp_eq_u32 s49, 0")
    a("s_cselect_b32 s4, s80, s72"); a("s_cselect_b32 s5, s81, s73"); a("s_cselect_b32 s6, s62, s63"); a("s_mov_b32 s7, 0x20000")
    a("s_cmp_eq_u32 s49, 2"); a("s_cselect_b64 vcc, -1, 0"); a("v_cndmask_b32 v14, v12, v13, vcc")
    a("s_mul_i32 s48, s48, 1152"); a("s_lshl_b32 s43, s42, 7"); a("s_add_u32 s48, s48, s43")
    for i in range(4):
        c0 = 8 * i; c1 = 8 * i + (2 if i >= 2 else 0); c2 = 16 + 36 * (i & 1)
        a(f"s_mov_b32 s43, {c0*1152}"); a("s_cmp_eq_u32 s49, 1"); a(f"s_cselect_b32 s43, {c1*1152}, s43")
        a("s_cmp_eq_u32 s49, 2"); a(f"s_cselect_b32 s43, {c2*1152}, s43"); a("s_add_u32 s43, s43, s48")
        a(f"s_add_u32 m0, s50, {r*4096 + i*1024}")
        a("buffer_load_dwordx4 v14, s[4:7], s43 offen lds")
    for c in range(4):
        d = 64 + 4 * r + c
        a("s_lshl_b32 s43, s42, 2"); a(f"s_add_u32 s43, s43, {c}")
        a("s_mul_hi_u32 s44, s43, s60"); a("s_mul_i32 s48, s44, 9"); a("s_sub_u32 s43, s43, s48")
        a("s_sub_u32 s48, s47, s44"); a("s_and_b32 s48, s48, 3"); a("s_mul_i32 s48, s48, s52"); a("s_add_u32 s48, s48, s45")
        a("s_lshl_b32 s51, s46, 2"); a("s_add_u32 s51, s51, s44"); a("s_mul_i32 s51, s51, 41"); a("s_add_u32 s51, s51, s48")
        a("s_mul_i32 s51, s51, 9"); a("s_add_u32 s51, s51, s43"); a(f"s_lshl_b32 s{d}, s51, 10")

def pack_store(a, r):
    for c in range(4):
        b = 32 + 16 * r + 4 * c
        a(f"ds_read_b64_tr_b16 v[{b}:{b+1}], v{16+c} offset:{r*4096}")
        a(f"ds_read_b64_tr_b16 v[{b+2}:{b+3}], v{16+c} offset:{r*4096+1024}")
    a.wait_lg0()
    for c in range(4):
        b = 32 + 16 * r + 4 * c
        a(f"buffer_store_dwordx4 v[{b}:{b+3}], v11, s[12:15], s{64+4*r+c} offen{CFG.SS}")

PACE0 = 10; PACE = 3
def gen_at(a):
    a.label("L_at")
    a.vmq = []; a.lgq = []
    if "nocp" not in mk.EXP:
        a("s_getpc_b64 s[4:5]")
        a.label("L_pc")
        a("s_sub_u32 s4, s4, L_pc-KSTART"); a("s_subb_u32 s5, s5, 0"); a("s_mov_b32 s6, L_end-KSTART"); a("s_mov_b32 s7, 0x20000")
        a("s_lshr_b32 s40, s2, 3"); a("s_lshl_b32 s40, s40, 2"); a("s_add_u32 s40, s40, s36")
        a("s_mul_hi_u32 s41, s40, 0x1c71c71d"); a("s_mul_i32 s41, s41, 9"); a("s_sub_u32 s40, s40, s41"); a("s_lshl_b32 s40, s40, 13")
        a("v_lshlrev_b32 v2, 7, v1")
        a("buffer_load_dword v20, v2, s[4:7], s40 offen")
    srd(a, 12, 86, PK_BYTES, PK_OFF)
    a("s_mov_b32 s60, 0x1c71c71d"); a("s_mov_b32 s61, 0x33333334"); a(f"s_mov_b32 s62, {F*D*2}"); a(f"s_mov_b32 s63, {D*D*2}")
    a(f"s_lshl_b32 s50, s36, 13"); a(f"s_add_u32 s50, s50, {ATB}")
    a("v_lshrrev_b32 v2, 3, v1"); a("v_bfe_u32 v3, v1, 1, 2"); a("v_bfe_u32 v4, v1, 4, 2"); a("v_xor_b32 v3, v3, v4"); a("v_lshlrev_b32 v3, 5, v3")
    a("v_and_b32 v4, 1, v1"); a("v_lshl_add_u32 v3, v4, 4, v3")
    a("v_mul_u32_u24 v4, 1152, v2"); a("v_add_u32 v12, v4, v3")
    a("v_and_b32 v4, 4, v2"); a("v_bfe_u32 v5, v2, 1, 1"); a("v_add_u32 v4, v4, v5"); a("v_mul_u32_u24 v4, 18, v4"); a("v_and_b32 v5, 1, v2"); a("v_add_u32 v4, v4, v5")
    a("v_mul_u32_u24 v4, 1152, v4"); a("v_add_u32 v13, v4, v3")
    a("v_lshrrev_b32 v2, 5, v1"); a("v_lshlrev_b32 v2, 4, v2"); a("v_bfe_u32 v3, v1, 4, 1"); a("v_lshl_add_u32 v2, v3, 2, v2"); a("v_bfe_u32 v4, v1, 2, 2"); a("v_add_u32 v2, v2, v4")
    a("v_bfe_u32 v3, v2, 1, 2"); a("v_lshlrev_b32 v2, 7, v2"); a("v_lshl_add_u32 v2, v3, 5, v2"); a("v_and_b32 v3, 3, v1"); a("v_lshl_add_u32 v2, v3, 3, v2")
    a("v_add_u32 v16, s50, v2"); a("v_xor_b32 v17, 32, v16"); a("v_xor_b32 v18, 64, v16"); a("v_xor_b32 v19, 96, v16")
    a("s_lshl_b32 s40, s37, 4"); a("s_add_u32 s40, s40, s38"); a("s_lshl_b32 s40, s40, 7"); a(f"s_add_u32 s40, s40, {FL_REL}")
    a("v_mov_b32 v2, 0"); a("v_lshlrev_b32 v3, 2, v1")
    a("s_mov_b32 exec_hi, 0"); a(f"buffer_store_dword v2, v3, s[12:15], s40 offen{CFG.SS}"); a("s_mov_b32 exec_hi, -1")
    a("s_waitcnt lgkmcnt(0)")
    a("s_barrier"); a("s_barrier")
    pack_issue(a, 0); pack_issue(a, 1)
    a.label("L_pk_skip")
    a("s_waitcnt vmcnt(0)")
    pack_store(a, 0)
    a(f"s_lshl_b32 s40, s2, 2"); a("s_add_u32 s40, s40, s36"); a("s_cmp_ge_u32 s40, 452"); a("s_cbranch_scc1 L_pk_skip2")
    pack_store(a, 1)
    a.label("L_pk_skip2")
    a.vmq = []; a.lgq = []
    a("v_mov_b32 v5, v11")
    a(f"v_add_u32 v{aK1}, {ATB}, v5")
    a("v_and_b32 v6, 31, v1"); a(f"v_lshlrev_b32 v{aK2}, 2, v6"); a(f"v_add_u32 v{aK2}, {ATB+1024}, v{aK2}")
    a("v_mov_b32 v7, 0"); a("v_cmp_lt_u32 vcc, 27, v6"); a("v_cndmask_b32 v7, v7, 4, vcc")
    a("v_cmp_eq_u32 vcc, 19, v6"); a("v_cndmask_b32 v7, v7, 4, vcc")
    a("v_cmp_eq_u32 vcc, 22, v6"); a("v_cndmask_b32 v7, v7, 18, vcc")
    a("v_cmp_gt_u32 vcc, 19, v6"); a("v_cndmask_b32 v7, v7, v6, vcc")
    a("v_lshrrev_b32 v8, 5, v1"); a("v_mul_u32_u24 v8, 304, v8"); a(f"v_lshl_add_u32 v9, v7, 4, v8")
    a(f"v_add_u32 v{aV}, {ATB+1280}, v9")
    a(f"s_mul_i32 s44, s36, {KV_PITCH}"); a(f"s_add_u32 s45, s44, {KV_OFF}"); a(f"s_add_u32 s44, s44, {ATB}")
    for c in (0, 1):
        for k in range(16): a(f"v_mov_b32 v{O_[c]+k}, 0")
        a(f"v_mov_b32 v{Q2[c]+2}, 0"); a(f"v_mov_b32 v{Q2[c]+3}, 0"); a(f"v_mov_b32 v{K2[c]+2}, 0"); a(f"v_mov_b32 v{K2[c]+3}, 0")
    a("s_cmp_lg_u32 s36, 0"); a("s_cbranch_scc1 L_at_go")
    a("v_mov_b32 v10, 0"); a("s_mov_b32 s56, 0")
    a.label("L_at_poll")
    a(f"buffer_load_dword v12, v10, s[32:35], 0 offen{CFG.SP}")
    a("s_waitcnt vmcnt(0)")
    a("v_readfirstlane_b32 s40, v12")
    a(f"s_cmp_ge_u32 s40, {32*4096}")
    a("s_cbranch_scc1 L_at_go")
    a("s_add_u32 s56, s56, 1"); a("s_cmp_ge_u32 s56, 0x80000"); a("s_cbranch_scc1 L_at_go")
    a("s_sleep 8"); a("s_branch L_at_poll")
    a.label("L_at_go")
    a.vmq = []
    mk.arrive(a, 4, 14)
    mk.chk_issue(a, 4); mk.chk(a, "a1", 4, 1, sleep=4)
    stamps.stamp(a, 1)
    def kvdma(m, slot):
        for j in range(3):
            a(f"s_add_u32 m0, s44, {slot*GRP + j*1024}"); a(f"s_add_u32 s42, s45, {m*GRP + j*1024}")
            a(f"buffer_load_dwordx4 v5, s[28:31], s42 offen{CFG.SL} lds", tag=f"kv{m}")
    kvdma(0, 0); kvdma(1, 1)
    a("v_lshlrev_b32 v10, 3, v1"); a("v_lshlrev_b32 v13, 2, v1")
    a(f"s_mov_b32 s40, {KMAX_OFF}")
    a(f"buffer_load_dword v12, v13, s[28:31], s40 offen{CFG.SL}", tag="km")
    a.wait_vm("km")
    mk.arrive(a, 4, 14)
    for off in (0x041F, 0x081F, 0x101F, 0x201F, 0x401F):
        a(f"ds_swizzle_b32 v13, v12 offset:{off:#x}"); a.wait_lg0(); a("v_max_f32 v12, v12, v13")
    a("v_mov_b32 v13, v12"); a("v_permlane32_swap_b32 v12, v13"); a("v_max_f32 v12, v12, v13")
    a("v_sqrt_f32 v12, v12"); a(f"v_mul_f32 v12, {f32(1+1/64.):#x}, v12"); a("v_mov_b32 v13, 0")
    a(f"v_cvt_pk_bf16_f32 v{K2[0]+1}, v12, v13"); a(f"v_mov_b32 v{K2[1]+1}, v{K2[0]+1}")
    mk.chk_issue(a, 0); mk.chk(a, "aq", 0, 10, sleep=4)
    a("s_lshl_b32 s43, s39, 5"); a("s_lshl_b32 s40, s38, 1"); a("s_add_u32 s43, s43, s40"); a(f"s_mul_i32 s43, s43, {Q_PITCH}"); a(f"s_add_u32 s43, s43, {Q_OFF}")
    for c in (0, 1):
        a(f"buffer_load_dwordx4 v[{Q1[c]}:{Q1[c]+3}], v5, s[28:31], s43 offen offset:{c*Q_PITCH}{CFG.SL}", tag="q")
        a(f"buffer_load_dwordx2 v[{Q2[c]}:{Q2[c]+1}], v10, s[28:31], s43 offen offset:{c*Q_PITCH+1024}{CFG.SL}", tag="q")
    mk.chk_issue(a, 4); mk.chk(a, "a2", 4, 2, sleep=1)
    stamps.stamp(a, 2)
    a("s_setprio 1")

    def rdK(i, b):
        a(f"ds_read_b128 v[{K1[b]}:{K1[b]+3}], v{aK1} offset:{i*KV_PITCH}", tag=f"k{b}")
        a(f"ds_read_b32 v{K2[b]}, v{aK2} offset:{i*KV_PITCH}", tag=f"k{b}")
    def rdV(i, b):
        a(f"ds_read_b128 v[{VA[b]}:{VA[b]+3}], v{aV} offset:{i*KV_PITCH}", tag=f"v{b}")
        a(f"ds_read_b128 v[{VB[b]}:{VB[b]+3}], v{aV} offset:{i*KV_PITCH+608}", tag=f"v{b}")
    def qk(c, b):
        S = S_[c]
        return [f"v_mfma_f32_32x32x16_bf16 v[{S}:{S+15}], v[{K1[b]}:{K1[b]+3}], v[{Q1[c]}:{Q1[c]+3}], 0",
                f"v_mfma_f32_32x32x16_bf16 v[{S}:{S+15}], v[{K2[b]}:{K2[b]+3}], v[{Q2[c]}:{Q2[c]+3}], v[{S}:{S+15}]"]
    def pv(c, b):
        O = O_[c]; P = P_[c]
        return [f"v_mfma_f32_32x32x16_bf16 v[{O}:{O+15}], v[{VA[b]}:{VA[b]+3}], v[{P}:{P+3}], v[{O}:{O+15}]",
                f"v_mfma_f32_32x32x16_bf16 v[{O}:{O+15}], v[{VB[b]}:{VB[b]+3}], v[{P+4}:{P+7}], v[{O}:{O+15}]"]
    def half(i, c, do_qk, do_pv, pre=None, mid=None):
        S = S_[c]; P = P_[c]; cn = 1 - c
        bq = (i + c) & 1
        bv = (i + 1) & 1 if c == 0 else i & 1
        mq = qk(cn, bq) if do_qk else [None, None]
        mp = pv(cn, bv) if do_pv else [None, None]
        slots = [mq[0], mq[1], mp[0], mp[1]]
        for s in range(4):
            if s == 0 and do_qk: a.wait_lg(f"k{bq}")
            if s == 2 and do_pv: a.wait_lg(f"v{bv}")
            if slots[s]: a(slots[s])
            if s == 0 and pre: pre()
            if s == 2 and mid: mid()
            for e in range(4): a(f"v_exp_f32 v{S+4*s+e}, v{S+4*s+e}")
            if s > 0:
                for k in range(2): a(f"v_cvt_pk_bf16_f32 v{P+2*(s-1)+k}, v{S+4*(s-1)+2*k}, v{S+4*(s-1)+2*k+1}")
        for k in range(2): a(f"v_cvt_pk_bf16_f32 v{P+6+k}, v{S+12+2*k}, v{S+12+2*k+1}")
    rdK(0, 0)
    a.wait_vm("q")
    a.wait_lg("k0")
    for m in qk(0, 0): a(m)
    a("s_nop 7"); a("s_nop 3")
    uid = [0]
    def body(first, last, dma):
        uid[0] += 1; u = uid[0]
        for i in range(4):
            def pre0():
                if i == 3:
                    if not last:
                        a(f"v_add_u32 v{aK1}, s46, v{aK1}"); a(f"v_add_u32 v{aK2}, s46, v{aK2}")
                        rdK(0, 0)
                else:
                    rdK(i + 1, (i + 1) & 1)
                rdV(i, i & 1)
                if i == 3 and not last: a(f"v_add_u32 v{aV}, s46, v{aV}")
                if i == 0 and not first and not last: mk.chk_issue(a, 4)
                if i == 2 and not last: mk.chk_issue(a, 4)
                if i == 3 and not last and PACE: mk.chk_issue(a, 0, v=13)
            for c in (0, 1):
                hs = 2 * i + c
                def mid():
                    if hs == 1 and not first and not last: mk.chk(a, f"w{u}", 4, "s52")
                    if hs == 1 and dma:
                        for j in range(3):
                            a(f"s_add_u32 m0, s49, {j*1024}"); a(f"s_add_u32 s42, s48, {j*1024}")
                            a(f"buffer_load_dwordx4 v5, s[28:31], s42 offen{CFG.SL} lds", tag="kvn")
                    if hs == 3 and not last:
                        a(f"s_waitcnt vmcnt({3 if dma else 0})"); mk.arrive(a, 4, 14); a("s_add_u32 s52, s52, s53")
                    if hs == 5 and not last: mk.chk(a, f"r{u}", 4, "s52")
                    if hs == 7 and not last:
                        mk.arrive(a, 4, 14); a("s_add_u32 s52, s52, s53")
                if c == 0: half(i, 0, True, not (first and i == 0), pre=pre0, mid=mid)
                else: half(i, 1, not (last and i == 3), True, mid=mid)
    def advance():
        a("s_add_u32 s47, s47, 1"); a("s_cmp_eq_u32 s47, 3"); a("s_cselect_b32 s47, 0, s47")
        a("s_cmp_eq_u32 s47, 2"); a(f"s_cselect_b32 s46, {(-2*GRP) & 0xffffffff:#x}, s63")
        a(f"s_add_u32 s48, s48, {GRP}")
        a(f"s_add_u32 s49, s49, {GRP}"); a(f"s_add_u32 s40, s44, {3*GRP}"); a("s_cmp_eq_u32 s49, s40"); a("s_cselect_b32 s49, s44, s49")
        if PACE:
            uid[0] += 1
            a("s_add_u32 s54, s54, s57")
            mk.chk(a, f"p{uid[0]}", 0, "s54", v=13, sleep=2)
    a("s_mov_b32 s47, 0"); a(f"s_mov_b32 s46, {GRP}"); a(f"s_mov_b32 s63, {GRP}"); a(f"s_add_u32 s48, s45, {2*GRP}"); a(f"s_add_u32 s49, s44, {2*GRP}")
    a("s_mov_b32 s53, 16"); a("s_mov_b32 s52, 32")
    a(f"s_mov_b32 s54, {PACE0*16}"); a(f"s_mov_b32 s57, {PACE*16}")
    a("s_bfe_u32 s62, s2, 0x20003"); a("s_sub_u32 s62, 13, s62"); a("s_cmp_lg_u32 s36, 0"); a("s_cselect_b32 s62, 99, s62")
    body(True, False, True)
    advance()
    a("s_mov_b32 s50, 13")
    if "noat" in mk.EXP:
        a("s_cmp_lg_u32 s36, 0"); a("s_cbranch_scc1 L_at_fin")
        a("v_mov_b32 v12, 128"); a("v_mov_b32 v10, 4096"); a("s_mov_b64 exec, 1"); a("buffer_atomic_add v10, v12, s[32:35], 0 offen"); a("s_mov_b64 exec, -1")
        a("s_branch L_at_fin")
    lg_in = list(a.lgq)
    i0 = len(a.items)
    a.label("L_at_loop")
    body(False, False, True)
    a("s_cmp_lg_u32 s50, s62"); a("s_cbranch_scc1 L_at_nopk")
    a("v_mov_b32 v12, 128"); a("v_mov_b32 v10, 4096"); a("s_mov_b64 exec, 1"); a("buffer_atomic_add v10, v12, s[32:35], 0 offen"); a("s_mov_b64 exec, -1")
    a.label("L_at_nopk")
    advance()
    a("s_sub_u32 s50, s50, 1"); a("s_cmp_lg_u32 s50, 0"); a("s_cbranch_scc1 L_at_loop")
    assert a.lgq == lg_in, (a.lgq, lg_in)
    loop_ins = [x for x in a.items[i0:] if not isinstance(x, str)]
    assert check_backedge(loop_ins, loop_ins) == 0
    body(False, False, False)
    advance()
    body(False, True, False)
    for m in pv(1, 1): a(m)
    a("s_setprio 0")
    stamps.stamp(a, 3)
    a("s_nop 15")
    a(f"v_min_f32 v12, v{O_[0]+10}, v{O_[1]+10}")
    a(f"s_mov_b32 s51, {LTHR:#x}")
    a("v_cmp_nle_f32 vcc, s51, v12")
    a("s_nop 4")
    a("s_cbranch_vccz L_at_fin")
    fallback(a)
    a.label("L_at_fin")
    a(f"s_mul_i32 s43, s39, {NSTEP}"); a("s_lshl_b32 s40, s38, 1"); a("s_add_u32 s41, s43, s40"); a("s_add_u32 s41, s41, 288"); a("s_lshl_b32 s41, s41, 10")
    a("s_lshr_b32 s42, s40, 3"); a("s_add_u32 s43, s43, s42"); a("s_add_u32 s43, s43, 320"); a("s_lshl_b32 s43, s43, 10")
    a("s_bfe_u32 s42, s40, 0x10002"); a("s_lshl_b32 s42, s42, 9"); a("s_add_u32 s43, s43, s42")
    a("s_and_b32 s42, s40, 3"); a("s_lshl_b32 s42, s42, 2"); a("s_add_u32 s43, s43, s42")
    for c in (0, 1):
        O = O_[c]; T = S_[c]
        a(f"v_rcp_f32 v{T}, v{O+10}")
        for k in range(10): a(f"v_mul_f32 v{O+k}, v{O+k}, v{T}")
        for k in range(5): a(f"v_cvt_pk_bf16_f32 v{T+4+k}, v{O+2*k}, v{O+2*k+1}")
        a(f"buffer_store_dwordx4 v[{T+4}:{T+7}], v5, s[24:27], s41 offen offset:{c*1024}{CFG.SS}")
    a("s_mov_b32 exec_hi, 0")
    a(f"v_mov_b32 v{S_[0]+9}, v{S_[1]+8}")
    a(f"buffer_store_dwordx2 v[{S_[0]+8}:{S_[0]+9}], v5, s[24:27], s43 offen{CFG.SS}")
    a("s_mov_b32 exec_hi, -1")
    a("s_waitcnt vmcnt(0)")
    mk.arrive(a, 4, 14); a("s_add_u32 s52, s52, s53")
    a("s_cmp_lg_u32 s36, 0"); a("s_cbranch_scc1 L_at_nopub")
    a.lgq = []
    mk.chk_issue(a, 4); mk.chk(a, "fin", 4, "s52", sleep=1)
    a("s_lshl_b32 s40, s37, 4"); a("s_and_b32 s41, s38, 12"); a("s_add_u32 s40, s40, s41"); a("s_lshl_b32 s40, s40, 7")
    a("s_and_b32 s41, s38, 3"); a("s_lshl_b32 s41, s41, 2"); a("s_add_u32 s40, s40, s41"); a(f"s_add_u32 s40, s40, {FL_REL + 32}")
    mk.flag_send(a, 12, 40, 128, 12)
    a.label("L_at_nopub")
    for i in (4, 5): stamps.stamp(a, i)
    stamps.flush(a, 0, 55); stamps.tb_flush(a, 14, 55)

def fallback(a):
    a("v_and_b32 v6, 31, v1"); a("v_lshlrev_b32 v6, 2, v6")
    M = [P_[0], P_[1]]
    for c in (0, 1): a(f"v_mov_b32 v{M[c]}, 0xff800000")
    a(f"v_mov_b32 v{K2[0]+1}, 0")
    a(f"s_mov_b32 s42, {KV_OFF}")
    a.label("L_fb1")
    a(f"buffer_load_dwordx4 v[{K1[0]}:{K1[0]+3}], v5, s[28:31], s42 offen{CFG.SL}")
    a(f"buffer_load_dword v{K2[0]}, v6, s[28:31], s42 offen offset:1024{CFG.SL}")
    a("s_waitcnt vmcnt(0)")
    for c in (0, 1):
        S = S_[c]
        a(f"v_mfma_f32_32x32x16_bf16 v[{S}:{S+15}], v[{K1[0]}:{K1[0]+3}], v[{Q1[c]}:{Q1[c]+3}], 0")
        a(f"v_mfma_f32_32x32x16_bf16 v[{S}:{S+15}], v[{K2[0]}:{K2[0]+3}], v[{Q2[c]}:{Q2[c]+3}], v[{S}:{S+15}]")
    for c in (0, 1):
        S = S_[c]
        for k in range(8): a(f"v_max3_f32 v{M[c]}, v{M[c]}, v{S+2*k}, v{S+2*k+1}")
    a(f"s_add_u32 s42, s42, {KV_PITCH}"); a(f"s_cmp_lt_u32 s42, {KV_OFF + KV_BYTES}"); a("s_cbranch_scc1 L_fb1")
    a("v_cmp_gt_u32 vcc, 32, v1")
    a("s_mov_b32 s54, 0xffff0000")
    for c in (0, 1):
        m = M[c]; t = m + 1
        a(f"v_mov_b32 v{t}, v{m}"); a(f"v_permlane32_swap_b32 v{m}, v{t}"); a(f"v_max_f32 v{m}, v{m}, v{t}")
        a(f"v_sub_f32 v{m}, 0, v{m}")
        a(f"v_and_b32 v{t}, s54, v{m}"); a(f"v_sub_f32 v{m}, v{m}, v{t}")
        a(f"v_and_b32 v{t+1}, s54, v{m}"); a(f"v_sub_f32 v{m}, v{m}, v{t+1}")
        a(f"v_lshrrev_b32 v{t}, 16, v{t}"); a(f"v_or_b32 v{t}, v{t}, v{t+1}")
        a(f"v_lshrrev_b32 v{m}, 16, v{m}")
        a(f"v_cndmask_b32 v{Q2[c]+1}, 0, v{t}, vcc"); a(f"v_cndmask_b32 v{Q2[c]+2}, 0, v{m}, vcc")
        for k in range(16): a(f"v_mov_b32 v{O_[c]+k}, 0")
    a(f"v_mov_b32 v{K2[0]+1}, 0x3f803f80"); a(f"v_mov_b32 v{K2[0]+2}, 0x3f80")
    a(f"s_mov_b32 s42, {KV_OFF}")
    a.label("L_fb2")
    a(f"buffer_load_dwordx4 v[{K1[0]}:{K1[0]+3}], v5, s[28:31], s42 offen{CFG.SL}")
    a(f"buffer_load_dword v{K2[0]}, v6, s[28:31], s42 offen offset:1024{CFG.SL}")
    a(f"buffer_load_dwordx4 v[{VA[0]}:{VA[0]+3}], v9, s[28:31], s42 offen offset:1280{CFG.SL}")
    a(f"buffer_load_dwordx4 v[{VB[0]}:{VB[0]+3}], v9, s[28:31], s42 offen offset:{1280+608}{CFG.SL}")
    a("s_waitcnt vmcnt(0)")
    for c in (0, 1):
        S = S_[c]
        a(f"v_mfma_f32_32x32x16_bf16 v[{S}:{S+15}], v[{K1[0]}:{K1[0]+3}], v[{Q1[c]}:{Q1[c]+3}], 0")
        a(f"v_mfma_f32_32x32x16_bf16 v[{S}:{S+15}], v[{K2[0]}:{K2[0]+3}], v[{Q2[c]}:{Q2[c]+3}], v[{S}:{S+15}]")
    for c in (0, 1):
        S = S_[c]; P = P_[c]; O = O_[c]
        for k in range(16): a(f"v_exp_f32 v{S+k}, v{S+k}")
        for k in range(8): a(f"v_cvt_pk_bf16_f32 v{P+k}, v{S+2*k}, v{S+2*k+1}")
        a(f"v_mfma_f32_32x32x16_bf16 v[{O}:{O+15}], v[{VA[0]}:{VA[0]+3}], v[{P}:{P+3}], v[{O}:{O+15}]")
        a(f"v_mfma_f32_32x32x16_bf16 v[{O}:{O+15}], v[{VB[0]}:{VB[0]+3}], v[{P+4}:{P+7}], v[{O}:{O+15}]")
    a("s_nop 7")
    a(f"s_add_u32 s42, s42, {KV_PITCH}"); a(f"s_cmp_lt_u32 s42, {KV_OFF + KV_BYTES}"); a("s_cbranch_scc1 L_fb2")
    a("s_nop 15")
    a.vmq = []
```

```python
from dsl import *
from layout import *
import stamps, struct
def f32(x): return struct.unpack("<I", struct.pack("<f", x))[0]
EXP = set()
import cfg as CFG

XB = 112; ACC = 48; FR = 16; NFR = 8
LB = 1024
BIAS = 4096
SLOT = 16384; R = 7; KVIMG = LB + 7 * SLOT; PF = 6
NCH = 45
RING2 = 12 * 9216; ORG2 = 73728
ACC2 = 184; BR = 112
NQ = 31; QB = 12288
PRIO = False; FILLN = 2; PH = 3
HL = 55; OL = 60
def X(t): return f"v[{XB+4*t}:{XB+4*t+3}]"
def acc(c): return f"v[{ACC+16*c}:{ACC+16*c+15}]"
def acc2(u): return f"v[{ACC2+4*u}:{ACC2+4*u+3}]"

def srd(a, d, p, nbytes, off=0):
    if off: a(f"s_add_u32 s{d}, s{p}, {off}"); a(f"s_addc_u32 s{d+1}, s{p+1}, 0")
    else: a(f"s_mov_b32 s{d}, s{p}"); a(f"s_mov_b32 s{d+1}, s{p+1}")
    a(f"s_mov_b32 s{d+2}, {nbytes}"); a(f"s_mov_b32 s{d+3}, 0x20000")

def common(a):
    a("s_cmp_ge_u32 s2, 256"); a("s_cbranch_scc1 L_end")
    a("s_load_dwordx16 s[64:79], s[0:1], 0"); a("s_load_dwordx8 s[80:87], s[0:1], 64")
    a("v_lshrrev_b32 v2, 6, v0"); a("v_and_b32 v1, 63, v0"); a("v_readfirstlane_b32 s55, v2")
    stamps.stamp(a, 0)
    a("s_and_b32 s40, s2, 7"); a("s_lshr_b32 s41, s2, 3")
    a("s_and_b32 s37, s40, 1"); a("s_lshl_b32 s37, s37, 3"); a("s_and_b32 s42, s41, 7"); a("s_add_u32 s37, s37, s42")
    a("s_lshr_b32 s38, s40, 1"); a("s_lshl_b32 s38, s38, 2"); a("s_lshr_b32 s42, s41, 3"); a("s_add_u32 s38, s38, s42")
    a("s_and_b32 s36, s55, 3"); a("s_mov_b32 s3, 0")
    a("s_lshl_b32 s39, s37, 2"); a("s_add_u32 s39, s39, s36")
    a("v_lshlrev_b32 v11, 4, v1")
    a("s_waitcnt lgkmcnt(0)")
    srd(a, 24, 86, H_BYTES, H_OFF); srd(a, 28, 86, SM_BYTES, SM_OFF); srd(a, 32, 84, 256)
    a("v_mov_b32 v0, 4")
    a("v_mov_b32 v2, 0"); a("v_mov_b32 v3, 0"); a("ds_write_b64 v2, v[2:3]"); a("ds_write_b64 v2, v[2:3] offset:8")
    stamps.tb_init(a, 12)
    a("s_cmp_ge_u32 s55, 4"); a("s_cbranch_scc1 L_at")

def atomic_inc(a, label, off_expr_sgpr, val, vt=13):
    a(f"v_mov_b32 v{vt}, {off_expr_sgpr}"); a(f"v_mov_b32 v{vt+1}, {val}")
    a("s_mov_b64 exec, 1")
    a(f"buffer_atomic_add v{vt+1}, v{vt}, s[32:35], 0 offen")
    a("s_mov_b64 exec, -1")
    a.vmq = a.vmq[:-1]

def poll_issue(a, off, tag, va=14, vv=15):
    return [f"v_mov_b32 v{va}, {off}", (f"buffer_load_dword v{vv}, v{va}, s[32:35], 0 offen{CFG.SP}", tag)]
def poll_check(a, name, tag, shift, width, target, va=14, vv=15):
    a.wait_vm(tag)
    a("s_mov_b32 s56, 0")
    a.label(f"L_{name}_chk")
    a(f"v_readfirstlane_b32 s40, v{vv}")
    a(f"s_bfe_u32 s40, s40, {shift | (width << 16):#x}")
    a(f"s_cmp_ge_u32 s40, {target}")
    a(f"s_cbranch_scc1 L_{name}_ok")
    a("s_add_u32 s56, s56, 1"); a("s_cmp_ge_u32 s56, 0x80000"); a(f"s_cbranch_scc1 L_{name}_ok")
    a("s_sleep 2")
    a(f"buffer_load_dword v{vv}, v{va}, s[32:35], 0 offen{CFG.SP}"); a.vmq = a.vmq[:-1]
    a("s_waitcnt vmcnt(0)")
    a(f"s_branch L_{name}_chk")
    a.label(f"L_{name}_ok")

def arrive(a, off, vtb=12):
    stamps.mark(a, vtb)
    a("s_mov_b64 exec, 1"); a(f"ds_add_u32 v0, v0 offset:{off}"); a("s_mov_b64 exec, -1")
def chk_issue(a, off, v=15): a(f"ds_read_b32 v{v}, v0 offset:{off}", tag="chk")
def chk(a, name, off, k, v=15, sleep=0):
    a.wait_lg("chk")
    a.label(f"L_c{name}")
    a(f"v_cmp_gt_u32 vcc, {16 * k if isinstance(k, int) else k}, v{v}")
    a(f"s_cbranch_vccz L_c{name}_ok")
    a("s_add_u32 s3, s3, 1"); a("s_cmp_ge_u32 s3, 0x400000"); a(f"s_cbranch_scc1 L_c{name}_ok")
    if sleep: a(f"s_sleep {sleep}")
    a(f"ds_read_b32 v{v}, v0 offset:{off}"); a.lgq = a.lgq[:-1]
    a("s_waitcnt lgkmcnt(0)")
    a(f"s_branch L_c{name}")
    a.label(f"L_c{name}_ok")

def flag_send(a, srd_, base_sgpr, stride, vt=13):
    a(f"v_mul_u32_u24 v{vt}, {stride}, v1"); a(f"v_mov_b32 v{vt+1}, 1")
    a("s_mov_b64 exec, 15")
    a(f"buffer_store_dword v{vt+1}, v{vt}, s[{srd_}:{srd_+3}], s{base_sgpr} offen{CFG.SS}")
    a("s_mov_b64 exec, -1")
    a.vmq = a.vmq[:-1]
def flag_issue(srd_, line_sgpr, off, tag, va=14, vv=13):
    return [f"v_and_b32 v{va}, 3, v1", f"v_lshlrev_b32 v{va}, 2, v{va}",
            (f"buffer_load_dword v{vv}, v{va}, s[{srd_}:{srd_+3}], s{line_sgpr} offen offset:{off}{CFG.SP}", tag)]
def flag_check(a, name, tag, srd_, line_sgpr, off, va=14, vv=13):
    a.wait_vm(tag)
    a.label(f"L_{name}_chk")
    a(f"v_cmp_ne_u32 vcc, 1, v{vv}")
    a("s_nop 4")
    a(f"s_cbranch_vccz L_{name}_ok")
    a("s_add_u32 s3, s3, 16"); a("s_cmp_ge_u32 s3, 0x400000"); a(f"s_cbranch_scc1 L_{name}_ok")
    a("s_sleep 1")
    a(f"buffer_load_dword v{vv}, v{va}, s[{srd_}:{srd_+3}], s{line_sgpr} offen offset:{off}{CFG.SP}"); a.vmq = a.vmq[:-1]
    a("s_waitcnt vmcnt(0)")
    a(f"s_branch L_{name}_chk")
    a.label(f"L_{name}_ok")

def gen_g(a):
    srd(a, 4, 64, S * D * 2); srd(a, 8, 66, D * D * 2);
    for d, p in ((12, 76), (16, 78)):
        a(f"s_sub_u32 s{d}, s{p}, {BIAS}"); a(f"s_subb_u32 s{d+1}, s{p+1}, 0"); a(f"s_mov_b32 s{d+2}, {D*F*2 + BIAS}"); a(f"s_mov_b32 s{d+3}, 0x20000")
    a("s_bitcmp1_b32 s38, 0"); a("s_cselect_b32 s20, s70, s68"); a("s_cselect_b32 s21, s71, s69")
    a(f"s_mov_b32 s22, {D*DH*2}"); a("s_mov_b32 s23, 0x20000")
    a("s_lshr_b32 s62, s2, 3")
    for _ in range(3): a("s_cmp_ge_u32 s62, 9"); a("s_cselect_b32 s40, 9, 0"); a("s_sub_u32 s62, s62, s40")
    if "norot" in EXP: a("s_mov_b32 s62, 0")
    a(f"s_mul_i32 s44, s39, {32*1152}")
    a("s_lshl_b32 s45, s36, 12"); a(f"s_add_u32 s45, s45, {LB}")
    a("v_lshrrev_b32 v2, 3, v1"); a("v_and_b32 v3, 7, v1"); a("v_lshrrev_b32 v4, 1, v2"); a("v_xor_b32 v3, v3, v4")
    a("v_mul_u32_u24 v5, 1152, v2"); a("v_lshl_add_u32 v12, v3, 4, v5"); a("v_xor_b32 v13, 64, v12")
    a("s_cmp_ge_u32 s38, 2"); a("s_cbranch_scc1 L_g_nokvdma")
    a("v_lshrrev_b32 v3, 2, v1"); a("v_mul_u32_u24 v3, 36, v3"); a("v_and_b32 v4, 3, v1"); a("v_lshl_add_u32 v14, v4, 4, v3")
    a(f"s_mul_i32 s40, s36, {9*1024}"); a(f"s_add_u32 s40, s40, {KVIMG}")
    a("s_mul_i32 s41, s36, 9"); a("s_lshl_b32 s42, s62, 2"); a("s_add_u32 s41, s41, s42")
    for t in range(9):
        a(f"s_add_u32 s42, s41, {t}"); a("s_cmp_ge_u32 s42, 36"); a("s_cselect_b32 s43, 36, 0"); a("s_sub_u32 s42, s42, s43"); a("s_mul_i32 s42, s42, 576")
        a(f"s_add_u32 m0, s40, {t*1024}")
        a("buffer_load_dwordx4 v14, s[20:23], s42 offen lds")
    a.label("L_g_nokvdma")
    a.vmq = []
    for c in range(9):
        a(f"s_add_u32 s{64+c}, s62, {c}"); a(f"s_cmp_ge_u32 s{64+c}, 9"); a("s_cselect_b32 s40, 9, 0"); a(f"s_sub_u32 s{64+c}, s{64+c}, s40")
    def xdma(c, slot):
        a(f"s_lshl_b32 s43, s{64+c}, 7"); a("s_add_u32 s43, s43, s44")
        for i in range(4):
            a(f"s_add_u32 m0, s45, {slot*SLOT + i*1024}")
            a(f"s_add_u32 s42, s43, {8*i*1152}")
            a(f"buffer_load_dwordx4 v{12 + (i&1)}, s[4:7], s42 offen lds", tag=f"x{c}")
    for c in range(7): xdma(c, c)
    a(f"s_mul_i32 s46, s36, {16*9216}"); a("s_mul_i32 s40, s38, 576"); a("s_add_u32 s46, s46, s40")
    a("s_and_b32 s40, s38, 1")
    a("s_lshl_b32 s41, s40, 6"); a("s_add_u32 s47, s46, s41")
    a("s_xor_b32 s41, s40, 1"); a("s_lshl_b32 s41, s41, 9"); a("s_add_u32 s48, s46, s41"); a(f"s_add_u32 s48, s48, {BIAS}")
    a(f"s_mul_i32 s49, s36, {16*1152}"); a("s_mul_i32 s41, s38, 72"); a("s_add_u32 s49, s49, s41")
    a(f"s_mul_i32 s51, s39, {NSTEP*1024}")
    a(f"s_mul_i32 s41, s38, {18*1024}"); a("s_add_u32 s50, s51, s41")
    a("s_mov_b32 s53, 0x3f803f80"); a("s_mov_b32 s54, 0xffff0000")
    a("v_and_b32 v2, 31, v1"); a("v_lshrrev_b32 v3, 5, v1"); a("v_bfe_u32 v4, v1, 1, 3"); a("v_xor_b32 v3, v3, v4")
    a("v_lshlrev_b32 v2, 7, v2"); a("v_lshl_add_u32 v2, v3, 4, v2"); a("v_add_u32 v2, s45, v2")
    a("v_xor_b32 v3, 32, v2"); a("v_xor_b32 v4, 64, v2"); a("v_xor_b32 v5, 96, v2")
    for k in range(4): a(f"v_add_u32 v{6+k}, {4*SLOT}, v{2+k}")
    st = ACC
    for k in range(4): a(f"v_mov_b32 v{st+k}, 0")
    def stats(c):
        for t in range(4*c, 4*c+4):
            for k in range(4):
                r = XB + 4*t + k
                a(f"v_dot2c_f32_bf16 v{st + (k&1)}, s53, v{r}")
                a(f"v_dot2c_f32_bf16 v{st + 2 + (k&1)}, v{r}, v{r}")
    for c in range(9):
        slot = c if c < 7 else c - 7
        a.wait_vm(f"x{c}")
        for tt in range(4):
            if slot < 4: a(f"ds_read_b128 {X(4*c+tt)}, v{2+tt} offset:{slot*SLOT}", tag=f"xr{c}")
            else: a(f"ds_read_b128 {X(4*c+tt)}, v{6+tt} offset:{(slot-4)*SLOT}", tag=f"xr{c}")
        if c < 2:
            a.wait_lg(f"xr{c}"); xdma(7 + c, c)
        if c > 0:
            a.wait_lg(f"xr{c-1}"); stats(c - 1)
    a("v_lshrrev_b32 v14, 3, v1"); a("v_bfe_u32 v15, v1, 1, 2"); a("v_and_b32 v13, 1, v1"); a("v_lshlrev_b32 v13, 4, v13")
    a.wait_lg0()
    stamps.stamp(a, 1)
    a("s_barrier"); nbar = 1
    a("v_and_b32 v5, 2, v14"); a("v_xor_b32 v5, v15, v5")
    a("v_lshrrev_b32 v4, 1, v5"); a("v_mul_u32_u24 v4, 36, v4"); a("v_and_b32 v5, 1, v5"); a("v_lshl_add_u32 v4, v5, 5, v4")
    a("v_mul_u32_u24 v5, 1152, v14"); a("v_add3_u32 v6, v5, v4, v13")
    a("v_lshrrev_b32 v2, 2, v1"); a("v_mul_u32_u24 v2, 9216, v2"); a("v_and_b32 v3, 3, v1"); a("v_lshl_add_u32 v7, v3, 4, v2"); a("v_xor_b32 v8, 32, v7")
    a("v_bfe_u32 v5, v14, 1, 1"); a("v_xor_b32 v5, v15, v5"); a("v_lshl_add_u32 v5, v5, 5, v13")
    a("v_mul_u32_u24 v4, 9216, v14"); a("v_add_u32 v9, v4, v5"); a(f"v_add_u32 v9, {BIAS}, v9"); a(f"v_add_u32 v10, {8*9216 - 1024}, v9")
    for c in range(9): a(f"s_mul_i32 s{64+c}, s{64+c}, {64*9216}")

    def wdma(g):
        p, c = divmod(g, 9); slot = g % R
        out = []
        for i in range(4):
            pre = []
            if p == 0:
                if i < 2:
                    pre = [f"s_lshr_b32 s43, s{64+c}, 3", f"s_add_u32 s43, s43, s49"] if i == 0 else []
                    const, v, srd_ = 8*i*1152, 6, 8
                else:
                    pre = [f"s_add_u32 s43, s{64+c}, s48"] if i == 2 else []
                    const, v, srd_ = 0, (7 if i == 2 else 8), (12 if i == 2 else 16)
            else:
                pre = []
                if i == 0:
                    if g == 9: pre = ["v_xor_b32 v7, 64, v9", "v_subrev_u32 v7, 2048, v7", f"v_add_u32 v8, {8*9216 - 1024}, v7"]
                    pre += [f"s_add_u32 m0, s45, {slot*SLOT}", f"s_add_u32 s43, s{64+c}, s47"]
                    if c == 8: pre.append("s_add_u32 s47, s47, 128")
                v, srd_ = (9, 10, 7, 8)[i], (12 if i < 2 else 16)
                out.append(pre + [(f"buffer_load_dwordx4 v{v}, s[{srd_}:{srd_+3}], s43 offen offset:{i*1024} lds", f"w{g}")])
                continue
            out.append(pre + [f"s_add_u32 m0, s45, {slot*SLOT + i*1024}", f"s_add_u32 s42, s43, {const}",
                        (f"buffer_load_dwordx4 v{v}, s[{srd_}:{srd_+3}], s42 offen lds", f"w{g}")])
        return out
    def emit_group(grp):
        for x in grp:
            if isinstance(x, tuple): a(x[0], tag=x[1])
            elif callable(x): x()
            else: a(x)
    pre_dma = sum((wdma(g) for g in range(R)), [])
    for _ in range(4): emit_group(pre_dma.pop(0))
    stats(8)
    a("s_nop 2")
    a(f"v_add_f32 v{st}, v{st}, v{st+1}"); a(f"v_add_f32 v{st+2}, v{st+2}, v{st+3}")
    a(f"v_mov_b32 v{st+1}, v{st}"); a(f"v_mov_b32 v{st+3}, v{st+2}")
    a(f"v_permlane32_swap_b32 v{st}, v{st+1}"); a(f"v_permlane32_swap_b32 v{st+2}, v{st+3}")
    a(f"v_add_f32 v{st}, v{st}, v{st+1}"); a(f"v_add_f32 v{st+2}, v{st+2}, v{st+3}")
    a(f"v_mul_f32 v{st}, {f32(1.0/576):#x}, v{st}"); a(f"v_mul_f32 v{st+2}, {f32(1.0/576):#x}, v{st+2}")
    a(f"v_fma_f32 v{st+2}, -v{st}, v{st}, v{st+2}"); a(f"v_max_f32 v{st+2}, 0, v{st+2}"); a(f"v_add_f32 v{st+2}, {f32(1e-5):#x}, v{st+2}")
    a(f"v_rsq_f32 v{st+2}, v{st+2}")
    a(f"v_mul_f32 v{st+4}, v{st}, v{st+2}"); a(f"v_sub_f32 v{st+4}, 0, v{st+4}")
    a(f"v_mov_b32 v{st+3}, v{st+2}"); a(f"v_mov_b32 v{st+5}, v{st+4}")
    T = ACC + 8
    for r0 in range(0, 144, 4):
        for k in range(4):
            r = XB + r0 + k; t = T + 2*k
            a(f"v_lshlrev_b32 v{t}, 16, v{r}"); a(f"v_and_b32 v{t+1}, s54, v{r}")
        if pre_dma: emit_group(pre_dma.pop(0))
        for k in range(4):
            t = T + 2*k
            a(f"v_pk_fma_f32 v[{t}:{t+1}], v[{t}:{t+1}], v[{st+2}:{st+3}], v[{st+4}:{st+5}]")
        for k in range(4):
            r = XB + r0 + k; t = T + 2*k
            a(f"v_cvt_pk_bf16_f32 v{r}, v{t}, v{t+1}")
    assert not pre_dma
    stamps.stamp(a, 2)
    a("s_mov_b32 s60, -1"); a("s_mov_b32 s61, 0")
    a("s_cmp_ge_u32 s38, 2"); a("s_cbranch_scc1 L_g_nokv")
    a("v_lshrrev_b32 v2, 5, v1"); a("v_lshlrev_b32 v2, 3, v2"); a("v_bfe_u32 v3, v1, 2, 2"); a("v_add_u32 v2, v2, v3"); a("v_lshlrev_b32 v2, 6, v2")
    a("v_bfe_u32 v3, v1, 4, 1"); a("v_lshl_add_u32 v2, v3, 5, v2"); a("v_and_b32 v3, 3, v1"); a("v_lshl_add_u32 v2, v3, 3, v2")
    a(f"v_add_u32 v2, {KVIMG}, v2")
    a(f"s_mul_i32 s43, s39, {KV_PITCH}"); a(f"s_add_u32 s43, s43, {KV_OFF}")
    saved_vmq = list(a.vmq)
    def kvpass(isV):
        def rd(t):
            b = FR + 4 * (t % NFR)
            a(f"ds_read_b64_tr_b16 v[{b}:{b+1}], v2 offset:{t*1024}", tag=f"kv{t}")
            a(f"ds_read_b64_tr_b16 v[{b+2}:{b+3}], v2 offset:{t*1024+256}", tag=f"kv{t}")
        for t in range(PF): rd(t)
        for t in range(36):
            b = FR + 4 * (t % NFR)
            a.wait_lg(f"kv{t}")
            cc = "0" if t == 0 else acc(0)
            if isV: a(f"v_mfma_f32_32x32x16_bf16 {acc(0)}, {X(t)}, v[{b}:{b+3}], {cc}")
            else: a(f"v_mfma_f32_32x32x16_bf16 {acc(0)}, v[{b}:{b+3}], {X(t)}, {cc}")
            if t + PF < 36: rd(t + PF)
    a("s_cmp_eq_u32 s38, 1"); a("s_cbranch_scc1 L_g_v")
    kvpass(False)
    B = ACC; T = ACC + 16
    for k in range(5): a(f"v_cvt_pk_bf16_f32 v{T+k}, v{B+2*k}, v{B+2*k+1}")
    a(f"buffer_store_dwordx4 v[{T}:{T+3}], v11, s[28:31], s43 offen{CFG.SS}")
    a(f"v_lshlrev_b32 v3, 2, v1")
    a(f"buffer_store_dword v{T+4}, v3, s[28:31], s43 offen offset:1024{CFG.SS}")
    a(f"v_mul_f32 v{T+8}, v{B+8}, v{B+8}"); a(f"v_fmac_f32 v{T+8}, v{B+9}, v{B+9}"); a(f"v_cndmask_b32 v{T+8}, 0, v{T+8}, s[60:61]")
    for k in range(8): a(f"v_fmac_f32 v{T+8}, v{B+k}, v{B+k}")
    a(f"v_mov_b32 v{T+9}, v{T+8}"); a(f"v_permlane32_swap_b32 v{T+8}, v{T+9}"); a(f"v_add_f32 v{T+8}, v{T+8}, v{T+9}")
    for off in (0x041F, 0x081F, 0x101F, 0x201F, 0x401F):
        a(f"ds_swizzle_b32 v{T+9}, v{T+8} offset:{off:#x}"); a.wait_lg0(); a(f"v_max_f32 v{T+8}, v{T+8}, v{T+9}")
    a(f"s_lshl_b32 s42, s39, 2"); a(f"s_add_u32 s42, s42, {KMAX_OFF}")
    a("v_mov_b32 v3, 0")
    a(f"buffer_store_dword v{T+8}, v3, s[28:31], s42 offen{CFG.SS}")
    a("s_branch L_g_kvdone")
    a.label("L_g_v")
    a.lgq = []
    kvpass(True)
    for k in range(8): a(f"v_cvt_pk_bf16_f32 v{T+k}, v{B+2*k}, v{B+2*k+1}")
    a("v_and_b32 v3, 31, v1"); a("v_cmp_eq_u32 vcc, 18, v3"); a("v_mov_b32 v4, s53")
    for k in range(8): a(f"v_cndmask_b32 v{T+k}, v{T+k}, v4, vcc")
    a("v_lshrrev_b32 v4, 5, v1"); a("v_mul_u32_u24 v4, 304, v4"); a("v_lshl_add_u32 v4, v3, 4, v4")
    a("v_cmp_gt_u32 vcc, 19, v3")
    a("s_and_saveexec_b64 s[56:57], vcc")
    a(f"buffer_store_dwordx4 v[{T}:{T+3}], v4, s[28:31], s43 offen offset:1280{CFG.SS}")
    a(f"buffer_store_dwordx4 v[{T+4}:{T+7}], v4, s[28:31], s43 offen offset:{1280+608}{CFG.SS}")
    a("s_mov_b64 exec, s[56:57]")
    a.label("L_g_kvdone")
    a("s_waitcnt vmcnt(0)")
    a.label("L_g_nokv")
    a("s_nop 7"); a("s_nop 7")
    a.vmq = saved_vmq; a.lgq = []
    def tr_addrs(p):
        if p == 0:
            return ["v_lshrrev_b32 v13, 5, v1", "v_lshlrev_b32 v2, 10, v13", "v_bfe_u32 v14, v1, 2, 2", "v_lshl_add_u32 v2, v14, 7, v2",
                    "v_and_b32 v15, 2, v14", "v_bfe_u32 v3, v1, 4, 1", "v_xor_b32 v15, v15, v3", "v_lshl_add_u32 v2, v15, 5, v2",
                    "v_and_b32 v15, 3, v1", "v_lshl_add_u32 v2, v15, 3, v2", f"v_add_u32 v2, {LB}, v2", "v_xor_b32 v3, 64, v2",
                    "v_lshl_add_u32 v4, v13, 3, v14", "v_lshlrev_b32 v4, 6, v4", "v_bfe_u32 v13, v1, 4, 1", "v_mul_u32_u24 v13, 1056, v13",
                    "v_add_u32 v4, v4, v13", f"v_add_u32 v4, {2048+LB}, v4", "v_lshl_add_u32 v4, v15, 3, v4", "v_xor_b32 v5, 32, v4"]
        return ["v_bfe_u32 v13, v1, 4, 1", "v_lshrrev_b32 v14, 5, v1", "v_lshl_add_u32 v14, v13, 1, v14", "v_lshlrev_b32 v2, 10, v14",
                "v_bfe_u32 v14, v1, 2, 2", "v_lshl_add_u32 v2, v14, 7, v2", "v_lshrrev_b32 v14, 1, v14", "v_lshl_add_u32 v14, v13, 1, v14",
                "v_lshl_add_u32 v2, v14, 5, v2", "v_and_b32 v14, 3, v1", "v_lshl_add_u32 v2, v14, 3, v2", f"v_add_u32 v2, {LB}, v2",
                "v_xor_b32 v3, 32, v2", "v_xor_b32 v4, 64, v2", "v_xor_b32 v5, 96, v2"]
    for x in tr_addrs(0): a(x)
    a.wait_vm(["w0", "w1"])
    a("s_barrier"); nbar += 1
    stamps.stamp(a, 3)
    a("s_cmp_ge_u32 s38, 2"); a("s_cbranch_scc1 L_g_nopub"); a("s_cmp_lg_u32 s36, 0"); a("s_cbranch_scc1 L_g_nopub")
    atomic_inc(a, "kv", "0", 4096)
    a.label("L_g_nopub")

    order = [(s, t) for t in range(4) for s in range(4)]
    frs = [("a", g, s, t) for g in range(NCH) for (s, t) in order] + [("b", pos, nt, 0) for pos in range(41) for nt in range(9)]
    N1 = NCH * 16
    state = {"slot": 0, "pass": 0}
    def rd(n):
        kind, g, s, t = frs[n]
        b = FR + 4 * (n % NFR)
        if kind == "b":
            j = (g + 8) % 12
            if j < 6: a(f"ds_read_b128 v[{b}:{b+3}], v11 offset:{LB + j*9216 + s*1024}", tag=f"f{n}")
            else: a(f"ds_read_b128 v[{b}:{b+3}], v6 offset:{LB + (j-6)*9216 + s*1024}", tag=f"f{n}")
            return
        p = g // 9; slot = g % R
        if p == 1 and state["pass"] == 0:
            for x in tr_addrs(1): a(x)
            state["slot"] = 0
        state["pass"] = p
        hi = 4 if slot >= 4 else 0
        if hi != state["slot"]:
            for k in range(4):
                if hi: a(f"v_add_u32 v{2+k}, {4*SLOT}, v{2+k}")
                else: a(f"v_subrev_u32 v{2+k}, {4*SLOT}, v{2+k}")
            state["slot"] = hi
        jj = 256 if (p == 0 and t >= 2) else 512
        o = (slot - hi) * SLOT + s * 4096
        a(f"ds_read_b64_tr_b16 v[{b}:{b+1}], v{2+t} offset:{o}", tag=f"f{n}")
        a(f"ds_read_b64_tr_b16 v[{b+2}:{b+3}], v{2+t} offset:{o+jj}", tag=f"f{n}")
    fill = []
    def gu_epi(t, pi, p):
        B = ACC + 16*t
        L = []
        for i in range(8): L.append(f"v_max_f32 v{B+i}, 0, v{B+i}")
        for i in range(8): L.append(f"v_mul_f32 v{B+i}, v{B+i}, v{B+8+i}")
        for k in range(4): L.append(f"v_cvt_pk_bf16_f32 v{B+8+k}, v{B+2*k}, v{B+2*k+1}")
        L.append(f"s_add_u32 s52, s50, {pi*1024}")
        L.append((f"buffer_store_dwordx4 v[{B+8}:{B+11}], v11, s[24:27], s52 offen{CFG.SS}", f"hst{p}"))
        return L
    def q_epi(t):
        B = ACC + 16*t
        L = []
        for i in range(10): L.append(f"v_mul_f32 v{B+i}, {f32(QSCALE):#x}, v{B+i}")
        n = B + 10
        L += [f"v_mul_f32 v{n}, v{B+8}, v{B+8}", f"v_fmac_f32 v{n}, v{B+9}, v{B+9}", f"v_cndmask_b32 v{n}, 0, v{n}, s[60:61]"]
        for k in range(8): L.append(f"v_fmac_f32 v{n}, v{B+k}, v{B+k}")
        L += [f"v_mov_b32 v{n+1}, v{n}", f"v_permlane32_swap_b32 v{n}, v{n+1}", f"v_add_f32 v{n}, v{n}, v{n+1}",
              f"v_sqrt_f32 v{n}, v{n}", f"v_mul_f32 v{n}, {f32(-(1+1/64.)):#x}, v{n}",
              f"v_cndmask_b32 v{n}, 0, v{n}, s[60:61]", f"v_cndmask_b32 v{B+8}, 0, v{B+8}, s[60:61]", f"v_cndmask_b32 v{B+9}, 0, v{B+9}, s[60:61]", f"v_mov_b32 v{n+1}, 0"]
        for k in range(4): L.append(f"v_cvt_pk_bf16_f32 v{B+12+k}, v{B+2*k}, v{B+2*k+1}")
        L += [f"v_cvt_pk_bf16_f32 v{B}, v{B+8}, v{B+9}", f"v_cvt_pk_bf16_f32 v{B+1}, v{n}, v{n+1}"]
        L += [f"s_lshl_b32 s52, s39, 5", f"s_lshl_b32 s40, s38, 1", f"s_add_u32 s52, s52, s40", f"s_add_u32 s52, s52, {t}",
              f"s_mul_i32 s52, s52, {Q_PITCH}", f"s_add_u32 s52, s52, {Q_OFF}",
              (f"buffer_store_dwordx4 v[{B+12}:{B+15}], v11, s[28:31], s52 offen", "qst"),
              f"v_lshlrev_b32 v{B+2}, 3, v1",
              (f"buffer_store_dwordx2 v[{B}:{B+1}], v{B+2}, s[28:31], s52 offen offset:1024", "qst")]
        return L
    def emit_fill(nmax, upto_tile=None):
        k = 0
        while fill and (k < nmax or (upto_tile is not None and any(f[0] == upto_tile for f in fill))):
            L = fill[0][2]
            x = L.pop(0)
            if isinstance(x, tuple): a(x[0], tag=x[1])
            else: a(x)
            if not L: fill.pop(0)
            k += 1
    def g2_setup():
        L = []
        A = L.append
        A("s_lshr_b32 s73, s38, 2"); A("s_and_b32 s74, s38, 3")
        A(f"s_add_u32 s8, s86, {PK_OFF}"); A("s_addc_u32 s9, s87, 0"); A(f"s_mov_b32 s10, {PK_BYTES}"); A("s_mov_b32 s11, 0x20000")
        A("s_mov_b32 s20, s82"); A("s_mov_b32 s21, s83"); A(f"s_mov_b32 s22, {S*D*2}"); A("s_mov_b32 s23, 0x20000")
        A(f"s_add_u32 s28, s86, {PART_OFF}"); A("s_addc_u32 s29, s87, 0"); A(f"s_mov_b32 s30, {PART_BYTES}"); A("s_mov_b32 s31, 0x20000")
        A("s_mul_i32 s63, s36, 3072")
        A(f"s_mul_i32 s75, s38, {PK_STREAM}"); A("s_add_u32 s75, s75, s63")
        for k in range(4):
            A(f"s_add_u32 s40, s74, {k}"); A("s_and_b32 s40, s40, 3"); A("s_lshl_b32 s41, s73, 2"); A("s_add_u32 s40, s40, s41")
            A(f"s_mul_i32 s40, s40, {18*1024}"); A(f"s_add_u32 s{76+k}, s40, s51")
        A("s_lshl_b32 s40, s73, 13"); A("s_add_u32 s40, s40, s51"); A(f"s_add_u32 s48, s40, {288*1024}")
        A("s_lshl_b32 s40, s73, 10"); A("s_add_u32 s40, s40, s51"); A(f"s_add_u32 s49, s40, {320*1024}")
        A("s_lshl_b32 s40, s37, 4"); A("s_add_u32 s41, s40, s38"); A("s_lshl_b32 s41, s41, 7"); A(f"s_add_u32 s44, s41, {FL_REL}")
        A("s_and_b32 s41, s38, 12"); A("s_add_u32 s41, s41, s40"); A("s_lshl_b32 s41, s41, 7"); A("s_lshl_b32 s46, s74, 2")
        A("s_add_u32 s41, s41, s46"); A(f"s_add_u32 s46, s41, {FL_REL}")
        A("s_add_u32 s41, s40, s74"); A("s_lshl_b32 s41, s41, 7"); A("s_lshl_b32 s62, s73, 2")
        A("s_add_u32 s41, s41, s62"); A(f"s_add_u32 s62, s41, {FL_REL + 48}")
        L2 = L; L = []; A = L.append
        A("v_add_u32 v6, 55296, v11")
        A("v_lshrrev_b32 v13, 4, v1"); A("v_lshrrev_b32 v8, 1, v13"); A("v_and_b32 v13, 1, v13"); A("v_lshlrev_b32 v7, 10, v8"); A("v_lshl_add_u32 v7, v13, 9, v7")
        A("v_and_b32 v13, 15, v1"); A("v_lshl_add_u32 v7, v13, 4, v7")
        A("v_lshlrev_b32 v8, 30, v8"); A("v_add_u32 v8, v8, v7")
        st2["vsetup"] = [L[:4], L[4:]]
        groups = []; cur = []
        for x in L2:
            if len(cur) >= 4 and not x.startswith("s_addc"): groups.append(cur); cur = []
            cur.append(x)
        return groups + [cur]
    def quad(k):
        return [f"s_add_u32 m0, s63, {LB + (ORG2 + QB*k) % RING2}", f"s_add_u32 s42, s75, {QB*k}"] + \
               [(f"buffer_load_dwordx4 v11, s[8:11], s42 offen offset:{j*1024}{CFG.SL} lds", f"q{k}") for j in range(3)]
    def bload(pos):
        if pos < 28: pre = f"s_add_u32 s42, s{76 + pos//7}, {(pos%7)*2048}"
        elif pos < 36: pre = f"s_add_u32 s42, s{76 + (pos-28)//2}, {(7 + (pos-28)%2)*2048}"
        elif pos < 40: pre = f"s_add_u32 s42, s48, {(pos-36)*2048}"
        else: pre = "s_mov_b32 s42, s49"
        b = BR + 8 * (pos % 8); v = 8 if pos == 40 else 7
        return [pre, (f"buffer_load_dwordx4 v[{b}:{b+3}], v{v}, s[24:27], s42 offen{CFG.SL}", f"b{pos}"),
                (f"buffer_load_dwordx4 v[{b+4}:{b+7}], v{v}, s[24:27], s42 offen offset:256{CFG.SL}", f"b{pos}")]
    def quads_for_step(s_): return min(NQ - 1, ((s_ + 1) * 9216 + QB - 1) // QB - 1)
    side = []
    st2 = {"q": 0, "b": 0, "landed": -1}
    def push_quads(upto):
        while st2["q"] <= min(upto, NQ - 1): side.append(quad(st2["q"])); st2["q"] += 1
    def push_b(upto):
        while st2["b"] <= min(upto, 40): side.append(bload(st2["b"])); st2["b"] += 1
    def flush_side():
        while side: emit_group(side.pop(0))
    def land(kq):
        kq = min(kq, st2["q"] - 1 - sum(1 for g in side if isinstance(g[-1], tuple) and g[-1][1].startswith("q")))
        if kq < 0: return
        a.wait_vm([f"q{k}" for k in range(kq + 1)])
        s_ = -1
        while s_ + 1 <= 40 and quads_for_step(s_ + 1) <= kq: s_ += 1
        st2["landed_next"] = s_
    nissued = 0
    lim = {"a": 1}
    def issue_reads(upto):
        nonlocal nissued
        while nissued < min(upto, len(frs)):
            kind, g, s, t = frs[nissued]
            if kind == "b" and g > st2["landed"]: break
            if kind == "a" and g > lim["a"]: break
            rd(nissued); nissued += 1
    def setprio(v):
        if state.get("prio", 0) != v: a(f"s_setprio {v}"); state["prio"] = v
    def wait_frag(n):
        if f"f{n}" in a.lgq: a.wait_lg([f"f{n}", f"f{n+1}"])
    def do_arrive(I):
        flush_side()
        if I + 2 < NCH: a.wait_vm(f"w{I+2}")
        if I == 9: a.wait_vm("qst")
        if I == 38: a.wait_vm("hst3")
        if I == 48: assert not fill; a.wait_vm("hst4")
        if I >= 43:
            sl = min(2 * (I - 43) + 1, 40)
            kq = quads_for_step(sl)
            assert kq < st2["q"], (I, kq, st2)
            a.wait_vm([f"q{k}" for k in range(kq + 1)])
            st2["pend"][I] = sl
        arrive(a, 0)
    st2["pend"] = {}
    def do_check(I):
        chk(a, f"g{I}", 0, I)
        lim["a"] = I + 1
        if I - 1 in st2["pend"]: st2["landed"] = st2["pend"][I - 1]
        if I - 1 + R < NCH: side.extend(wdma(I - 1 + R))
        if I == 20: side.extend(g2_setup())
        if I == 36: side.append(poll_issue(a, 128, "pkp", 14, 13))
        if I == 39:
            poll_check(a, "pk", "pkp", 12, 20, 256, 14, 13)
            for grp in st2["vsetup"]: emit_group(grp)
        if I == 40: push_b(2)
        if I == 41: push_quads(1); push_b(4)
        if I == 42: push_quads(2); push_b(6)
        if I == 43: push_quads(3)
        if I == 44: push_quads(4)
        if I == 45: push_quads(8)
        if I >= 46: push_quads((2 * (I - 45) * 9216 + RING2) // QB - 1)
        if I in (39, 49):
            a("s_cmp_lg_u32 s36, 0"); a(f"s_cbranch_scc1 L_g_nohp{I}")
            if I == 49: a("s_add_u32 s46, s46, 16")
            flag_send(a, 8, 46, 128); a.label(f"L_g_nohp{I}")
        if I == 42: side.append(flag_issue(8, 44, 0, "hp"))
        if I == 44: flag_check(a, "h", "hp", 8, 44, 0); st2["bcap"] = 27
        if I == HL - 1: side.append(flag_issue(8, 44, 16, "hl"))
        if I == HL: flag_check(a, "hl", "hl", 8, 44, 16); st2["bcap"] = 35
        if I == OL - 1: side.append(flag_issue(8, 44, 32, "op"))
        if I == OL: flag_check(a, "o", "op", 8, 44, 32); st2["bcap"] = 40
    st2["bcap"] = 6
    issue_reads(PF)
    for n, (kind, g, s, t) in enumerate(frs):
        b = FR + 4 * (n % NFR)
        if kind == "a":
            p, c = divmod(g, 9)
            first = (c == 0 and s == 0)
            if first: emit_fill(0, upto_tile=t)
            wait_frag(n)
            setprio(2 if (g >= 11 and (fill or (PH and n % PH == 0))) else 0)
            a(f"v_mfma_f32_32x32x16_bf16 {acc(t)}, v[{b}:{b+3}], {X(4*c+s)}, {'0' if first else acc(t)}")
            if not fill: setprio(0)
            if n % 16 == 6 and g > 0: chk_issue(a, 0)
            if n % 16 == 9 and g > 0: do_check(g)
            issue_reads(n + 1 + PF)
            if side: emit_group(side.pop(0))
            for f in fill: f[1] -= 1
            if fill and fill[0][1] <= 0: emit_fill(FILLN if p else 5)
            if c == 8 and s == 3:
                L = q_epi(t) if (p == 0 and t < 2) else gu_epi(t, (t - 2) if p == 0 else 2 + 4*(p-1) + t, p)
                fill.append([t, 1, L])
            if n % 16 == 15:
                do_arrive(g)
                if g == 8: stamps.stamp(a, 4)
        else:
            pos, nt = g, s
            I = NCH + pos // 2; m = (pos % 2) * 9 + nt
            if nt == 0:
                if pos == 0: stamps.stamp(a, 5)
                assert st2["b"] > pos, pos
                if any(isinstance(x[-1], tuple) and x[-1][1] == f"b{pos}" for x in side): flush_side()
                a.wait_vm(f"b{pos}")
            assert nissued > n, (pos, nt, st2)
            wait_frag(n)
            setprio(2 if (fill or (PH and n % PH == 0)) else 0)
            for rh in range(2):
                bb = BR + 8 * (pos % 8) + 4 * rh
                u = rh * 9 + nt
                a(f"v_mfma_f32_16x16x32_bf16 {acc2(u)}, v[{b}:{b+3}], v[{bb}:{bb+3}], {'0' if pos == 0 else acc2(u)}")
                if rh == 0:
                    if m == 8 and pos < 40: chk_issue(a, 0)
                    if m == 11: do_check(I)
                    issue_reads(n + 1 + PF)
                else:
                    if not fill: setprio(0)
                    if fill: emit_fill(4)
                    elif side: emit_group(side.pop(0))
            if nt == 8:
                if pos % 2 == 1 and pos < 39: do_arrive(I)
                push_b(min(pos + 8, st2["bcap"]))
    flush_side()
    finish(a)
    return nbar

def finish(a):
    a("s_nop 7")
    a("s_waitcnt vmcnt(0) lgkmcnt(0)"); a.vmq = []; a.lgq = []
    a("s_barrier")
    a("s_lshl_b32 s40, s37, 2"); a("s_add_u32 s40, s40, s73"); a(f"s_mul_i32 s47, s40, {32*1152}"); a("s_mul_i32 s41, s74, 288"); a("s_add_u32 s47, s47, s41")
    a("v_and_b32 v3, 15, v1"); a("v_mul_u32_u24 v3, 1152, v3"); a("v_lshrrev_b32 v4, 4, v1"); a("v_lshl_add_u32 v5, v4, 3, v3")
    XR = 16
    for k in range(3):
        for e in range(2):
            d = 64 + 2*k + e
            a(f"s_lshl_b32 s40, s36, 1"); a(f"s_add_u32 s40, s40, {8*k+e}")
            a("s_cmp_ge_u32 s40, 9"); a("s_cselect_b32 s41, 9, 0"); a(f"s_cselect_b32 s42, {16*1152}, 0")
            a("s_sub_u32 s41, s40, s41"); a("s_lshl_b32 s41, s41, 5"); a("s_add_u32 s41, s41, s42"); a(f"s_add_u32 s{d}, s41, s47")
            a(f"buffer_load_dwordx2 v[{XR+4*k+2*e}:{XR+4*k+2*e+1}], v5, s[4:7], s{d} offen")
    a("s_lshl_b32 s40, s37, 2"); a("s_add_u32 s40, s40, s74"); a(f"s_mul_i32 s70, s40, {16*9216}")
    a("s_cmp_eq_u32 s36, s73"); a("s_cbranch_scc1 L_g_own")
    a(f"s_lshl_b32 s41, s73, 2"); a("s_add_u32 s41, s41, s36"); a("s_mul_i32 s41, s41, 9216"); a("s_add_u32 s41, s41, s70")
    for r in range(9):
        T = 48 + 4 * (r % 4)
        for k in range(4): a(f"v_cvt_pk_bf16_f32 v{T+k}, v{ACC2+8*r+2*k}, v{ACC2+8*r+2*k+1}")
        a(f"s_add_u32 s42, s41, {r*1024}")
        a(f"buffer_store_dwordx4 v[{T}:{T+3}], v11, s[28:31], s42 offen{CFG.SS}")
    a("s_branch L_g_st")
    a.label("L_g_own")
    for u in range(18): a(f"ds_write_b128 v11, {acc2(u)} offset:{LB + u*1024}")
    a.label("L_g_st")
    a("s_waitcnt vmcnt(0) lgkmcnt(0)"); a.vmq = []; a.lgq = []
    a("s_barrier")
    a("s_cmp_lg_u32 s36, 0"); a("s_cbranch_scc1 L_g_nored"); flag_send(a, 8, 62, 512); a.label("L_g_nored")
    OW = 64
    a("s_lshl_b32 s40, s36, 11"); a("v_add_u32 v6, s40, v11")
    for k in range(3):
        for e in range(2): a(f"ds_read_b128 v[{OW+8*k+4*e}:{OW+8*k+4*e+3}], v6 offset:{LB + k*8192+e*1024}")
    for x in flag_issue(8, 44, 48, "rp"):
        a(x[0], tag=x[1]) if isinstance(x, tuple) else a(x)
    flag_check(a, "r", "rp", 8, 44, 48)
    G = 96
    a("s_mul_i32 s41, s73, 9216"); a("s_add_u32 s41, s41, s70"); a("s_lshl_b32 s42, s36, 10"); a("s_add_u32 s41, s41, s42")
    for j in range(3):
        a(f"s_add_u32 s40, s73, {j+1}"); a("s_and_b32 s40, s40, 3"); a(f"s_mul_i32 s40, s40, {4*9216}"); a(f"s_add_u32 s{71+j if j < 2 else 43}, s40, s41")
    sj = [71, 72, 43]
    def loads(k):
        for j in range(3):
            r = G + 12*k + 4*j
            a(f"s_add_u32 s42, s{sj[j]}, {k*4096}")
            a(f"buffer_load_dwordx4 v[{r}:{r+3}], v11, s[28:31], s42 offen{CFG.SL}", tag=f"g{k}")
    def fin(k):
        a.wait_vm(f"g{k}")
        o = OW + 8*k; T = 140
        srcs = [G + 12*k + 4*j for j in range(3)] + [XR + 4*k]
        for r in srcs:
            for q in range(4):
                a(f"v_lshlrev_b32 v{T+2*q}, 16, v{r+q}"); a(f"v_and_b32 v{T+2*q+1}, s54, v{r+q}")
            for q in range(8): a(f"v_add_f32 v{o+q}, v{o+q}, v{T+q}")
        for q in range(4): a(f"v_cvt_pk_bf16_f32 v{T+8+q}, v{o+2*q}, v{o+2*q+1}")
        for e in range(2): a(f"buffer_store_dwordx2 v[{T+8+2*e}:{T+9+2*e}], v5, s[20:23], s{64+2*k+e} offen")
        a("s_nop 1")
    loads(0); loads(1)
    a.wait_lg0()
    a("s_cmp_lg_u32 s36, 0"); a("s_cbranch_scc1 L_g_no3")
    sv = list(a.vmq)
    loads(2); fin(2)
    a.label("L_g_no3")
    a.vmq = sv
    fin(0); fin(1)
    stamps.flush(a, 0, 55); stamps.tb_flush(a, 12, 55)
    a("s_endpgm")
```

```python
from layout import *
ENABLE = False
def stamp(a, i):
    if not ENABLE: return
    a(f"s_memrealtime s[{88+2*i}:{89+2*i}]")
    if i == 0: a("s_memtime s[58:59]")
def flush(a, kidx, wave_sgpr_full, n=7, ws=86):
    if not ENABLE: return
    a("s_waitcnt vmcnt(0) lgkmcnt(0)")
    a(f"s_memrealtime s[{88+2*(n-1)}:{89+2*(n-1)}]")
    a(f"s_memtime s[60:61]")
    a("s_waitcnt lgkmcnt(0)")
    a("s_sub_u32 s60, s60, s58")
    a(f"s_add_u32 s4, s{ws}, {TS_OFF + kidx*TS_KPITCH}"); a(f"s_addc_u32 s5, s{ws+1}, 0"); a(f"s_mov_b32 s6, {TS_KPITCH}"); a("s_mov_b32 s7, 0x20000")
    a(f"s_lshl_b32 s40, s2, 3"); a(f"s_add_u32 s40, s40, s{wave_sgpr_full}"); a("s_lshl_b32 s40, s40, 6")
    for i in range(7): a(f"v_mov_b32 v{16+i}, s{88+2*min(i,n-1)}")
    a("v_mov_b32 v23, s60")
    a("v_mov_b32 v2, 0")
    for k in range(2): a(f"buffer_store_dwordx4 v[{16+4*k}:{19+4*k}], v2, s[4:7], s40 offen offset:{16*k}")
TB = False
TBC = "s_memrealtime"
def mark(a, vt):
    if TB:
        a("s_mov_b32 m0, s59"); a(f"v_writelane_b32 v{vt}, s98, m0"); a("s_add_u32 s59, s59, 1"); a("s_min_u32 s59, s59, 63")
        a(TBC + " s[98:99]")
def tb_init(a, vt):
    if TB:
        a("s_mov_b32 s59, 0"); a(TBC + " s[98:99]"); a("s_waitcnt lgkmcnt(0)")
def tb_flush(a, vt, wave, ws=86):
    if not TB: return
    a("s_waitcnt vmcnt(0) lgkmcnt(0)")
    a("s_mov_b32 m0, s59"); a(f"v_writelane_b32 v{vt}, s98, m0")
    a(TBC + " s[98:99]"); a("s_waitcnt lgkmcnt(0)"); a(f"v_writelane_b32 v{vt}, s98, 63")
    a(f"s_add_u32 s4, s{ws}, {TS_OFF + TS_KPITCH}"); a(f"s_addc_u32 s5, s{ws+1}, 0"); a(f"s_mov_b32 s6, {256*8*256}"); a("s_mov_b32 s7, 0x20000")
    a(f"s_lshl_b32 s40, s2, 3"); a(f"s_add_u32 s40, s40, s{wave}"); a("s_lshl_b32 s40, s40, 8")
    a("v_lshlrev_b32 v2, 2, v1")
    a(f"buffer_store_dword v{vt}, v2, s[4:7], s40 offen")
```

```python
from dsl import *
from layout import *
import mk, at2, stamps, sys
NAME = "parallel_sum__grouped_kv_mqa__glu_gated_reglu__prompt_kernel"
def build(ts=False, exp=()):
    stamps.ENABLE = ts
    mk.EXP = set(exp)
    a = Asm()
    for l in kernel_header(NAME): a.raw(l)
    a.label('KSTART')
    mk.common(a)
    mk.gen_g(a)
    at2.gen_at(a)
    a.label("L_end"); a("s_endpgm")
    hdr = open("parallel_sum__grouped_kv_mqa__glu_gated_reglu__prompt.s.ref").read().split("; Override launch")[0]
    return (hdr + "; @launch grid=(256,1,1) block=(512,1,1) lds=163840\n" + '.amdgcn_target "amdgcn-amd-amdhsa--gfx950"\n' + a.text() + kernel_desc(NAME, 256)), None
import cfg
if __name__ == "__main__":
    D = "dev/"
    t, info = build(ts=True); open(D + "mk_ts.s", "w").write(t)
    t, info = build(); open(D + "mk.s", "w").write(t)
    stamps.TB = True
    t, info = build(); open(D + "mk_tb.s", "w").write(t)
    stamps.TBC = "s_memtime"
    t, info = build(exp=["noat"]); open(D + "mk_tc_noat.s", "w").write(t)
    t, info = build(); open(D + "mk_tc.s", "w").write(t)
    stamps.TB = False
    for ph in (0, 2, 4):
        mk.PH = ph
        t, info = build(ts=True); open(D + f"mk_ts_ph{ph}.s", "w").write(t)
    mk.PH = 3; mk.FILLN = 4
    t, info = build(ts=True); open(D + f"mk_ts_f4.s", "w").write(t)
```

```python
from dsl import *
from layout import *
import stamps, struct
def f32(x): return struct.unpack("<I", struct.pack("<f", x))[0]

import mk
ATB = mk.KVIMG
GRP = 4 * KV_PITCH
Q1 = [16, 24]; Q2 = [20, 28]
S_ = [32, 48]; P_ = [64, 72]; O_ = [80, 96]
K1 = [112, 120]; K2 = [116, 124]
VA = [128, 136]; VB = [132, 140]
aK1, aK2, aV = 2, 3, 4
LTHR = f32(2.0 ** -60)


import cfg as CFG
def srd(a, d, p, nbytes, off=0):
    if off: a(f"s_add_u32 s{d}, s{p}, {off}"); a(f"s_addc_u32 s{d+1}, s{p+1}, 0")
    else: a(f"s_mov_b32 s{d}, s{p}"); a(f"s_mov_b32 s{d+1}, s{p+1}")
    a(f"s_mov_b32 s{d+2}, {nbytes}"); a(f"s_mov_b32 s{d+3}, 0x20000")

PKA = ATB
def pack_decode(a, r):
    B = 64 + 7 * r
    a(f"s_lshl_b32 s40, s2, 2"); a("s_add_u32 s40, s40, s36")
    if r: a(f"s_add_u32 s40, s40, {1024*r}")
    a("s_mul_hi_u32 s41, s40, s60"); a("s_lshr_b32 s41, s41, 1"); a("s_mul_i32 s42, s41, 18"); a("s_sub_u32 s42, s40, s42")
    a("s_mul_hi_u32 s43, s41, s60"); a("s_mul_i32 s44, s43, 9"); a("s_sub_u32 s44, s41, s44")
    a("s_add_u32 s45, s44, 1"); a("s_cmp_eq_u32 s45, 9"); a("s_cselect_b32 s45, 0, s45")
    a("s_bitcmp1_b32 s43, 0"); a("s_cselect_b32 s45, s44, s45")
    a("s_lshr_b32 s46, s43, 2"); a("s_and_b32 s47, s43, 3"); a("s_lshl_b32 s48, s41, 5")
    a("s_mov_b32 s49, 0")
    a("s_cmp_lt_u32 s41, 144"); a(f"s_cbranch_scc1 L_pk_h{r}")
    a("s_sub_u32 s44, s41, 144"); a("s_mul_hi_u32 s46, s44, s61"); a("s_mul_i32 s43, s46, 5"); a("s_sub_u32 s44, s44, s43")
    a("s_add_u32 s45, s44, 36")
    a("s_mul_i32 s48, s46, 144"); a("s_mul_i32 s43, s44, 36")
    a("s_cmp_eq_u32 s44, 4"); a("s_cselect_b32 s49, 2, 1"); a("s_cselect_b32 s43, 0, s43"); a("s_add_u32 s48, s48, s43")
    a.label(f"L_pk_h{r}")
    a("s_cmp_lt_u32 s45, 7"); a("s_cselect_b32 s52, 7, 2"); a("s_cselect_b32 s43, 0, 21")
    a("s_cmp_eq_u32 s49, 0"); a("s_cselect_b32 s52, s52, 0"); a("s_cselect_b32 s43, s43, 0"); a("s_add_u32 s45, s45, s43")
    a("s_cmp_eq_u32 s49, 0")
    a(f"s_cselect_b32 s{B}, s80, s22"); a(f"s_cselect_b32 s{B+1}, s81, s23"); a(f"s_cselect_b32 s{B+2}, s62, s63"); a(f"s_cselect_b32 s43, 16, 18")
    a("s_cmp_eq_u32 s49, 2"); a("s_cselect_b64 vcc, -1, 0"); a(f"v_cndmask_b32 v{144+r}, v12, v13, vcc"); a("s_cselect_b32 s43, 0, s43")
    a("s_mul_i32 s48, s48, 1152"); a("s_lshl_b32 s44, s42, 6"); a(f"s_add_u32 s{B+3}, s48, s44")
    a("s_mul_i32 s43, s43, 1152"); a(f"s_add_u32 s{B+4}, s{B+3}, s43")
    for c in range(2):
        a("s_lshl_b32 s43, s42, 1"); a(f"s_add_u32 s43, s43, {c}")
        a("s_mul_hi_u32 s44, s43, s60"); a("s_mul_i32 s48, s44, 9"); a("s_sub_u32 s43, s43, s48")
        a("s_sub_u32 s48, s47, s44"); a("s_and_b32 s48, s48, 3"); a("s_mul_i32 s48, s48, s52"); a("s_add_u32 s48, s48, s45")
        a("s_lshl_b32 s51, s46, 2"); a("s_add_u32 s51, s51, s44"); a("s_mul_i32 s51, s51, 41"); a("s_add_u32 s51, s51, s48")
        a("s_mul_i32 s51, s51, 9"); a("s_add_u32 s51, s51, s43"); a(f"s_lshl_b32 s{B+5+c}, s51, 10")
    if r == 2:
        a("s_cmp_ge_u32 s40, 2952"); a(f"s_cselect_b32 s{B+2}, 0, s{B+2}")
        a(f"s_cselect_b32 s{B+5}, 0x40000000, s{B+5}"); a(f"s_cselect_b32 s{B+6}, 0x40000000, s{B+6}")
def pack_issue(r):
    B = 64 + 7 * r
    return [f"s_mov_b32 s4, s{B}", f"s_mov_b32 s5, s{B+1}", f"s_mov_b32 s6, s{B+2}", f"s_add_u32 m0, s51, {2048*r}",
            (f"buffer_load_dwordx4 v{144+r}, s[4:7], s{B+3} offen lds", f"pk{r}"), f"s_add_u32 m0, s51, {2048*r+1024}",
            (f"buffer_load_dwordx4 v{144+r}, s[4:7], s{B+4} offen lds", f"pk{r}")]

NPEEL = 1
PACE0 = 6; PACE = 3
def gen_at(a):
    a.label("L_at")
    a.vmq = []; a.lgq = []
    mk.w_setup(a, True)
    a("s_cmp_ge_u32 s38, 2"); a("s_cbranch_scc1 L_at_nokvdma")
    a("s_bitcmp1_b32 s38, 0"); a("s_cselect_b32 s20, s70, s68"); a("s_cselect_b32 s21, s71, s69")
    a(f"s_mov_b32 s22, {D*DH*2}"); a("s_mov_b32 s23, 0x20000")
    a("v_lshrrev_b32 v3, 2, v1"); a("v_mul_u32_u24 v3, 36, v3"); a("v_and_b32 v4, 3, v1"); a("v_lshl_add_u32 v14, v4, 4, v3")
    a(f"s_mul_i32 s40, s36, {9*1024}"); a(f"s_add_u32 s40, s40, {mk.KVIMG}")
    a("s_mul_i32 s41, s36, 9"); a("s_lshl_b32 s42, s62, 2"); a("s_add_u32 s41, s41, s42")
    for t in range(9):
        a(f"s_add_u32 s42, s41, {t}"); a("s_cmp_ge_u32 s42, 36"); a("s_cselect_b32 s43, 36, 0"); a("s_sub_u32 s42, s42, s43"); a("s_mul_i32 s42, s42, 576")
        a(f"s_add_u32 m0, s40, {t*1024}")
        a("buffer_load_dwordx4 v14, s[20:23], s42 offen lds")
    a.label("L_at_nokvdma")
    if "nocp" not in mk.EXP:
        a("s_getpc_b64 s[4:5]")
        a.label("L_pc")
        a("s_sub_u32 s4, s4, L_pc-KSTART"); a("s_subb_u32 s5, s5, 0"); a("s_mov_b32 s6, L_end-KSTART"); a("s_mov_b32 s7, 0x20000")
        a("s_lshr_b32 s40, s2, 3"); a("s_lshl_b32 s40, s40, 2"); a("s_add_u32 s40, s40, s36")
        a("s_mul_hi_u32 s41, s40, 0x1c71c71d"); a("s_mul_i32 s41, s41, 9"); a("s_sub_u32 s40, s40, s41"); a("s_lshl_b32 s40, s40, 13")
        a("v_lshlrev_b32 v2, 7, v1")
        a("buffer_load_dword v20, v2, s[4:7], s40 offen")
    a("s_mov_b32 s22, s72"); a("s_mov_b32 s23, s73")
    mk.w_table(a); mk.w_scalars(a); mk.w_voffs(a)
    a("s_waitcnt vmcnt(0) lgkmcnt(0)")
    a("s_barrier")
    def sig(tags, off):
        a.wait_vm(tags)
        a("s_mov_b64 exec, 1"); a(f"ds_add_u32 v0, v0 offset:{off}"); a("s_mov_b64 exec, -1")
    for g in range(mk.R):
        for grp in mk.wdma(g): mk.emit_group_to(a, grp)
        if g == 3: sig(["w0", "w1"], 8)
        if g == 5: sig(["w2", "w3"], 12)
    srd(a, 12, 86, PK_BYTES, PK_OFF)
    a("s_mov_b32 s60, 0x1c71c71d"); a("s_mov_b32 s61, 0x33333334"); a(f"s_mov_b32 s62, {F*D*2}"); a(f"s_mov_b32 s63, {D*D*2}")
    a("s_lshl_b32 s40, s37, 4"); a("s_add_u32 s40, s40, s38"); a("s_lshl_b32 s40, s40, 7"); a(f"s_add_u32 s40, s40, {FL_REL}")
    a("v_mov_b32 v2, 0"); a("v_lshlrev_b32 v3, 2, v1")
    a("s_mov_b32 exec_hi, 0"); a(f"buffer_store_dword v2, v3, s[12:15], s40 offen{CFG.SS}"); a("s_mov_b32 exec_hi, -1")
    a("v_lshrrev_b32 v2, 2, v1"); a("v_lshrrev_b32 v3, 1, v1"); a("v_lshrrev_b32 v4, 4, v1"); a("v_xor_b32 v3, v3, v4"); a("v_and_b32 v3, 1, v3"); a("v_lshlrev_b32 v3, 5, v3")
    a("v_and_b32 v4, 1, v1"); a("v_lshl_add_u32 v3, v4, 4, v3")
    a("v_mul_u32_u24 v4, 1152, v2"); a("v_add_u32 v12, v4, v3")
    a("v_and_b32 v4, 4, v2"); a("v_bfe_u32 v5, v2, 1, 1"); a("v_add_u32 v4, v4, v5"); a("v_bfe_u32 v5, v2, 3, 1"); a("v_lshl_add_u32 v4, v5, 1, v4")
    a("v_mul_u32_u24 v4, 18, v4"); a("v_and_b32 v5, 1, v2"); a("v_add3_u32 v4, v4, v5, 16")
    a("v_mul_u32_u24 v4, 1152, v4"); a("v_add_u32 v13, v4, v3")
    for r in range(3): pack_decode(a, r)
    a("s_mov_b32 s7, 0x20000")
    a(f"s_mul_i32 s51, s36, 6144"); a(f"s_add_u32 s51, s51, {PKA}")
    a("v_lshrrev_b32 v2, 5, v1"); a("v_lshlrev_b32 v2, 4, v2"); a("v_bfe_u32 v3, v1, 4, 1"); a("v_lshl_add_u32 v2, v3, 2, v2"); a("v_bfe_u32 v4, v1, 2, 2"); a("v_add_u32 v2, v2, v4")
    a("v_lshlrev_b32 v2, 6, v2"); a("v_lshl_add_u32 v2, v3, 5, v2"); a("v_and_b32 v3, 3, v1"); a("v_lshl_add_u32 v2, v3, 3, v2")
    a("v_add_u32 v147, s51, v2"); a("v_xor_b32 v148, 32, v147")
    sig(["w4", "w5", "w6"], 16)
    mk.chk_issue(a, 0); mk.chk(a, "kvfree", 0, 1, sleep=4)
    for r in range(3): mk.emit_group_to(a, pack_issue(r))
    for r in range(3):
        a.wait_vm(f"pk{r}")
        for c_ in range(2):
            b = 152 + 8 * r + 4 * c_
            a(f"ds_read_b64_tr_b16 v[{b}:{b+1}], v{147+c_} offset:{2048*r}", tag=f"ptr{r}")
            a(f"ds_read_b64_tr_b16 v[{b+2}:{b+3}], v{147+c_} offset:{2048*r+512}", tag=f"ptr{r}")
    for r in range(3):
        a.wait_lg(f"ptr{r}")
        for c_ in range(2):
            b = 152 + 8 * r + 4 * c_
            a(f"buffer_store_dwordx4 v[{b}:{b+3}], v11, s[12:15], s{64+7*r+5+c_} offen{CFG.SS}", tag="pst")
    a("v_mov_b32 v5, v11")
    a(f"v_add_u32 v{aK1}, {ATB}, v5")
    a("v_and_b32 v6, 31, v1"); a(f"v_lshlrev_b32 v{aK2}, 2, v6"); a(f"v_add_u32 v{aK2}, {ATB+1024}, v{aK2}")
    a("v_mov_b32 v7, 0"); a("v_cmp_lt_u32 vcc, 27, v6"); a("v_cndmask_b32 v7, v7, 4, vcc")
    a("v_cmp_eq_u32 vcc, 19, v6"); a("v_cndmask_b32 v7, v7, 4, vcc")
    a("v_cmp_eq_u32 vcc, 22, v6"); a("v_cndmask_b32 v7, v7, 18, vcc")
    a("v_cmp_gt_u32 vcc, 19, v6"); a("v_cndmask_b32 v7, v7, v6, vcc")
    a("v_lshrrev_b32 v8, 5, v1"); a("v_mul_u32_u24 v8, 304, v8"); a(f"v_lshl_add_u32 v9, v7, 4, v8")
    a(f"v_add_u32 v{aV}, {ATB+1280}, v9")
    a(f"s_mul_i32 s44, s36, {KV_PITCH}"); a(f"s_add_u32 s45, s44, {KV_OFF}"); a(f"s_add_u32 s44, s44, {ATB}")
    for c in (0, 1):
        for k in range(16): a(f"v_mov_b32 v{O_[c]+k}, 0")
        a(f"v_mov_b32 v{Q2[c]+2}, 0"); a(f"v_mov_b32 v{Q2[c]+3}, 0"); a(f"v_mov_b32 v{K2[c]+2}, 0"); a(f"v_mov_b32 v{K2[c]+3}, 0")
    a("s_cmp_lg_u32 s36, 0"); a("s_cbranch_scc1 L_at_go")
    mk.chk_issue(a, 0); mk.chk(a, "apre", 0, 3, sleep=4)
    a("v_and_b32 v10, 31, v1"); a("v_lshlrev_b32 v10, 2, v10")
    a.label("L_at_poll")
    a(f"buffer_load_dword v12, v10, s[32:35], 0 offen{CFG.SP}")
    a("s_waitcnt vmcnt(0)")
    a("v_cmp_ne_u32 vcc, 1, v12")
    a("s_cbranch_vccz L_at_go")
    a("s_add_u32 s3, s3, 16"); a("s_cmp_ge_u32 s3, 0x400000"); a("s_cbranch_scc1 L_at_go")
    a("s_sleep 8"); a("s_branch L_at_poll")
    a.label("L_at_go")
    a.vmq = ["pst"] * 6
    mk.arrive(a, 4, 14)
    mk.chk_issue(a, 4); mk.chk(a, "a1", 4, 1, sleep=4)
    stamps.stamp(a, 1)
    def kvdma(m, slot):
        for j in range(3):
            a(f"s_add_u32 m0, s44, {slot*GRP + j*1024}"); a(f"s_add_u32 s42, s45, {m*GRP + j*1024}")
            a(f"buffer_load_dwordx4 v5, s[28:31], s42 offen{CFG.SL} lds", tag=f"kv{m}")
    kvdma(0, 0); kvdma(1, 1)
    a("v_lshlrev_b32 v10, 3, v1"); a("v_lshlrev_b32 v13, 2, v1")
    a(f"s_mov_b32 s40, {KMAX_OFF}")
    a(f"buffer_load_dword v12, v13, s[28:31], s40 offen{CFG.SL}", tag="km")
    a.wait_vm("km")
    mk.arrive(a, 4, 14)
    for off in (0x041F, 0x081F, 0x101F, 0x201F, 0x401F):
        a(f"ds_swizzle_b32 v13, v12 offset:{off:#x}"); a.wait_lg0(); a("v_max_f32 v12, v12, v13")
    a("v_mov_b32 v13, v12"); a("v_permlane32_swap_b32 v12, v13"); a("v_max_f32 v12, v12, v13")
    a("v_sqrt_f32 v12, v12"); a(f"v_mul_f32 v12, {f32(1+1/64.):#x}, v12"); a("v_mov_b32 v13, 0")
    a(f"v_cvt_pk_bf16_f32 v{K2[0]+1}, v12, v13"); a(f"v_mov_b32 v{K2[1]+1}, v{K2[0]+1}")
    mk.chk_issue(a, 0); mk.chk(a, "aq", 0, mk.QI + 1, sleep=2)
    a("s_lshl_b32 s43, s39, 5"); a("s_lshl_b32 s40, s38, 1"); a("s_add_u32 s43, s43, s40"); a(f"s_mul_i32 s43, s43, {Q_PITCH}"); a(f"s_add_u32 s43, s43, {Q_OFF}")
    for c in (0, 1):
        a(f"buffer_load_dwordx4 v[{Q1[c]}:{Q1[c]+3}], v5, s[28:31], s43 offen offset:{c*Q_PITCH}{CFG.SL}", tag="q")
        a(f"buffer_load_dwordx2 v[{Q2[c]}:{Q2[c]+1}], v10, s[28:31], s43 offen offset:{c*Q_PITCH+1024}{CFG.SL}", tag="q")
    mk.chk_issue(a, 4); mk.chk(a, "a2", 4, 2, sleep=1)
    stamps.stamp(a, 2)
    a("s_setprio 1")

    def rdK(i, b):
        a(f"ds_read_b128 v[{K1[b]}:{K1[b]+3}], v{aK1} offset:{i*KV_PITCH}", tag=f"k{b}")
        a(f"ds_read_b32 v{K2[b]}, v{aK2} offset:{i*KV_PITCH}", tag=f"k{b}")
    def rdV(i, b):
        a(f"ds_read_b128 v[{VA[b]}:{VA[b]+3}], v{aV} offset:{i*KV_PITCH}", tag=f"v{b}")
        a(f"ds_read_b128 v[{VB[b]}:{VB[b]+3}], v{aV} offset:{i*KV_PITCH+608}", tag=f"v{b}")
    def qk(c, b):
        S = S_[c]
        return [f"v_mfma_f32_32x32x16_bf16 v[{S}:{S+15}], v[{K1[b]}:{K1[b]+3}], v[{Q1[c]}:{Q1[c]+3}], 0",
                f"v_mfma_f32_32x32x16_bf16 v[{S}:{S+15}], v[{K2[b]}:{K2[b]+3}], v[{Q2[c]}:{Q2[c]+3}], v[{S}:{S+15}]"]
    def pv(c, b):
        O = O_[c]; P = P_[c]
        return [f"v_mfma_f32_32x32x16_bf16 v[{O}:{O+15}], v[{VA[b]}:{VA[b]+3}], v[{P}:{P+3}], v[{O}:{O+15}]",
                f"v_mfma_f32_32x32x16_bf16 v[{O}:{O+15}], v[{VB[b]}:{VB[b]+3}], v[{P+4}:{P+7}], v[{O}:{O+15}]"]
    def cvt(d, s0):
        if 'perm' in mk.EXP: return f"v_perm_b32 v{d}, v{s0+1}, v{s0}, s60"
        return f"v_cvt_pk_bf16_f32 v{d}, v{s0}, v{s0+1}"
    a("s_mov_b32 s60, 0x07060302")
    def half(i, c, do_qk, do_pv, pre=None, mid=None):
        S = S_[c]; P = P_[c]; cn = 1 - c
        bq = (i + c) & 1
        bv = (i + 1) & 1 if c == 0 else i & 1
        mq = qk(cn, bq) if do_qk else [None, None]
        mp = pv(cn, bv) if do_pv else [None, None]
        slots = [mq[0], mq[1], mp[0], mp[1]]
        for s in range(4):
            if s == 0 and do_qk: a.wait_lg(f"k{bq}")
            if s == 2 and do_pv: a.wait_lg(f"v{bv}")
            if slots[s]: a(slots[s])
            if s == 0 and pre: pre()
            if s == 2 and mid: mid()
            for e in range(4): a(f"v_exp_f32 v{S+4*s+e}, v{S+4*s+e}")
            if s > 0:
                for k in range(2): a(cvt(P+2*(s-1)+k, S+4*(s-1)+2*k))
        for k in range(2): a(cvt(P+6+k, S+12+2*k))
    rdK(0, 0)
    a.wait_vm("q")
    a.wait_lg("k0")
    for m in qk(0, 0): a(m)
    a("s_nop 7"); a("s_nop 3")
    uid = [0]
    def body(first, last, dma, m=None):
        uid[0] += 1; u = uid[0]
        for i in range(4):
            def pre0():
                if i == 3:
                    if not last:
                        a(f"v_add_u32 v{aK1}, s46, v{aK1}"); a(f"v_add_u32 v{aK2}, s46, v{aK2}")
                        rdK(0, 0)
                else:
                    rdK(i + 1, (i + 1) & 1)
                rdV(i, i & 1)
                if i == 3 and not last: a(f"v_add_u32 v{aV}, s46, v{aV}")
                if i == 0 and not first and not last: mk.chk_issue(a, 4)
                if i == 2 and not last: mk.chk_issue(a, 4)
                if i == 3 and not last and PACE: mk.chk_issue(a, 0, v=13)
            for c in (0, 1):
                hs = 2 * i + c
                def mid():
                    if hs == 1 and not first and not last: mk.chk(a, f"w{u}", 4, "s52")
                    if hs == 1 and dma:
                        for j in range(3):
                            a(f"s_add_u32 m0, s49, {j*1024}"); a(f"s_add_u32 s42, s48, {j*1024}")
                            a(f"buffer_load_dwordx4 v5, s[28:31], s42 offen{CFG.SL} lds", tag=f"kv{m+2}" if m is not None else "kvn")
                    if hs == 3 and not last:
                        if m is None: a(f"s_waitcnt vmcnt({3 if dma else 0})")
                        else: a.wait_vm([f"kv{m+1}"] + (["pst", "clr"] if m == NPEEL - 1 else []))
                        mk.arrive(a, 4, 14); a("s_add_u32 s52, s52, s53")
                    if hs == 5 and not last: mk.chk(a, f"r{u}", 4, "s52")
                    if hs == 7 and not last:
                        mk.arrive(a, 4, 14); a("s_add_u32 s52, s52, s53")
                if c == 0: half(i, 0, True, not (first and i == 0), pre=pre0, mid=mid)
                else: half(i, 1, not (last and i == 3), True, mid=mid)
    def advance():
        a("s_add_u32 s47, s47, 1"); a("s_cmp_eq_u32 s47, 3"); a("s_cselect_b32 s47, 0, s47")
        a("s_cmp_eq_u32 s47, 2"); a(f"s_cselect_b32 s46, {(-2*GRP) & 0xffffffff:#x}, s63")
        a(f"s_add_u32 s48, s48, {GRP}")
        a(f"s_add_u32 s49, s49, {GRP}"); a(f"s_add_u32 s40, s44, {3*GRP}"); a("s_cmp_eq_u32 s49, s40"); a("s_cselect_b32 s49, s44, s49")
        if PACE:
            uid[0] += 1
            a("s_add_u32 s54, s54, s57")
            mk.chk(a, f"p{uid[0]}", 0, "s54", v=13, sleep=2)
    a("s_mov_b32 s47, 0"); a(f"s_mov_b32 s46, {GRP}"); a(f"s_mov_b32 s63, {GRP}"); a(f"s_add_u32 s48, s45, {2*GRP}"); a(f"s_add_u32 s49, s44, {2*GRP}")
    a("s_mov_b32 s53, 16"); a("s_mov_b32 s52, 32")
    a(f"s_mov_b32 s54, {PACE0*16}"); a(f"s_mov_b32 s57, {PACE*16}")
    a("s_bfe_u32 s62, s2, 0x10003"); a(f"s_sub_u32 s62, {14 - NPEEL}, s62"); a("s_cmp_lg_u32 s36, 0"); a("s_cselect_b32 s62, 99, s62")
    for m in range(NPEEL):
        body(m == 0, False, True, m)
        advance()
    a(f"s_mov_b32 s50, {14 - NPEEL}")
    if "noat" in mk.EXP:
        a("s_cmp_lg_u32 s36, 0"); a("s_cbranch_scc1 L_at_fin")
        a("v_mov_b32 v12, 128"); a("v_mov_b32 v10, 4096"); a("s_mov_b64 exec, 1"); a("buffer_atomic_add v10, v12, s[32:35], 0 offen"); a("s_mov_b64 exec, -1")
        a("s_branch L_at_fin")
    lg_in = list(a.lgq)
    i0 = len(a.items)
    a.label("L_at_loop")
    body(False, False, True)
    a("s_cmp_lg_u32 s50, s62"); a("s_cbranch_scc1 L_at_nopk")
    a("v_mov_b32 v12, 128"); a("v_mov_b32 v10, 4096"); a("s_mov_b64 exec, 1"); a("buffer_atomic_add v10, v12, s[32:35], 0 offen"); a("s_mov_b64 exec, -1")
    a.label("L_at_nopk")
    advance()
    a("s_sub_u32 s50, s50, 1"); a("s_cmp_lg_u32 s50, 0"); a("s_cbranch_scc1 L_at_loop")
    assert a.lgq == lg_in, (a.lgq, lg_in)
    loop_ins = [x for x in a.items[i0:] if not isinstance(x, str)]
    assert check_backedge(loop_ins, loop_ins) == 0
    body(False, False, False)
    advance()
    body(False, True, False)
    for m in pv(1, 1): a(m)
    a("s_setprio 0")
    stamps.stamp(a, 3)
    a("s_nop 15")
    a(f"v_min_f32 v12, v{O_[0]+10}, v{O_[1]+10}")
    a(f"s_mov_b32 s40, {LTHR:#x}")
    a("v_cmp_nle_f32 vcc, s40, v12")
    a("s_nop 4")
    a("s_cbranch_vccz L_at_fin")
    fallback(a)
    a.label("L_at_fin")
    a(f"s_mul_i32 s43, s39, {NSTEP}"); a("s_lshl_b32 s40, s38, 1"); a("s_add_u32 s41, s43, s40"); a("s_add_u32 s41, s41, 288"); a("s_lshl_b32 s41, s41, 10")
    a("s_lshr_b32 s42, s40, 3"); a("s_add_u32 s43, s43, s42"); a("s_add_u32 s43, s43, 320"); a("s_lshl_b32 s43, s43, 10")
    a("s_bfe_u32 s42, s40, 0x10002"); a("s_lshl_b32 s42, s42, 9"); a("s_add_u32 s43, s43, s42")
    a("s_and_b32 s42, s40, 3"); a("s_lshl_b32 s42, s42, 2"); a("s_add_u32 s43, s43, s42")
    for c in (0, 1):
        O = O_[c]; T = S_[c]
        a(f"v_rcp_f32 v{T}, v{O+10}")
        for k in range(10): a(f"v_mul_f32 v{O+k}, v{O+k}, v{T}")
        for k in range(5): a(f"v_cvt_pk_bf16_f32 v{T+4+k}, v{O+2*k}, v{O+2*k+1}")
        a(f"buffer_store_dwordx4 v[{T+4}:{T+7}], v5, s[24:27], s41 offen offset:{c*1024}{CFG.SS}")
    a("s_mov_b32 exec_hi, 0")
    a(f"v_mov_b32 v{S_[0]+9}, v{S_[1]+8}")
    a(f"buffer_store_dwordx2 v[{S_[0]+8}:{S_[0]+9}], v5, s[24:27], s43 offen{CFG.SS}")
    a("s_mov_b32 exec_hi, -1")
    a("s_waitcnt vmcnt(0)")
    mk.arrive(a, 4, 14); a("s_add_u32 s52, s52, s53")
    a("s_cmp_lg_u32 s36, 0"); a("s_cbranch_scc1 L_at_nopub")
    a.lgq = []
    mk.chk_issue(a, 4); mk.chk(a, "fin", 4, "s52", sleep=1)
    a("s_lshl_b32 s40, s37, 4"); a("s_and_b32 s41, s38, 12"); a("s_add_u32 s40, s40, s41"); a("s_lshl_b32 s40, s40, 7")
    a("s_and_b32 s41, s38, 3"); a("s_lshl_b32 s41, s41, 2"); a("s_add_u32 s40, s40, s41"); a(f"s_add_u32 s40, s40, {FL_REL + 32}")
    mk.flag_send(a, 12, 40, 128, 12)
    a.label("L_at_nopub")
    for i in (4, 5): stamps.stamp(a, i)
    stamps.flush(a, 0, 55); stamps.tb_flush(a, 14, 55)

def fallback(a):
    a("v_and_b32 v6, 31, v1"); a("v_lshlrev_b32 v6, 2, v6")
    M = [P_[0], P_[1]]
    for c in (0, 1): a(f"v_mov_b32 v{M[c]}, 0xff800000")
    a(f"v_mov_b32 v{K2[0]+1}, 0")
    a(f"s_mov_b32 s42, {KV_OFF}")
    a.label("L_fb1")
    a(f"buffer_load_dwordx4 v[{K1[0]}:{K1[0]+3}], v5, s[28:31], s42 offen{CFG.SL}")
    a(f"buffer_load_dword v{K2[0]}, v6, s[28:31], s42 offen offset:1024{CFG.SL}")
    a("s_waitcnt vmcnt(0)")
    for c in (0, 1):
        S = S_[c]
        a(f"v_mfma_f32_32x32x16_bf16 v[{S}:{S+15}], v[{K1[0]}:{K1[0]+3}], v[{Q1[c]}:{Q1[c]+3}], 0")
        a(f"v_mfma_f32_32x32x16_bf16 v[{S}:{S+15}], v[{K2[0]}:{K2[0]+3}], v[{Q2[c]}:{Q2[c]+3}], v[{S}:{S+15}]")
    for c in (0, 1):
        S = S_[c]
        for k in range(8): a(f"v_max3_f32 v{M[c]}, v{M[c]}, v{S+2*k}, v{S+2*k+1}")
    a(f"s_add_u32 s42, s42, {KV_PITCH}"); a(f"s_cmp_lt_u32 s42, {KV_OFF + KV_BYTES}"); a("s_cbranch_scc1 L_fb1")
    a("v_cmp_gt_u32 vcc, 32, v1")
    a("s_mov_b32 s54, 0xffff0000")
    for c in (0, 1):
        m = M[c]; t = m + 1
        a(f"v_mov_b32 v{t}, v{m}"); a(f"v_permlane32_swap_b32 v{m}, v{t}"); a(f"v_max_f32 v{m}, v{m}, v{t}")
        a(f"v_sub_f32 v{m}, 0, v{m}")
        a(f"v_and_b32 v{t}, s54, v{m}"); a(f"v_sub_f32 v{m}, v{m}, v{t}")
        a(f"v_and_b32 v{t+1}, s54, v{m}"); a(f"v_sub_f32 v{m}, v{m}, v{t+1}")
        a(f"v_lshrrev_b32 v{t}, 16, v{t}"); a(f"v_or_b32 v{t}, v{t}, v{t+1}")
        a(f"v_lshrrev_b32 v{m}, 16, v{m}")
        a(f"v_cndmask_b32 v{Q2[c]+1}, 0, v{t}, vcc"); a(f"v_cndmask_b32 v{Q2[c]+2}, 0, v{m}, vcc")
        for k in range(16): a(f"v_mov_b32 v{O_[c]+k}, 0")
    a(f"v_mov_b32 v{K2[0]+1}, 0x3f803f80"); a(f"v_mov_b32 v{K2[0]+2}, 0x3f80")
    a(f"s_mov_b32 s42, {KV_OFF}")
    a.label("L_fb2")
    a(f"buffer_load_dwordx4 v[{K1[0]}:{K1[0]+3}], v5, s[28:31], s42 offen{CFG.SL}")
    a(f"buffer_load_dword v{K2[0]}, v6, s[28:31], s42 offen offset:1024{CFG.SL}")
    a(f"buffer_load_dwordx4 v[{VA[0]}:{VA[0]+3}], v9, s[28:31], s42 offen offset:1280{CFG.SL}")
    a(f"buffer_load_dwordx4 v[{VB[0]}:{VB[0]+3}], v9, s[28:31], s42 offen offset:{1280+608}{CFG.SL}")
    a("s_waitcnt vmcnt(0)")
    for c in (0, 1):
        S = S_[c]
        a(f"v_mfma_f32_32x32x16_bf16 v[{S}:{S+15}], v[{K1[0]}:{K1[0]+3}], v[{Q1[c]}:{Q1[c]+3}], 0")
        a(f"v_mfma_f32_32x32x16_bf16 v[{S}:{S+15}], v[{K2[0]}:{K2[0]+3}], v[{Q2[c]}:{Q2[c]+3}], v[{S}:{S+15}]")
    for c in (0, 1):
        S = S_[c]; P = P_[c]; O = O_[c]
        for k in range(16): a(f"v_exp_f32 v{S+k}, v{S+k}")
        for k in range(8): a(f"v_cvt_pk_bf16_f32 v{P+k}, v{S+2*k}, v{S+2*k+1}")
        a(f"v_mfma_f32_32x32x16_bf16 v[{O}:{O+15}], v[{VA[0]}:{VA[0]+3}], v[{P}:{P+3}], v[{O}:{O+15}]")
        a(f"v_mfma_f32_32x32x16_bf16 v[{O}:{O+15}], v[{VB[0]}:{VB[0]+3}], v[{P+4}:{P+7}], v[{O}:{O+15}]")
    a("s_nop 7")
    a(f"s_add_u32 s42, s42, {KV_PITCH}"); a(f"s_cmp_lt_u32 s42, {KV_OFF + KV_BYTES}"); a("s_cbranch_scc1 L_fb2")
    a("s_nop 15")
    a.vmq = []
```

```python
from dsl import *
from layout import *
import stamps, struct
def f32(x): return struct.unpack("<I", struct.pack("<f", x))[0]
EXP = set()
import cfg as CFG

XB = 112; ACC = 48; FR = 16; NFR = 8
LB = 1024
BIAS = 4096
SLOT = 16384; R = 7; KVIMG = LB + 7 * SLOT; PF = 6
NCH = 45
RING2 = 12 * 9216; ORG2 = 73728
ACC2 = 184; BR = 112
NQ = 31; QB = 12288
PRIO = False; FILLN = 2; PH = 3
HL = 56; OL = 61; PKI = 40; LAG = 0; QI = 5; APRIO = 6
def X(t): return f"v[{XB+4*t}:{XB+4*t+3}]"
def acc(c): return f"v[{ACC+16*c}:{ACC+16*c+15}]"
def acc2(u): return f"v[{ACC2+4*u}:{ACC2+4*u+3}]"

def srd(a, d, p, nbytes, off=0):
    if off: a(f"s_add_u32 s{d}, s{p}, {off}"); a(f"s_addc_u32 s{d+1}, s{p+1}, 0")
    else: a(f"s_mov_b32 s{d}, s{p}"); a(f"s_mov_b32 s{d+1}, s{p+1}")
    a(f"s_mov_b32 s{d+2}, {nbytes}"); a(f"s_mov_b32 s{d+3}, 0x20000")

def common(a):
    a("s_cmp_ge_u32 s2, 256"); a("s_cbranch_scc1 L_end")
    a("s_load_dwordx16 s[64:79], s[0:1], 0"); a("s_load_dwordx8 s[80:87], s[0:1], 64")
    a("v_lshrrev_b32 v2, 6, v0"); a("v_and_b32 v1, 63, v0"); a("v_readfirstlane_b32 s55, v2")
    stamps.stamp(a, 0)
    a("s_and_b32 s40, s2, 7"); a("s_lshr_b32 s41, s2, 3")
    a("s_and_b32 s37, s40, 1"); a("s_lshl_b32 s37, s37, 3"); a("s_and_b32 s42, s41, 7"); a("s_add_u32 s37, s37, s42")
    a("s_lshr_b32 s38, s40, 1"); a("s_lshl_b32 s38, s38, 2"); a("s_lshr_b32 s42, s41, 3"); a("s_add_u32 s38, s38, s42")
    a("s_and_b32 s36, s55, 3"); a("s_mov_b32 s3, 0")
    a("s_lshl_b32 s39, s37, 2"); a("s_add_u32 s39, s39, s36")
    a("v_lshlrev_b32 v11, 4, v1")
    a("s_waitcnt lgkmcnt(0)")
    srd(a, 24, 86, H_BYTES, H_OFF); srd(a, 28, 86, SM_BYTES, SM_OFF); srd(a, 32, 84, 256)
    a("v_mov_b32 v0, 4")
    a("v_mov_b32 v2, 0"); a("v_mov_b32 v3, 0"); a("ds_write_b64 v2, v[2:3]"); a("ds_write_b64 v2, v[2:3] offset:8"); a("ds_write_b64 v2, v[2:3] offset:16")
    stamps.tb_init(a, 12)
    a("s_cmp_ge_u32 s55, 4"); a("s_cbranch_scc1 L_at")

def atomic_inc(a, label, off_expr_sgpr, val, vt=13):
    a(f"v_mov_b32 v{vt}, {off_expr_sgpr}"); a(f"v_mov_b32 v{vt+1}, {val}")
    a("s_mov_b64 exec, 1")
    a(f"buffer_atomic_add v{vt+1}, v{vt}, s[32:35], 0 offen")
    a("s_mov_b64 exec, -1")
    a.vmq = a.vmq[:-1]

def poll_issue(a, off, tag, va=14, vv=15):
    return [f"v_mov_b32 v{va}, {off}", (f"buffer_load_dword v{vv}, v{va}, s[32:35], 0 offen{CFG.SP}", tag)]
def poll_check(a, name, tag, shift, width, target, va=14, vv=15):
    a.wait_vm(tag)
    a("s_cmp_lg_u32 s36, 0"); a(f"s_cbranch_scc1 L_{name}_ok")
    a("s_mov_b32 s56, 0")
    a.label(f"L_{name}_chk")
    a(f"v_readfirstlane_b32 s40, v{vv}")
    a(f"s_bfe_u32 s40, s40, {shift | (width << 16):#x}")
    a(f"s_cmp_ge_u32 s40, {target}")
    a(f"s_cbranch_scc1 L_{name}_ok")
    a("s_add_u32 s56, s56, 1"); a("s_cmp_ge_u32 s56, 0x80000"); a(f"s_cbranch_scc1 L_{name}_ok")
    a("s_sleep 16")
    a(f"buffer_load_dword v{vv}, v{va}, s[32:35], 0 offen{CFG.SP}"); a.vmq = a.vmq[:-1]
    a("s_waitcnt vmcnt(0)")
    a(f"s_branch L_{name}_chk")
    a.label(f"L_{name}_ok")

def arrive(a, off, vtb=12):
    stamps.mark(a, vtb)
    a("s_mov_b64 exec, 1"); a(f"ds_add_u32 v0, v0 offset:{off}"); a("s_mov_b64 exec, -1")
def chk_issue(a, off, v=15): a(f"ds_read_b32 v{v}, v0 offset:{off}", tag="chk")
def chk(a, name, off, k, v=15, sleep=0):
    a.wait_lg("chk")
    a.label(f"L_c{name}")
    a(f"v_cmp_gt_u32 vcc, {16 * k if isinstance(k, int) else k}, v{v}")
    a(f"s_cbranch_vccz L_c{name}_ok")
    a("s_add_u32 s3, s3, 1"); a("s_cmp_ge_u32 s3, 0x400000"); a(f"s_cbranch_scc1 L_c{name}_ok")
    if sleep: a(f"s_sleep {sleep}")
    a(f"ds_read_b32 v{v}, v0 offset:{off}"); a.lgq = a.lgq[:-1]
    a("s_waitcnt lgkmcnt(0)")
    a(f"s_branch L_c{name}")
    a.label(f"L_c{name}_ok")

def flag_send(a, srd_, base_sgpr, stride, vt=13):
    a(f"v_mul_u32_u24 v{vt}, {stride}, v1"); a(f"v_mov_b32 v{vt+1}, 1")
    a("s_mov_b64 exec, 15")
    a(f"buffer_store_dword v{vt+1}, v{vt}, s[{srd_}:{srd_+3}], s{base_sgpr} offen{CFG.SS}")
    a("s_mov_b64 exec, -1")
    a.vmq = a.vmq[:-1]
def flag_issue(srd_, line_sgpr, off, tag, va=14, vv=13):
    return [f"v_and_b32 v{va}, 3, v1", f"v_lshlrev_b32 v{va}, 2, v{va}",
            (f"buffer_load_dword v{vv}, v{va}, s[{srd_}:{srd_+3}], s{line_sgpr} offen offset:{off}{CFG.SP}", tag)]
def flag_check(a, name, tag, srd_, line_sgpr, off, va=14, vv=13):
    a.wait_vm(tag)
    a("s_cmp_lg_u32 s36, 0"); a(f"s_cbranch_scc1 L_{name}_ok")
    a.label(f"L_{name}_chk")
    a(f"v_cmp_ne_u32 vcc, 1, v{vv}")
    a(f"s_cbranch_vccz L_{name}_ok")
    a("s_add_u32 s3, s3, 16"); a("s_cmp_ge_u32 s3, 0x400000"); a(f"s_cbranch_scc1 L_{name}_ok")
    a("s_sleep 4")
    a(f"buffer_load_dword v{vv}, v{va}, s[{srd_}:{srd_+3}], s{line_sgpr} offen offset:{off}{CFG.SP}"); a.vmq = a.vmq[:-1]
    a("s_waitcnt vmcnt(0)")
    a(f"s_branch L_{name}_chk")
    a.label(f"L_{name}_ok")

def w_setup(a, for_at):
    if for_at: srd(a, 8, 66, D * D * 2)
    for d, p in ((12, 76), (16, 78)):
        a(f"s_sub_u32 s{d}, s{p}, {BIAS}"); a(f"s_subb_u32 s{d+1}, s{p+1}, 0"); a(f"s_mov_b32 s{d+2}, {D*F*2 + BIAS}"); a(f"s_mov_b32 s{d+3}, 0x20000")
    a("s_bfe_u32 s62, s2, 0x30003"); a("s_lshr_b32 s40, s2, 6"); a("s_lshl_b32 s40, s40, 1"); a("s_add_u32 s62, s62, s40")
    a("s_cmp_ge_u32 s62, 9"); a("s_cselect_b32 s40, 9, 0"); a("s_sub_u32 s62, s62, s40")
    a("s_lshl_b32 s45, s36, 12"); a(f"s_add_u32 s45, s45, {LB}")
def w_table(a):
    for c in range(9):
        a(f"s_add_u32 s{64+c}, s62, {c}"); a(f"s_cmp_ge_u32 s{64+c}, 9"); a("s_cselect_b32 s40, 9, 0"); a(f"s_sub_u32 s{64+c}, s{64+c}, s40")
def w_scalars(a):
    a(f"s_mul_i32 s46, s36, {16*9216}"); a("s_mul_i32 s40, s38, 576"); a("s_add_u32 s46, s46, s40")
    a("s_and_b32 s40, s38, 1")
    a("s_lshl_b32 s41, s40, 6"); a("s_add_u32 s47, s46, s41")
    a("s_xor_b32 s41, s40, 1"); a("s_lshl_b32 s41, s41, 9"); a("s_add_u32 s48, s46, s41"); a(f"s_add_u32 s48, s48, {BIAS}")
    a(f"s_mul_i32 s49, s36, {16*1152}"); a("s_mul_i32 s41, s38, 72"); a("s_add_u32 s49, s49, s41")
def w_voffs(a):
    a("v_lshrrev_b32 v14, 3, v1"); a("v_bfe_u32 v15, v1, 1, 2"); a("v_and_b32 v13, 1, v1"); a("v_lshlrev_b32 v13, 4, v13")
    a("v_and_b32 v5, 2, v14"); a("v_xor_b32 v5, v15, v5")
    a("v_lshrrev_b32 v4, 1, v5"); a("v_mul_u32_u24 v4, 36, v4"); a("v_and_b32 v5, 1, v5"); a("v_lshl_add_u32 v4, v5, 5, v4")
    a("v_mul_u32_u24 v5, 1152, v14"); a("v_add3_u32 v6, v5, v4, v13")
    a("v_lshrrev_b32 v2, 2, v1"); a("v_mul_u32_u24 v2, 9216, v2"); a("v_and_b32 v3, 3, v1"); a("v_lshl_add_u32 v7, v3, 4, v2"); a("v_xor_b32 v8, 32, v7")
    a("v_bfe_u32 v5, v14, 1, 1"); a("v_xor_b32 v5, v15, v5"); a("v_lshl_add_u32 v5, v5, 5, v13")
    a("v_mul_u32_u24 v4, 9216, v14"); a("v_add_u32 v9, v4, v5"); a(f"v_add_u32 v9, {BIAS}, v9"); a(f"v_add_u32 v10, {8*9216 - 1024}, v9")
    for c in range(9): a(f"s_mul_i32 s{64+c}, s{64+c}, {64*9216}")
def wdma(g):
    p, c = divmod(g, 9); slot = g % R
    out = []
    for i in range(4):
        if p == 0:
            hc = 2 * g + (i >> 1); c = hc % 9
            if hc < 9:
                pre = [f"s_lshr_b32 s43, s{64+c}, 3", f"s_add_u32 s43, s43, s49"] if i % 2 == 0 else [f"s_add_u32 s43, s43, {8*1152}"]
                v, srd_ = 6, 8
            else:
                pre = [f"s_add_u32 s43, s{64+c}, s48"] if i % 2 == 0 else []
                v, srd_ = 7 + (i & 1), (12 if i % 2 == 0 else 16)
            out.append(pre + [f"s_add_u32 m0, s45, {slot*SLOT + i*1024}",
                              (f"buffer_load_dwordx4 v{v}, s[{srd_}:{srd_+3}], s43 offen lds", f"w{g}")])
        else:
            pre = []
            if i == 0:
                if g == 9: pre = ["v_xor_b32 v7, 64, v9", "v_subrev_u32 v7, 2048, v7", f"v_add_u32 v8, {8*9216 - 1024}, v7"]
                pre += [f"s_add_u32 m0, s45, {slot*SLOT}", f"s_add_u32 s43, s{64+c}, s47"]
                if c == 8: pre.append("s_add_u32 s47, s47, 128")
            v, srd_ = (9, 10, 7, 8)[i], (12 if i < 2 else 16)
            out.append(pre + [(f"buffer_load_dwordx4 v{v}, s[{srd_}:{srd_+3}], s43 offen offset:{i*1024} lds", f"w{g}")])
    return out
def emit_group_to(a, grp):
    for x in grp:
        if isinstance(x, tuple): a(x[0], tag=x[1])
        else: a(x)

def gen_g(a):
    srd(a, 4, 64, S * D * 2)
    w_setup(a, False)
    a(f"s_mul_i32 s44, s39, {32*1152}")
    a("v_lshrrev_b32 v2, 3, v1"); a("v_and_b32 v3, 7, v1"); a("v_lshrrev_b32 v4, 1, v2"); a("v_xor_b32 v3, v3, v4")
    a("v_mul_u32_u24 v5, 1152, v2"); a("v_lshl_add_u32 v12, v3, 4, v5"); a("v_xor_b32 v13, 64, v12")
    w_table(a)
    def xdma(c, slot):
        a(f"s_lshl_b32 s43, s{64+c}, 7"); a("s_add_u32 s43, s43, s44")
        for i in range(4):
            a(f"s_add_u32 m0, s45, {slot*SLOT + i*1024}")
            a(f"s_add_u32 s42, s43, {8*i*1152}")
            a(f"buffer_load_dwordx4 v{12 + (i&1)}, s[4:7], s42 offen lds", tag=f"x{c}")
    for c in range(7): xdma(c, c)
    w_scalars(a)
    a(f"s_mul_i32 s51, s39, {NSTEP*1024}")
    a(f"s_mul_i32 s41, s38, {18*1024}"); a("s_add_u32 s50, s51, s41")
    a("s_mov_b32 s53, 0x3f803f80"); a("s_mov_b32 s54, 0xffff0000")
    a("v_and_b32 v2, 31, v1"); a("v_lshrrev_b32 v3, 5, v1"); a("v_bfe_u32 v4, v1, 1, 3"); a("v_xor_b32 v3, v3, v4")
    a("v_lshlrev_b32 v2, 7, v2"); a("v_lshl_add_u32 v2, v3, 4, v2"); a("v_add_u32 v2, s45, v2")
    a("v_xor_b32 v3, 32, v2"); a("v_xor_b32 v4, 64, v2"); a("v_xor_b32 v5, 96, v2")
    for k in range(4): a(f"v_add_u32 v{6+k}, {4*SLOT}, v{2+k}")
    st = ACC
    for k in range(4): a(f"v_mov_b32 v{st+k}, 0")
    def stats(c):
        for t in range(4*c, 4*c+4):
            for k in range(4):
                r = XB + 4*t + k
                a(f"v_dot2c_f32_bf16 v{st + (k&1)}, s53, v{r}")
                a(f"v_dot2c_f32_bf16 v{st + 2 + (k&1)}, v{r}, v{r}")
    for c in range(9):
        slot = c if c < 7 else c - 7
        a.wait_vm(f"x{c}")
        for tt in range(4):
            if slot < 4: a(f"ds_read_b128 {X(4*c+tt)}, v{2+tt} offset:{slot*SLOT}", tag=f"xr{c}")
            else: a(f"ds_read_b128 {X(4*c+tt)}, v{6+tt} offset:{(slot-4)*SLOT}", tag=f"xr{c}")
        if c < 2:
            a.wait_lg(f"xr{c}"); xdma(7 + c, c)
        if c > 0:
            a.wait_lg(f"xr{c-1}"); stats(c - 1)
    a.wait_lg0()
    stamps.stamp(a, 1)
    a("s_barrier"); nbar = 1
    def emit_group(grp): emit_group_to(a, grp)
    stats(8)
    a("s_nop 2")
    a(f"v_add_f32 v{st}, v{st}, v{st+1}"); a(f"v_add_f32 v{st+2}, v{st+2}, v{st+3}")
    a(f"v_mov_b32 v{st+1}, v{st}"); a(f"v_mov_b32 v{st+3}, v{st+2}")
    a(f"v_permlane32_swap_b32 v{st}, v{st+1}"); a(f"v_permlane32_swap_b32 v{st+2}, v{st+3}")
    a(f"v_add_f32 v{st}, v{st}, v{st+1}"); a(f"v_add_f32 v{st+2}, v{st+2}, v{st+3}")
    a(f"v_mul_f32 v{st}, {f32(1.0/576):#x}, v{st}"); a(f"v_mul_f32 v{st+2}, {f32(1.0/576):#x}, v{st+2}")
    a(f"v_fma_f32 v{st+2}, -v{st}, v{st}, v{st+2}"); a(f"v_max_f32 v{st+2}, 0, v{st+2}"); a(f"v_add_f32 v{st+2}, {f32(1e-5):#x}, v{st+2}")
    a(f"v_rsq_f32 v{st+2}, v{st+2}")
    a(f"v_mul_f32 v{st+4}, v{st}, v{st+2}"); a(f"v_sub_f32 v{st+4}, 0, v{st+4}")
    a(f"v_mov_b32 v{st+3}, v{st+2}"); a(f"v_mov_b32 v{st+5}, v{st+4}")
    T = ACC + 8
    for r0 in range(0, 144, 4):
        for k in range(4):
            r = XB + r0 + k; t = T + 2*k
            a(f"v_lshlrev_b32 v{t}, 16, v{r}"); a(f"v_and_b32 v{t+1}, s54, v{r}")
        for k in range(4):
            t = T + 2*k
            a(f"v_pk_fma_f32 v[{t}:{t+1}], v[{t}:{t+1}], v[{st+2}:{st+3}], v[{st+4}:{st+5}]")
        for k in range(4):
            r = XB + r0 + k; t = T + 2*k
            a(f"v_cvt_pk_bf16_f32 v{r}, v{t}, v{t+1}")
    w_voffs(a)
    stamps.stamp(a, 2)
    a("s_mov_b32 s60, -1"); a("s_mov_b32 s61, 0")
    a("s_cmp_ge_u32 s38, 2"); a("s_cbranch_scc1 L_g_nokv")
    a("v_lshrrev_b32 v2, 5, v1"); a("v_lshlrev_b32 v2, 3, v2"); a("v_bfe_u32 v3, v1, 2, 2"); a("v_add_u32 v2, v2, v3"); a("v_lshlrev_b32 v2, 6, v2")
    a("v_bfe_u32 v3, v1, 4, 1"); a("v_lshl_add_u32 v2, v3, 5, v2"); a("v_and_b32 v3, 3, v1"); a("v_lshl_add_u32 v2, v3, 3, v2")
    a(f"v_add_u32 v2, {KVIMG}, v2")
    a(f"s_mul_i32 s43, s39, {KV_PITCH}"); a(f"s_add_u32 s43, s43, {KV_OFF}")
    saved_vmq = list(a.vmq)
    def kvpass(isV):
        def rd(t):
            b = FR + 4 * (t % NFR)
            a(f"ds_read_b64_tr_b16 v[{b}:{b+1}], v2 offset:{t*1024}", tag=f"kv{t}")
            a(f"ds_read_b64_tr_b16 v[{b+2}:{b+3}], v2 offset:{t*1024+256}", tag=f"kv{t}")
        for t in range(PF): rd(t)
        for t in range(36):
            b = FR + 4 * (t % NFR)
            a.wait_lg(f"kv{t}")
            cc = "0" if t == 0 else acc(0)
            if isV: a(f"v_mfma_f32_32x32x16_bf16 {acc(0)}, {X(t)}, v[{b}:{b+3}], {cc}")
            else: a(f"v_mfma_f32_32x32x16_bf16 {acc(0)}, v[{b}:{b+3}], {X(t)}, {cc}")
            if t + PF < 36: rd(t + PF)
    a("s_cmp_eq_u32 s38, 1"); a("s_cbranch_scc1 L_g_v")
    kvpass(False)
    B = ACC; T = ACC + 16
    for k in range(5): a(f"v_cvt_pk_bf16_f32 v{T+k}, v{B+2*k}, v{B+2*k+1}")
    a(f"buffer_store_dwordx4 v[{T}:{T+3}], v11, s[28:31], s43 offen{CFG.SS}")
    a(f"v_lshlrev_b32 v3, 2, v1")
    a(f"buffer_store_dword v{T+4}, v3, s[28:31], s43 offen offset:1024{CFG.SS}")
    a(f"v_mul_f32 v{T+8}, v{B+8}, v{B+8}"); a(f"v_fmac_f32 v{T+8}, v{B+9}, v{B+9}"); a(f"v_cndmask_b32 v{T+8}, 0, v{T+8}, s[60:61]")
    for k in range(8): a(f"v_fmac_f32 v{T+8}, v{B+k}, v{B+k}")
    a(f"v_mov_b32 v{T+9}, v{T+8}"); a(f"v_permlane32_swap_b32 v{T+8}, v{T+9}"); a(f"v_add_f32 v{T+8}, v{T+8}, v{T+9}")
    for off in (0x041F, 0x081F, 0x101F, 0x201F, 0x401F):
        a(f"ds_swizzle_b32 v{T+9}, v{T+8} offset:{off:#x}"); a.wait_lg0(); a(f"v_max_f32 v{T+8}, v{T+8}, v{T+9}")
    a(f"s_lshl_b32 s42, s39, 2"); a(f"s_add_u32 s42, s42, {KMAX_OFF}")
    a("v_mov_b32 v3, 0")
    a(f"buffer_store_dword v{T+8}, v3, s[28:31], s42 offen{CFG.SS}")
    a("s_branch L_g_kvdone")
    a.label("L_g_v")
    a.lgq = []
    kvpass(True)
    for k in range(8): a(f"v_cvt_pk_bf16_f32 v{T+k}, v{B+2*k}, v{B+2*k+1}")
    a("v_and_b32 v3, 31, v1"); a("v_cmp_eq_u32 vcc, 18, v3"); a("v_mov_b32 v4, s53")
    for k in range(8): a(f"v_cndmask_b32 v{T+k}, v{T+k}, v4, vcc")
    a("v_lshrrev_b32 v4, 5, v1"); a("v_mul_u32_u24 v4, 304, v4"); a("v_lshl_add_u32 v4, v3, 4, v4")
    a("v_cmp_gt_u32 vcc, 19, v3")
    a("s_and_saveexec_b64 s[56:57], vcc")
    a(f"buffer_store_dwordx4 v[{T}:{T+3}], v4, s[28:31], s43 offen offset:1280{CFG.SS}")
    a(f"buffer_store_dwordx4 v[{T+4}:{T+7}], v4, s[28:31], s43 offen offset:{1280+608}{CFG.SS}")
    a("s_mov_b64 exec, s[56:57]")
    a.label("L_g_kvdone")
    a.label("L_g_nokv")
    a("s_nop 7"); a("s_nop 7")
    a.vmq = saved_vmq; a.lgq = []
    def tr_addrs(p):
        if p == 0:
            return ["v_lshrrev_b32 v13, 5, v1", "v_lshlrev_b32 v2, 10, v13", "v_bfe_u32 v14, v1, 2, 2", "v_lshl_add_u32 v2, v14, 7, v2",
                    "v_and_b32 v15, 2, v14", "v_bfe_u32 v3, v1, 4, 1", "v_xor_b32 v15, v15, v3", "v_lshl_add_u32 v2, v15, 5, v2",
                    "v_and_b32 v15, 3, v1", "v_lshl_add_u32 v2, v15, 3, v2", f"v_add_u32 v2, {LB}, v2", "v_xor_b32 v3, 64, v2",
                    "v_lshl_add_u32 v4, v13, 3, v14", "v_lshlrev_b32 v4, 6, v4", "v_bfe_u32 v13, v1, 4, 1", "v_mul_u32_u24 v13, 1056, v13",
                    "v_add_u32 v4, v4, v13", f"v_add_u32 v4, {LB}, v4", "v_lshl_add_u32 v4, v15, 3, v4", "v_xor_b32 v5, 32, v4"]
        return ["v_bfe_u32 v13, v1, 4, 1", "v_lshrrev_b32 v14, 5, v1", "v_lshl_add_u32 v14, v13, 1, v14", "v_lshlrev_b32 v2, 10, v14",
                "v_bfe_u32 v14, v1, 2, 2", "v_lshl_add_u32 v2, v14, 7, v2", "v_lshrrev_b32 v14, 1, v14", "v_lshl_add_u32 v14, v13, 1, v14",
                "v_lshl_add_u32 v2, v14, 5, v2", "v_and_b32 v14, 3, v1", "v_lshl_add_u32 v2, v14, 3, v2", f"v_add_u32 v2, {LB}, v2",
                "v_xor_b32 v3, 32, v2", "v_xor_b32 v4, 64, v2", "v_xor_b32 v5, 96, v2"]
    for x in tr_addrs(0): a(x)
    chk_issue(a, 8); chk(a, "l0", 8, 1, sleep=1)
    stamps.stamp(a, 3)

    order = [(s, t) for t in range(4) for s in range(4)]
    fa = []
    for hc in range(18):
        for t in range(2):
            for s_ in range(4): fa.append(("a", hc // 2, (hc % 9, s_, (hc % 2) * 2048), t + (2 if hc >= 9 else 0)))
    for g in range(9, NCH):
        for (s_, t) in order: fa.append(("a", g, (g % 9, s_, 0), t))
    frs = fa + [("b", pos, nt, 0) for pos in range(41) for nt in range(9)]
    N1 = NCH * 16
    state = {"slot": 0, "pass": 0}
    fill = []
    def setprio(v):
        if state.get("prio", 0) != v: a(f"s_setprio {v}"); state["prio"] = v
    def rd(n):
        kind, g, s, t = frs[n]
        b = FR + 4 * (n % NFR)
        if kind == "b":
            j = (g + 8) % 12
            if j < 6: a(f"ds_read_b128 v[{b}:{b+3}], v11 offset:{LB + j*9216 + s*1024}", tag=f"f{n}")
            else: a(f"ds_read_b128 v[{b}:{b+3}], v6 offset:{LB + (j-6)*9216 + s*1024}", tag=f"f{n}")
            return
        p = g // 9; slot = g % R
        if p == 1 and state["pass"] == 0:
            for x in tr_addrs(1): a(x)
            state["slot"] = 0
        state["pass"] = p
        hi = 4 if slot >= 4 else 0
        if hi != state["slot"]:
            if g >= APRIO: setprio(2)
            for k in range(4):
                if hi: a(f"v_add_u32 v{2+k}, {4*SLOT}, v{2+k}")
                else: a(f"v_subrev_u32 v{2+k}, {4*SLOT}, v{2+k}")
            state["slot"] = hi
            if not fill: setprio(0)
        jj = 256 if (p == 0 and t >= 2) else 512
        o = (slot - hi) * SLOT + s[1] * 4096 + s[2]
        if 'x4' in EXP and 12 <= g < 36: return
        a(f"ds_read_b64_tr_b16 v[{b}:{b+1}], v{2+t} offset:{o}", tag=f"f{n}")
        a(f"ds_read_b64_tr_b16 v[{b+2}:{b+3}], v{2+t} offset:{o+jj}", tag=f"f{n}")
    def gu_epi(t, pi, p):
        B = ACC + 16*t
        L = []
        for i in range(8): L.append(f"v_max_f32 v{B+i}, 0, v{B+i}")
        for i in range(8): L.append(f"v_mul_f32 v{B+i}, v{B+i}, v{B+8+i}")
        for k in range(4): L.append(f"v_cvt_pk_bf16_f32 v{B+8+k}, v{B+2*k}, v{B+2*k+1}")
        L.append(f"s_add_u32 s52, s50, {pi*1024}")
        L.append((f"buffer_store_dwordx4 v[{B+8}:{B+11}], v11, s[24:27], s52 offen{CFG.SS}", f"hst{p}"))
        return L
    def q_epi(t):
        B = ACC + 16*t
        L = []
        for i in range(10): L.append(f"v_mul_f32 v{B+i}, {f32(QSCALE):#x}, v{B+i}")
        n = B + 10
        L += [f"v_mul_f32 v{n}, v{B+8}, v{B+8}", f"v_fmac_f32 v{n}, v{B+9}, v{B+9}", f"v_cndmask_b32 v{n}, 0, v{n}, s[60:61]"]
        for k in range(8): L.append(f"v_fmac_f32 v{n}, v{B+k}, v{B+k}")
        L += [f"v_mov_b32 v{n+1}, v{n}", f"v_permlane32_swap_b32 v{n}, v{n+1}", f"v_add_f32 v{n}, v{n}, v{n+1}",
              f"v_sqrt_f32 v{n}, v{n}", f"v_mul_f32 v{n}, {f32(-(1+1/64.)):#x}, v{n}",
              f"v_cndmask_b32 v{n}, 0, v{n}, s[60:61]", f"v_cndmask_b32 v{B+8}, 0, v{B+8}, s[60:61]", f"v_cndmask_b32 v{B+9}, 0, v{B+9}, s[60:61]", f"v_mov_b32 v{n+1}, 0"]
        for k in range(4): L.append(f"v_cvt_pk_bf16_f32 v{B+12+k}, v{B+2*k}, v{B+2*k+1}")
        L += [f"v_cvt_pk_bf16_f32 v{B}, v{B+8}, v{B+9}", f"v_cvt_pk_bf16_f32 v{B+1}, v{n}, v{n+1}"]
        L += [f"s_lshl_b32 s52, s39, 5", f"s_lshl_b32 s40, s38, 1", f"s_add_u32 s52, s52, s40", f"s_add_u32 s52, s52, {t}",
              f"s_mul_i32 s52, s52, {Q_PITCH}", f"s_add_u32 s52, s52, {Q_OFF}",
              (f"buffer_store_dwordx4 v[{B+12}:{B+15}], v11, s[28:31], s52 offen", "qst"),
              f"v_lshlrev_b32 v{B+2}, 3, v1",
              (f"buffer_store_dwordx2 v[{B}:{B+1}], v{B+2}, s[28:31], s52 offen offset:1024", "qst")]
        return L
    def emit_fill(nmax, upto_tile=None):
        k = 0
        while fill and (k < nmax or (upto_tile is not None and any(f[0] == upto_tile for f in fill))):
            L = fill[0][2]
            x = L.pop(0)
            if isinstance(x, tuple): a(x[0], tag=x[1])
            else: a(x)
            if not L: fill.pop(0)
            k += 1
    def g2_setup():
        L = []
        A = L.append
        A("s_lshr_b32 s73, s38, 2"); A("s_and_b32 s74, s38, 3")
        A(f"s_add_u32 s8, s86, {PK_OFF}"); A("s_addc_u32 s9, s87, 0"); A(f"s_mov_b32 s10, {PK_BYTES}"); A("s_mov_b32 s11, 0x20000")
        A("s_mov_b32 s20, s82"); A("s_mov_b32 s21, s83"); A(f"s_mov_b32 s22, {S*D*2}"); A("s_mov_b32 s23, 0x20000")
        A(f"s_add_u32 s28, s86, {PART_OFF}"); A("s_addc_u32 s29, s87, 0"); A(f"s_mov_b32 s30, {PART_BYTES}"); A("s_mov_b32 s31, 0x20000")
        A("s_mul_i32 s63, s36, 3072")
        A(f"s_mul_i32 s75, s38, {PK_STREAM}"); A("s_add_u32 s75, s75, s63")
        for k in range(4):
            A(f"s_add_u32 s40, s74, {k}"); A("s_and_b32 s40, s40, 3"); A("s_lshl_b32 s41, s73, 2"); A("s_add_u32 s40, s40, s41")
            A(f"s_mul_i32 s40, s40, {18*1024}"); A(f"s_add_u32 s{76+k}, s40, s51")
        A("s_lshl_b32 s40, s73, 13"); A("s_add_u32 s40, s40, s51"); A(f"s_add_u32 s48, s40, {288*1024}")
        A("s_lshl_b32 s40, s73, 10"); A("s_add_u32 s40, s40, s51"); A(f"s_add_u32 s49, s40, {320*1024}")
        A("s_lshl_b32 s40, s37, 4"); A("s_add_u32 s41, s40, s38"); A("s_lshl_b32 s41, s41, 7"); A(f"s_add_u32 s44, s41, {FL_REL}")
        A("s_and_b32 s41, s38, 12"); A("s_add_u32 s41, s41, s40"); A("s_lshl_b32 s41, s41, 7"); A("s_lshl_b32 s46, s74, 2")
        A("s_add_u32 s41, s41, s46"); A(f"s_add_u32 s46, s41, {FL_REL}")
        A("s_add_u32 s41, s40, s74"); A("s_lshl_b32 s41, s41, 7"); A("s_lshl_b32 s62, s73, 2")
        A("s_add_u32 s41, s41, s62"); A(f"s_add_u32 s62, s41, {FL_REL + 48}")
        A("s_lshl_b32 s40, s37, 2"); A("s_add_u32 s40, s40, s74"); A("s_lshl_b32 s40, s40, 2"); A("s_add_u32 s40, s40, s36")
        A("s_lshl_b32 s40, s40, 2"); A("s_add_u32 s40, s40, s73"); A("s_mul_i32 s57, s40, 9216")
        L2 = L; L = []; A = L.append
        A("v_add_u32 v6, 55296, v11")
        A("v_lshrrev_b32 v13, 4, v1"); A("v_lshrrev_b32 v8, 1, v13"); A("v_and_b32 v13, 1, v13"); A("v_lshlrev_b32 v7, 10, v8"); A("v_lshl_add_u32 v7, v13, 9, v7")
        A("v_and_b32 v13, 15, v1"); A("v_lshl_add_u32 v7, v13, 4, v7")
        A("v_lshlrev_b32 v8, 30, v8"); A("v_add_u32 v8, v8, v7")
        st2["vsetup"] = [L[:4], L[4:]]
        groups = []; cur = []
        for x in L2:
            if len(cur) >= 4 and not x.startswith("s_addc"): groups.append(cur); cur = []
            cur.append(x)
        return groups + [cur]
    def quad(k):
        return [f"s_add_u32 m0, s63, {LB + (ORG2 + QB*k) % RING2}", f"s_add_u32 s42, s75, {QB*k}"] + \
               [(f"buffer_load_dwordx4 v11, s[8:11], s42 offen offset:{j*1024}{CFG.SL} lds", f"q{k}") for j in range(3)]
    def bload(pos):
        if pos < 28: pre = f"s_add_u32 s42, s{76 + pos//7}, {(pos%7)*2048}"
        elif pos < 36: pre = f"s_add_u32 s42, s{76 + (pos-28)//2}, {(7 + (pos-28)%2)*2048}"
        elif pos < 40: pre = f"s_add_u32 s42, s48, {(pos-36)*2048}"
        else: pre = "s_mov_b32 s42, s49"
        b = BR + 8 * (pos % 8); v = 8 if pos == 40 else 7
        return [pre, (f"buffer_load_dwordx4 v[{b}:{b+3}], v{v}, s[24:27], s42 offen{CFG.SL}", f"b{pos}"),
                (f"buffer_load_dwordx4 v[{b+4}:{b+7}], v{v}, s[24:27], s42 offen offset:256{CFG.SL}", f"b{pos}")]
    def quads_for_step(s_): return min(NQ - 1, ((s_ + 1) * 9216 + QB - 1) // QB - 1)
    side = []
    st2 = {"q": 0, "b": 0, "landed": -1}
    def push_quads(upto):
        while st2["q"] <= min(upto, NQ - 1): side.append(quad(st2["q"])); st2["q"] += 1
    def push_b(upto):
        while st2["b"] <= min(upto, 40): side.append(bload(st2["b"])); st2["b"] += 1
    def flush_side():
        while side: emit_group(side.pop(0))
    def land(kq):
        kq = min(kq, st2["q"] - 1 - sum(1 for g in side if isinstance(g[-1], tuple) and g[-1][1].startswith("q")))
        if kq < 0: return
        a.wait_vm([f"q{k}" for k in range(kq + 1)])
        s_ = -1
        while s_ + 1 <= 40 and quads_for_step(s_ + 1) <= kq: s_ += 1
        st2["landed_next"] = s_
    nissued = 0
    lim = {"a": 1}
    def issue_reads(upto):
        nonlocal nissued
        while nissued < min(upto, len(frs)):
            kind, g, s, t = frs[nissued]
            if kind == "b" and g > st2["landed"]: break
            if kind == "a" and g > lim["a"]: break
            rd(nissued); nissued += 1
    def wait_frag(n):
        if f"f{n}" in a.lgq: a.wait_lg([f"f{n}", f"f{n+1}"])
    def do_arrive(I):
        flush_side()
        if I + 2 < NCH: a.wait_vm(f"w{I+2}")
        if I == 0: a("s_waitcnt vmcnt(0)")
        if I == QI: assert a.vmq.count("qst") == 4; a.wait_vm("qst")
        if I == 38: a.wait_vm("hst3")
        if I == 48: assert not fill; a.wait_vm("hst4")
        if I >= 43:
            sl = min(2 * (I - 43) + 1, 40)
            kq = quads_for_step(sl)
            assert kq < st2["q"], (I, kq, st2)
            a.wait_vm([f"q{k}" for k in range(kq + 1)])
            st2["pend"][I] = sl
        if I == 57: a.wait_vm("clr")
        if I == 63: flag_check(a, "c", "cp", 8, 44, 48)
        if I == PKI: poll_check(a, "pk", "pkp", 12, 20, 256, 14, 13)
        if I == 45: flag_check(a, "h", "hp", 8, 44, 0)
        if I == HL - 1: flag_check(a, "hl", "hl", 8, 44, 16)
        if I == OL - 1: flag_check(a, "o", "op", 8, 44, 32)
        arrive(a, 0)
    st2["pend"] = {}
    def do_check(I):
        if I >= APRIO: setprio(2)
        chk(a, f"g{I}", 0, I - LAG)
        if not fill: setprio(0)
        if I == 1: chk_issue(a, 12); chk(a, "l1", 12, 1)
        if I == 3: chk_issue(a, 16); chk(a, "l2", 16, 1)
        lim["a"] = max(3 if I < 3 else 6, I + 1)
        if I - 1 in st2["pend"]: st2["landed"] = st2["pend"][I - 1]
        if I - 1 + R < NCH and not ('x1' in EXP and 12 <= I < 36): side.extend(wdma(I - 1 + R))
        if I == 1:
            a("s_cmp_ge_u32 s38, 2"); a("s_cbranch_scc1 L_g_nopub"); a("s_cmp_lg_u32 s36, 0"); a("s_cbranch_scc1 L_g_nopub")
            a("s_lshl_b32 s40, s37, 1"); a("s_add_u32 s40, s40, s38"); a("s_lshl_b32 s40, s40, 2")
            a("v_mov_b32 v13, 0"); a("v_mov_b32 v14, 1"); a("s_mov_b64 exec, 1")
            a(f"buffer_store_dword v14, v13, s[32:35], s40 offen{CFG.SS}"); a.vmq = a.vmq[:-1]
            a("s_mov_b64 exec, -1")
            a.label("L_g_nopub")
        if I == 20: side.extend(g2_setup())
        if I == PKI - 1: side.append(poll_issue(a, 128, "pkp", 14, 13))
        if I == 39:
            for grp in st2["vsetup"]: emit_group(grp)
        if I == 40: push_b(2)
        if I == 41: push_quads(1); push_b(4)
        if I == 42: push_quads(2); push_b(6)
        if I == 43: push_quads(3)
        if I == 44: push_quads(4)
        if I == 45: push_quads(8)
        if I >= 46: push_quads((2 * (I - 45) * 9216 + RING2) // QB - 1)
        if I in (PKI + 1, 49):
            a("s_cmp_lg_u32 s36, 0"); a(f"s_cbranch_scc1 L_g_nohp{I}")
            if I == 49: a("s_add_u32 s46, s46, 16")
            flag_send(a, 8, 46, 128); a.label(f"L_g_nohp{I}")
        if I == 44: side.append(flag_issue(8, 44, 0, "hp"))
        if I == 46: st2["bcap"] = 27; push_b(10)
        if I == 46: side.append([f"v_mov_b32 v{48+k}, -1" for k in range(4)])
        if 46 <= I <= 54: side.append([(f"buffer_store_dwordx4 v[48:51], v11, s[28:31], s57 offen{CFG.SS}", "clr"), "s_add_u32 s57, s57, 1024"])
        if I == 58:
            a("s_cmp_lg_u32 s36, 0"); a("s_cbranch_scc1 L_g_nocl"); flag_send(a, 8, 62, 512); a.label("L_g_nocl")
            side.extend(xres_groups())
        if I == 61: side.append(flag_issue(8, 44, 48, "cp"))
        if I == HL - 2: side.append(flag_issue(8, 44, 16, "hl"))
        if I == HL: st2["bcap"] = 35
        if I == OL - 2: side.append(flag_issue(8, 44, 32, "op"))
        if I == OL: st2["bcap"] = 40
    st2["bcap"] = 6
    issue_reads(PF)
    for n, (kind, g, s, t) in enumerate(frs):
        b = FR + 4 * (n % NFR)
        if kind == "a":
            p = g // 9; c, s, _ = s
            first = (c == 0 and s == 0)
            if first: emit_fill(0, upto_tile=t)
            wait_frag(n)
            setprio(2 if (g >= APRIO and (fill or (PH and n % PH == 0))) else 0)
            a(f"v_mfma_f32_32x32x16_bf16 {acc(t)}, v[{b}:{b+3}], {X(4*c+s)}, {'0' if first else acc(t)}")
            if not fill: setprio(0)
            if n % 16 == 6 and g > 0 and not ('x2' in EXP and 12 <= g < 36): chk_issue(a, 0)
            if n % 16 == 9 and g > 0: do_check(g)
            issue_reads(n + 1 + PF)
            if side: emit_group(side.pop(0))
            for f in fill: f[1] -= 1
            if fill and fill[0][1] <= 0: emit_fill(FILLN if p else 5)
            if c == 8 and s == 3:
                L = q_epi(t) if (p == 0 and t < 2) else gu_epi(t, (t - 2) if p == 0 else 2 + 4*(p-1) + t, p)
                fill.append([t, 1, L])
            if n % 16 == 15:
                do_arrive(g)
                if g == QI: stamps.stamp(a, 4)
        else:
            pos, nt = g, s
            I = NCH + pos // 2; m = (pos % 2) * 9 + nt
            if nt == 0:
                if pos == 0: stamps.stamp(a, 5)
                assert st2["b"] > pos, pos
                if any(isinstance(x[-1], tuple) and x[-1][1] == f"b{pos}" for x in side): flush_side()
                a.wait_vm(f"b{pos}")
            assert nissued > n, (pos, nt, st2)
            wait_frag(n)
            setprio(2 if (fill or (PH and n % PH == 0)) else 0)
            for rh in range(2):
                bb = BR + 8 * (pos % 8) + 4 * rh
                u = rh * 9 + nt
                a(f"v_mfma_f32_16x16x32_bf16 {acc2(u)}, v[{b}:{b+3}], v[{bb}:{bb+3}], {'0' if pos == 0 else acc2(u)}")
                if rh == 0:
                    if m == 8 and pos < 40: chk_issue(a, 0)
                    if m == 11: do_check(I)
                    issue_reads(n + 1 + PF)
                else:
                    if not fill: setprio(0)
                    if fill: emit_fill(4)
                    elif side: emit_group(side.pop(0))
            if nt == 8:
                if pos % 2 == 1 and pos < 39: do_arrive(I)
                push_b(min(pos + 8, st2["bcap"]))
    flush_side()
    finish(a)
    return nbar

OWN = LB + 18432
def finish(a):
    a("s_lshl_b32 s40, s37, 2"); a("s_add_u32 s40, s40, s74"); a(f"s_mul_i32 s70, s40, {16*9216}")
    a("s_cmp_eq_u32 s36, s73"); a("s_cbranch_scc1 L_g_own")
    a(f"s_lshl_b32 s41, s73, 2"); a("s_add_u32 s41, s41, s36"); a("s_mul_i32 s41, s41, 9216"); a("s_add_u32 s41, s41, s70")
    for r in range(9):
        T = 48 + 4 * (r % 4)
        for k in range(4): a(f"v_cvt_pk_bf16_f32 v{T+k}, v{ACC2+8*r+2*k}, v{ACC2+8*r+2*k+1}")
        if r % 4 == 0 and r: a(f"s_add_u32 s41, s41, 4096")
        a(f"buffer_store_dwordx4 v[{T}:{T+3}], v11, s[28:31], s41 offen offset:{(r%4)*1024}{CFG.SS}")
    a("s_branch L_g_st")
    a.label("L_g_own")
    a("s_nop 7")
    for u in range(18): a(f"ds_write_b128 v11, {acc2(u)} offset:{OWN + u*1024}")
    a.label("L_g_st")
    a.vmq = []; a.lgq = []
    XR = XRES; OW = 76; G = 100
    a("s_mul_i32 s41, s73, 9216"); a("s_add_u32 s41, s41, s70"); a("s_lshl_b32 s42, s36, 10"); a("s_add_u32 s41, s41, s42")
    sj = [71, 72, 43]
    for j in range(3):
        a(f"s_add_u32 s40, s73, {j+1}"); a("s_and_b32 s40, s40, 3"); a(f"s_mul_i32 s40, s40, {4*9216}"); a(f"s_add_u32 s{sj[j]}, s40, s41")
    a("s_movk_i32 s62, 0x1000"); a("s_cmp_eq_u32 s36, 0"); a("s_cselect_b32 s62, 8192, s62"); a("v_add_u32 v7, 4096, v11"); a("v_add_u32 v8, s62, v11")
    vk = [11, 7, 8]
    def loads():
        for k in range(3):
            for j in range(3):
                r = G + 12*k + 4*j
                a(f"buffer_load_dwordx4 v[{r}:{r+3}], v{vk[k]}, s[28:31], s{sj[j]} offen{CFG.SL}")
    loads()
    a("s_waitcnt lgkmcnt(0)")
    a("s_barrier")
    a("s_lshl_b32 s40, s36, 11"); a("v_add_u32 v6, s40, v11")
    for k in range(3):
        for e in range(2): a(f"ds_read_b128 v[{OW+8*k+4*e}:{OW+8*k+4*e+3}], v6 offset:{OWN + k*8192+e*1024}")
    a.label("L_g_gchk")
    a("s_waitcnt vmcnt(0)")
    a(f"v_max3_u32 v2, v{G}, v{G+1}, v{G+2}")
    for q in range(3, 35, 2): a(f"v_max3_u32 v2, v2, v{G+q}, v{G+q+1}")
    a(f"v_max_u32 v2, v2, v{G+35}")
    a("v_cmp_eq_u32 vcc, -1, v2")
    a("s_cbranch_vccz L_g_gok")
    a("s_add_u32 s3, s3, 64"); a("s_cmp_ge_u32 s3, 0x400000"); a("s_cbranch_scc1 L_g_gok")
    loads()
    a("s_branch L_g_gchk")
    a.label("L_g_gok")
    a("s_waitcnt lgkmcnt(0)")
    def fin(k):
        o = OW + 8*k; T = 140
        srcs = [G + 12*k + 4*j for j in range(3)] + [XR + 4*k]
        for r in srcs:
            for q in range(4):
                a(f"v_lshlrev_b32 v{T+2*q}, 16, v{r+q}"); a(f"v_and_b32 v{T+2*q+1}, s54, v{r+q}")
            for q in range(4): a(f"v_pk_add_f32 v[{o+2*q}:{o+2*q+1}], v[{o+2*q}:{o+2*q+1}], v[{T+2*q}:{T+2*q+1}]")
        for q in range(4): a(f"v_cvt_pk_bf16_f32 v{T+8+4*k+q}, v{o+2*q}, v{o+2*q+1}")
        for e in range(2): a(f"buffer_store_dwordx2 v[{T+8+4*k+2*e}:{T+9+4*k+2*e}], v5, s[20:23], s{64+2*k+e} offen{CFG.SO}")
    fin(0); fin(1)
    a("s_cmp_lg_u32 s36, 0"); a("s_cbranch_scc1 L_g_no3")
    fin(2)
    a.label("L_g_no3")
    stamps.flush(a, 0, 55); stamps.tb_flush(a, 12, 55)
    a("s_endpgm")

def xres_groups():
    L = [["s_lshl_b32 s40, s37, 2", "s_add_u32 s40, s40, s73", f"s_mul_i32 s47, s40, {32*1152}", "s_mul_i32 s41, s74, 288", "s_add_u32 s47, s47, s41"],
         ["v_and_b32 v3, 15, v1", "v_mul_u32_u24 v3, 1152, v3", "v_lshrrev_b32 v4, 4, v1", "v_lshl_add_u32 v5, v4, 3, v3"]]
    for k in range(3):
        for e in range(2):
            d = 64 + 2*k + e
            L.append([f"s_lshl_b32 s40, s36, 1", f"s_add_u32 s40, s40, {8*k+e}", "s_cmp_ge_u32 s40, 9", "s_cselect_b32 s41, 9, 0", f"s_cselect_b32 s42, {16*1152}, 0",
                      "s_sub_u32 s41, s40, s41", "s_lshl_b32 s41, s41, 5", "s_add_u32 s41, s41, s42", f"s_add_u32 s{d}, s41, s47",
                      (f"buffer_load_dwordx2 v[{XRES+4*k+2*e}:{XRES+4*k+2*e+1}], v5, s[4:7], s{d} offen", "xres")])
    return L
XRES = 64
```

```python
from dsl import *
from layout import *
import mk, at2, stamps, sys
NAME = "parallel_sum__grouped_kv_mqa__glu_gated_reglu__prompt_kernel"
def build(ts=False, exp=()):
    stamps.ENABLE = ts
    mk.EXP = set(exp)
    a = Asm()
    for l in kernel_header(NAME): a.raw(l)
    a.label('KSTART')
    mk.common(a)
    mk.gen_g(a)
    at2.gen_at(a)
    a.label("L_end"); a("s_endpgm")
    hdr = open("parallel_sum__grouped_kv_mqa__glu_gated_reglu__prompt.s.ref").read().split("; Override launch")[0]
    return (hdr + "; @launch grid=(256,1,1) block=(512,1,1) lds=163840\n" + '.amdgcn_target "amdgcn-amd-amdhsa--gfx950"\n' + a.text() + kernel_desc(NAME, 256)), None
import cfg
if __name__ == "__main__":
    D = "dev/"
    t, info = build(ts=True); open(D + "mk_ts.s", "w").write(t)
    t, info = build(); open(D + "mk.s", "w").write(t)
    stamps.TB = True
    t, info = build(); open(D + "mk_tb.s", "w").write(t)
    stamps.TBC = "s_memtime"
    t, info = build(); open(D + "mk_tc.s", "w").write(t)
    stamps.TB = False
    at2.ALIGN = 1
    t, info = build(); open(D + "mk_al1.s", "w").write(t)
    at2.ALIGN = 0
```

```python
from dsl import *
from layout import *
import stamps, struct
def f32(x): return struct.unpack("<I", struct.pack("<f", x))[0]

import mk
ATB = mk.KVIMG
GRP = 4 * KV_PITCH
Q1 = [16, 24]; Q2 = [20, 28]
S_ = [32, 48]; P_ = [64, 72]; O_ = [80, 96]
K1 = [112, 120]; K2 = [116, 124]
VA = [128, 136]; VB = [132, 140]
aK1, aK2, aV = 2, 3, 4
LTHR = f32(2.0 ** -60)


import cfg as CFG
def srd(a, d, p, nbytes, off=0):
    if off: a(f"s_add_u32 s{d}, s{p}, {off}"); a(f"s_addc_u32 s{d+1}, s{p+1}, 0")
    else: a(f"s_mov_b32 s{d}, s{p}"); a(f"s_mov_b32 s{d+1}, s{p+1}")
    a(f"s_mov_b32 s{d+2}, {nbytes}"); a(f"s_mov_b32 s{d+3}, 0x20000")

NPEEL = 1; APRE = 6; TOUCH0 = False
PACE0 = 6; PACE = 3
def gen_at(a):
    a.label("L_at")
    a.vmq = []; a.lgq = []
    mk.w_setup(a, True)
    a("s_cmp_ge_u32 s38, 2"); a("s_cbranch_scc1 L_at_nokvdma")
    a("s_bitcmp1_b32 s38, 0"); a("s_cselect_b32 s20, s70, s68"); a("s_cselect_b32 s21, s71, s69")
    a(f"s_mov_b32 s22, {D*DH*2}"); a("s_mov_b32 s23, 0x20000")
    a("v_lshrrev_b32 v3, 2, v1"); a("v_mul_u32_u24 v3, 36, v3"); a("v_and_b32 v4, 3, v1"); a("v_lshl_add_u32 v14, v4, 4, v3")
    a(f"s_mul_i32 s40, s36, {9*1024}"); a(f"s_add_u32 s40, s40, {mk.KVIMG}")
    a("s_mul_i32 s41, s36, 9"); a("s_lshl_b32 s42, s62, 2"); a("s_add_u32 s41, s41, s42")
    for t in range(9):
        a(f"s_add_u32 s42, s41, {t}"); a("s_cmp_ge_u32 s42, 36"); a("s_cselect_b32 s43, 36, 0"); a("s_sub_u32 s42, s42, s43"); a("s_mul_i32 s42, s42, 576")
        a(f"s_add_u32 m0, s40, {t*1024}")
        a("buffer_load_dwordx4 v14, s[20:23], s42 offen lds")
    a.label("L_at_nokvdma")
    if "nocp" not in mk.EXP:
        a("s_getpc_b64 s[4:5]")
        a.label("L_pc")
        a("s_sub_u32 s4, s4, L_pc-KSTART"); a("s_subb_u32 s5, s5, 0"); a("s_mov_b32 s6, L_end-KSTART"); a("s_mov_b32 s7, 0x20000")
        a("s_lshr_b32 s40, s2, 3"); a("s_lshl_b32 s40, s40, 2"); a("s_add_u32 s40, s40, s36")
        a("s_mul_hi_u32 s41, s40, 0x1c71c71d"); a("s_mul_i32 s41, s41, 9"); a("s_sub_u32 s40, s40, s41"); a("s_lshl_b32 s40, s40, 13")
        a("v_lshlrev_b32 v2, 7, v1")
        a("buffer_load_dword v20, v2, s[4:7], s40 offen")
    if TOUCH0:
        srd(a, 4, 80, F * D * 2); srd(a, 20, 72, D * D * 2)
        a("s_lshl_b32 s40, s2, 2"); a("s_add_u32 s40, s40, s36"); a(f"s_mul_i32 s41, s40, {41*128}"); a("v_min_u32 v2, 40, v1"); a("v_lshlrev_b32 v2, 7, v2")
        a("buffer_load_dword v20, v2, s[4:7], s41 offen")
        a(f"s_mul_i32 s41, s40, {6*128}"); a("v_min_u32 v2, 5, v1"); a("v_lshlrev_b32 v2, 7, v2")
        a("buffer_load_dword v21, v2, s[20:23], s41 offen")
    a("s_mov_b32 s74, s72"); a("s_mov_b32 s75, s73")
    mk.w_table(a); mk.w_scalars(a); mk.w_voffs(a)
    a(f"s_waitcnt vmcnt({3 if TOUCH0 else 1}) lgkmcnt(0)")
    a("s_barrier")
    def sig(tags, off):
        a.wait_vm(tags)
        a("s_mov_b64 exec, 1"); a(f"ds_add_u32 v0, v0 offset:{off}"); a("s_mov_b64 exec, -1")
    for g in range(mk.R):
        for grp in mk.wdma(g): mk.emit_group_to(a, grp)
        if g == 3: sig(["w0", "w1"], 8)
        if g == 5: sig(["w2", "w3"], 12)
    srd(a, 12, 86, PART_BYTES, PART_OFF)
    a("s_lshl_b32 s40, s37, 4"); a("s_add_u32 s40, s40, s38"); a("s_lshl_b32 s40, s40, 7"); a(f"s_add_u32 s40, s40, {FL_REL}")
    a("v_mov_b32 v2, 0"); a("v_lshlrev_b32 v3, 2, v1")
    a("s_mov_b32 exec_hi, 0"); a(f"buffer_store_dword v2, v3, s[12:15], s40 offen{CFG.SS}", tag="pst"); a("s_mov_b32 exec_hi, -1")
    sig(["w4", "w5", "w6"], 16)
    a("s_cmp_ge_u32 s38, 2"); a("s_cbranch_scc1 L_at_nopubkv")
    a(f"s_lshl_b32 s43, s36, 11"); a(f"s_add_u32 s43, s43, {mk.KVH}"); a("v_add_u32 v3, s43, v11")
    a(f"s_mul_i32 s43, s39, {KV_PITCH}"); a(f"s_add_u32 s43, s43, {KV_OFF}")
    a("v_and_b32 v6, 31, v1"); a("v_lshrrev_b32 v4, 5, v1"); a("v_mul_u32_u24 v4, 304, v4"); a("v_lshl_add_u32 v4, v6, 4, v4"); a("v_lshlrev_b32 v7, 2, v1")
    mk.chk_issue(a, 20); mk.chk(a, "kvh", 20, 1, sleep=1)
    a("ds_read_b128 v[16:19], v3"); a("ds_read_b128 v[20:23], v3 offset:1024"); a("s_waitcnt lgkmcnt(0)")
    a("s_cmp_eq_u32 s38, 1"); a("s_cbranch_scc1 L_at_pubv")
    a(f"buffer_store_dwordx4 v[16:19], v11, s[28:31], s43 offen{CFG.SS}")
    a(f"buffer_store_dword v20, v7, s[28:31], s43 offen offset:1024{CFG.SS}")
    for off in (0x041F, 0x081F, 0x101F, 0x201F, 0x401F):
        a(f"ds_swizzle_b32 v22, v21 offset:{off:#x}"); a("s_waitcnt lgkmcnt(0)"); a("v_max_f32 v21, v21, v22")
    a(f"s_lshl_b32 s42, s39, 2"); a(f"s_add_u32 s42, s42, {KMAX_OFF}"); a("v_mov_b32 v7, 0")
    a(f"buffer_store_dword v21, v7, s[28:31], s42 offen{CFG.SS}")
    a("s_branch L_at_pubf")
    a.label("L_at_pubv")
    a("v_cmp_gt_u32 vcc, 19, v6")
    a("s_and_saveexec_b64 s[56:57], vcc")
    a(f"buffer_store_dwordx4 v[16:19], v4, s[28:31], s43 offen offset:1280{CFG.SS}")
    a(f"buffer_store_dwordx4 v[20:23], v4, s[28:31], s43 offen offset:{1280+608}{CFG.SS}")
    a("s_mov_b64 exec, s[56:57]")
    a.label("L_at_pubf")
    a("s_waitcnt vmcnt(0)")
    a("s_mov_b64 exec, 1"); a("ds_add_u32 v0, v0 offset:24"); a("s_mov_b64 exec, -1")
    a("s_cmp_lg_u32 s36, 0"); a("s_cbranch_scc1 L_at_nopubkv")
    a.lgq = []
    mk.chk_issue(a, 24); mk.chk(a, "kvs", 24, 1)
    a("s_lshl_b32 s40, s37, 1"); a("s_add_u32 s40, s40, s38"); a("s_lshl_b32 s40, s40, 2"); a("v_mov_b32 v7, 0"); a("v_mov_b32 v6, 1")
    a("s_mov_b64 exec, 1"); a(f"buffer_store_dword v6, v7, s[32:35], s40 offen{CFG.SS}"); a("s_mov_b64 exec, -1")
    a.label("L_at_nopubkv")
    a.vmq = ["pst"]; a.lgq = []
    a("v_mov_b32 v5, v11")
    a(f"v_add_u32 v{aK1}, {ATB}, v5")
    a("v_and_b32 v6, 31, v1"); a(f"v_lshlrev_b32 v{aK2}, 2, v6"); a(f"v_add_u32 v{aK2}, {ATB+1024}, v{aK2}")
    a("v_mov_b32 v7, 0"); a("v_cmp_lt_u32 vcc, 27, v6"); a("v_cndmask_b32 v7, v7, 4, vcc")
    a("v_cmp_eq_u32 vcc, 19, v6"); a("v_cndmask_b32 v7, v7, 4, vcc")
    a("v_cmp_eq_u32 vcc, 22, v6"); a("v_cndmask_b32 v7, v7, 18, vcc")
    a("v_cmp_gt_u32 vcc, 19, v6"); a("v_cndmask_b32 v7, v7, v6, vcc")
    a("v_lshrrev_b32 v8, 5, v1"); a("v_mul_u32_u24 v8, 304, v8"); a(f"v_lshl_add_u32 v9, v7, 4, v8")
    a(f"v_add_u32 v{aV}, {ATB+1280}, v9")
    a(f"s_mul_i32 s44, s36, {KV_PITCH}"); a(f"s_add_u32 s45, s44, {KV_OFF}"); a(f"s_add_u32 s44, s44, {ATB}")
    for c in (0, 1):
        for k in range(16): a(f"v_mov_b32 v{O_[c]+k}, 0")
        a(f"v_mov_b32 v{Q2[c]+2}, 0"); a(f"v_mov_b32 v{Q2[c]+3}, 0"); a(f"v_mov_b32 v{K2[c]+2}, 0"); a(f"v_mov_b32 v{K2[c]+3}, 0")
    a("s_lshl_b32 s43, s39, 5"); a("s_lshl_b32 s40, s38, 1"); a("s_add_u32 s43, s43, s40"); a(f"s_mul_i32 s43, s43, {Q_PITCH}"); a(f"s_add_u32 s43, s43, {Q_OFF}")
    a("v_lshlrev_b32 v10, 3, v1")
    a(f"s_add_u32 s10, s45, {16*GRP}"); a("s_bfe_u32 s40, s2, 0x40003"); a(f"s_mul_i32 s40, s40, {GRP}"); a("s_add_u32 s48, s45, s40")
    mk.chk_issue(a, 0); mk.chk(a, "aq", 0, mk.QI + 1, sleep=2)
    for c in (0, 1):
        a(f"buffer_load_dwordx4 v[{Q1[c]}:{Q1[c]+3}], v5, s[28:31], s43 offen offset:{c*Q_PITCH}{CFG.SL}", tag="q")
        a(f"buffer_load_dwordx2 v[{Q2[c]}:{Q2[c]+1}], v10, s[28:31], s43 offen offset:{c*Q_PITCH+1024}{CFG.SL}", tag="q")
    a("s_cmp_lg_u32 s36, 0"); a("s_cbranch_scc1 L_at_go")
    a("v_and_b32 v10, 31, v1"); a("v_lshlrev_b32 v10, 2, v10")
    a.label("L_at_poll")
    a(f"buffer_load_dword v12, v10, s[32:35], 0 offen{CFG.SP}")
    a("s_waitcnt vmcnt(0)")
    a("v_cmp_ne_u32 vcc, 1, v12")
    a("s_cbranch_vccz L_at_go")
    a("s_add_u32 s3, s3, 16"); a("s_cmp_ge_u32 s3, 0x400000"); a("s_cbranch_scc1 L_at_go")
    a("s_sleep 8"); a("s_branch L_at_poll")
    a.label("L_at_go")
    a.vmq = ["pst", "q", "q", "q", "q"]
    mk.arrive(a, 4, 14)
    mk.chk_issue(a, 4); mk.chk(a, "a1", 4, 1, sleep=1)
    stamps.stamp(a, 1)
    def nextgrp():
        a(f"s_add_u32 s48, s48, {GRP}"); a("s_cmp_eq_u32 s48, s10"); a("s_cselect_b32 s48, s45, s48")
    def kvdma(m, slot):
        a(f"s_add_u32 m0, s44, {slot*GRP}")
        for j in range(3): a(f"buffer_load_dwordx4 v5, s[28:31], s48 offen offset:{j*1024}{CFG.SL} lds", tag=f"kv{m}")
        nextgrp()
    a("v_lshlrev_b32 v13, 2, v1")
    a(f"s_mov_b32 s40, {KMAX_OFF}")
    a(f"buffer_load_dword v12, v13, s[28:31], s40 offen{CFG.SL}", tag="km")
    kvdma(0, 0); kvdma(1, 1)
    a.wait_vm("km")
    for off in (0x041F, 0x081F, 0x101F, 0x201F, 0x401F):
        a(f"ds_swizzle_b32 v13, v12 offset:{off:#x}"); a.wait_lg0(); a("v_max_f32 v12, v12, v13")
    a("v_mov_b32 v13, v12"); a("v_permlane32_swap_b32 v12, v13"); a("v_max_f32 v12, v12, v13")
    a("v_sqrt_f32 v12, v12"); a(f"v_mul_f32 v12, {f32(1+1/64.):#x}, v12"); a("v_mov_b32 v13, 0")
    a(f"v_cvt_pk_bf16_f32 v{K2[0]+1}, v12, v13"); a(f"v_mov_b32 v{K2[1]+1}, v{K2[0]+1}")
    a.wait_vm("kv0")
    mk.arrive(a, 4, 14)
    mk.chk_issue(a, 4); mk.chk(a, "a2", 4, 2)
    stamps.stamp(a, 2)
    a("s_setprio 1")

    def rdK(i, b):
        a(f"ds_read_b128 v[{K1[b]}:{K1[b]+3}], v{aK1} offset:{i*KV_PITCH}", tag=f"k{b}")
        a(f"ds_read_b32 v{K2[b]}, v{aK2} offset:{i*KV_PITCH}", tag=f"k{b}")
    def rdV(i, b):
        a(f"ds_read_b128 v[{VA[b]}:{VA[b]+3}], v{aV} offset:{i*KV_PITCH}", tag=f"v{b}")
        a(f"ds_read_b128 v[{VB[b]}:{VB[b]+3}], v{aV} offset:{i*KV_PITCH+608}", tag=f"v{b}")
    def qk(c, b):
        S = S_[c]
        return [f"v_mfma_f32_32x32x16_bf16 v[{S}:{S+15}], v[{K1[b]}:{K1[b]+3}], v[{Q1[c]}:{Q1[c]+3}], 0",
                f"v_mfma_f32_32x32x16_bf16 v[{S}:{S+15}], v[{K2[b]}:{K2[b]+3}], v[{Q2[c]}:{Q2[c]+3}], v[{S}:{S+15}]"]
    def pv(c, b):
        O = O_[c]; P = P_[c]
        return [f"v_mfma_f32_32x32x16_bf16 v[{O}:{O+15}], v[{VA[b]}:{VA[b]+3}], v[{P}:{P+3}], v[{O}:{O+15}]",
                f"v_mfma_f32_32x32x16_bf16 v[{O}:{O+15}], v[{VB[b]}:{VB[b]+3}], v[{P+4}:{P+7}], v[{O}:{O+15}]"]
    def cvt(d, s0):
        if 'perm' in mk.EXP: return f"v_perm_b32 v{d}, v{s0+1}, v{s0}, s60"
        return f"v_cvt_pk_bf16_f32 v{d}, v{s0}, v{s0+1}"
    a("s_mov_b32 s60, 0x07060302")
    def half(i, c, do_qk, do_pv, pre=None, mid=None):
        S = S_[c]; P = P_[c]; cn = 1 - c
        bq = (i + c) & 1
        bv = (i + 1) & 1 if c == 0 else i & 1
        mq = qk(cn, bq) if do_qk else [None, None]
        mp = pv(cn, bv) if do_pv else [None, None]
        slots = [mq[0], mq[1], mp[0], mp[1]]
        for s in range(4):
            if s == 0 and do_qk: a.wait_lg(f"k{bq}")
            if s == 2 and do_pv: a.wait_lg(f"v{bv}")
            if slots[s]: a(slots[s])
            if s == 0 and pre: pre()
            if s == 2 and mid: mid()
            for e in range(4): a(f"v_exp_f32 v{S+4*s+e}, v{S+4*s+e}")
            if s > 0:
                for k in range(2): a(cvt(P+2*(s-1)+k, S+4*(s-1)+2*k))
        for k in range(2): a(cvt(P+6+k, S+12+2*k))
    rdK(0, 0)
    a.wait_vm("q")
    a.wait_lg("k0")
    for m in qk(0, 0): a(m)
    a("s_nop 7"); a("s_nop 3")
    uid = [0]
    def body(first, last, dma, m=None):
        uid[0] += 1; u = uid[0]
        for i in range(4):
            def pre0():
                if i == 3:
                    if not last:
                        a(f"v_add_u32 v{aK1}, s46, v{aK1}"); a(f"v_add_u32 v{aK2}, s46, v{aK2}")
                        rdK(0, 0)
                else:
                    rdK(i + 1, (i + 1) & 1)
                rdV(i, i & 1)
                if i == 3 and not last: a(f"v_add_u32 v{aV}, s46, v{aV}")
                if i == 0 and not first and not last: mk.chk_issue(a, 4)
                if i == 2 and not last: mk.chk_issue(a, 4)
                if i == 3 and not last and PACE: mk.chk_issue(a, 0, v=13)
            for c in (0, 1):
                hs = 2 * i + c
                def mid():
                    if hs == 1 and not first and not last: mk.chk(a, f"w{u}", 4, "s52")
                    if hs == 1 and dma:
                        a("s_mov_b32 m0, s49"); a("s_nop 0")
                        for j in range(3):
                            a(f"buffer_load_dwordx4 v5, s[28:31], s48 offen offset:{j*1024}{CFG.SL} lds", tag=f"kv{m+2}" if m is not None else "kvn")
                    if hs == 3 and not last:
                        if m is None: a(f"s_waitcnt vmcnt({3 if dma else 0})")
                        else: a.wait_vm([f"kv{m+1}"] + (["pst", "clr"] if m == NPEEL - 1 else []))
                        mk.arrive(a, 4, 14); a("s_add_u32 s52, s52, s53")
                        if m is None and dma:
                            a("s_cmp_lg_u32 s50, s61"); a("s_cbranch_scc1 L_at_notouch")
                            a("buffer_load_dword v146, v144, s[4:7], s8 offen"); a("buffer_load_dword v147, v145, s[20:23], s9 offen")
                            a.label("L_at_notouch")
                    if hs == 5 and not last: mk.chk(a, f"r{u}", 4, "s52")
                    if hs == 7 and not last:
                        mk.arrive(a, 4, 14); a("s_add_u32 s52, s52, s53")
                if c == 0: half(i, 0, True, not (first and i == 0), pre=pre0, mid=mid)
                else: half(i, 1, not (last and i == 3), True, mid=mid)
    def advance():
        a("s_add_u32 s47, s47, 1"); a("s_cmp_eq_u32 s47, 3"); a("s_cselect_b32 s47, 0, s47")
        a("s_cmp_eq_u32 s47, 2"); a(f"s_cselect_b32 s46, {(-2*GRP) & 0xffffffff:#x}, s63")
        nextgrp()
        a(f"s_add_u32 s49, s49, {GRP}"); a(f"s_add_u32 s40, s44, {3*GRP}"); a("s_cmp_eq_u32 s49, s40"); a("s_cselect_b32 s49, s44, s49")
        if PACE:
            uid[0] += 1
            a("s_add_u32 s54, s54, s57")
            mk.chk(a, f"p{uid[0]}", 0, "s54", v=13, sleep=2)
    a("s_mov_b32 s47, 0"); a(f"s_mov_b32 s46, {GRP}"); a(f"s_mov_b32 s63, {GRP}"); a(f"s_add_u32 s49, s44, {2*GRP}")
    a("s_mov_b32 s53, 16"); a("s_mov_b32 s52, 32")
    a(f"s_mov_b32 s54, {PACE0*16}"); a(f"s_mov_b32 s57, {PACE*16}")
    a("s_bfe_u32 s61, s2, 0x30003"); a("s_add_u32 s61, s61, 3")
    srd(a, 4, 80, F * D * 2); srd(a, 20, 74, D * D * 2)
    a("s_lshl_b32 s40, s2, 2"); a("s_add_u32 s40, s40, s36"); a(f"s_mul_i32 s8, s40, {41*128}"); a(f"s_mul_i32 s9, s40, {6*128}")
    a("v_min_u32 v144, 40, v1"); a("v_lshlrev_b32 v144, 7, v144"); a("v_min_u32 v145, 5, v1"); a("v_lshlrev_b32 v145, 7, v145")
    a("s_bfe_u32 s62, s2, 0x10003"); a(f"s_sub_u32 s62, {14 - NPEEL}, s62"); a("s_cmp_lg_u32 s36, 0"); a("s_cselect_b32 s62, 99, s62")
    for m in range(NPEEL):
        body(m == 0, False, True, m)
        advance()
    a(f"s_mov_b32 s50, {14 - NPEEL}")
    if "noat" in mk.EXP:
        a("s_cmp_lg_u32 s36, 0"); a("s_cbranch_scc1 L_at_fin")
        a("v_mov_b32 v12, 128"); a("v_mov_b32 v10, 4096"); a("s_mov_b64 exec, 1"); a("buffer_atomic_add v10, v12, s[32:35], 0 offen"); a("s_mov_b64 exec, -1")
        a("s_branch L_at_fin")
    lg_in = list(a.lgq)
    i0 = len(a.items)
    a.label("L_at_loop")
    body(False, False, True)
    a("s_cmp_lg_u32 s50, s62"); a("s_cbranch_scc1 L_at_nopk")
    a("v_mov_b32 v12, 128"); a("v_mov_b32 v10, 4096"); a("s_mov_b64 exec, 1"); a("buffer_atomic_add v10, v12, s[32:35], 0 offen"); a("s_mov_b64 exec, -1")
    a.label("L_at_nopk")
    advance()
    a("s_sub_u32 s50, s50, 1"); a("s_cmp_lg_u32 s50, 0"); a("s_cbranch_scc1 L_at_loop")
    assert a.lgq == lg_in, (a.lgq, lg_in)
    loop_ins = [x for x in a.items[i0:] if not isinstance(x, str)]
    assert check_backedge(loop_ins, loop_ins) == 0
    body(False, False, False)
    advance()
    body(False, True, False)
    for m in pv(1, 1): a(m)
    a("s_setprio 0")
    stamps.stamp(a, 3)
    a("s_nop 15")
    a(f"v_min_f32 v12, v{O_[0]+10}, v{O_[1]+10}")
    a(f"s_mov_b32 s40, {LTHR:#x}")
    a("v_cmp_nle_f32 vcc, s40, v12")
    a("s_nop 4")
    a("s_cbranch_vccz L_at_fin")
    fallback(a)
    a.label("L_at_fin")
    a(f"s_mul_i32 s43, s39, {NSTEP}"); a("s_lshl_b32 s40, s38, 1"); a("s_add_u32 s41, s43, s40"); a("s_add_u32 s41, s41, 288"); a("s_lshl_b32 s41, s41, 10")
    a("s_lshr_b32 s42, s40, 3"); a("s_add_u32 s43, s43, s42"); a("s_add_u32 s43, s43, 320"); a("s_lshl_b32 s43, s43, 10")
    a("s_and_b32 s42, s38, 1"); a("s_lshl_b32 s42, s42, 9"); a("s_add_u32 s43, s43, s42")
    a("s_bfe_u32 s42, s38, 0x10001"); a("s_lshl_b32 s42, s42, 3"); a("s_add_u32 s43, s43, s42")
    for c in (0, 1):
        O = O_[c]; T = S_[c]
        a(f"v_rcp_f32 v{T}, v{O+10}")
        for k in range(10): a(f"v_mul_f32 v{O+k}, v{O+k}, v{T}")
        for k in range(5): a(f"v_cvt_pk_bf16_f32 v{T+4+k}, v{O+2*k}, v{O+2*k+1}")
        a(f"buffer_store_dwordx4 v[{T+4}:{T+7}], v5, s[24:27], s41 offen offset:{c*1024}{CFG.SS}")
    a("s_mov_b32 exec_hi, 0")
    a(f"v_mov_b32 v{S_[0]+9}, v{S_[1]+8}")
    a(f"buffer_store_dwordx2 v[{S_[0]+8}:{S_[0]+9}], v5, s[24:27], s43 offen{CFG.SS}")
    a("s_mov_b32 exec_hi, -1")
    a("s_waitcnt vmcnt(0)")
    mk.arrive(a, 4, 14); a("s_add_u32 s52, s52, s53")
    a("s_cmp_lg_u32 s36, 0"); a("s_cbranch_scc1 L_at_nopub")
    a.lgq = []
    mk.chk_issue(a, 4); mk.chk(a, "fin", 4, "s52", sleep=1)
    a("s_lshl_b32 s40, s37, 4"); a("s_and_b32 s41, s38, 12"); a("s_add_u32 s40, s40, s41"); a("s_lshl_b32 s40, s40, 7")
    a("s_and_b32 s41, s38, 3"); a("s_lshl_b32 s41, s41, 2"); a("s_add_u32 s40, s40, s41"); a(f"s_add_u32 s40, s40, {FL_REL + 32}")
    mk.flag_send(a, 12, 40, 128, 12)
    a.label("L_at_nopub")
    for i in (4, 5): stamps.stamp(a, i)
    stamps.flush(a, 0, 55); stamps.tb_flush(a, 14, 55)

def fallback(a):
    a("v_and_b32 v6, 31, v1"); a("v_lshlrev_b32 v6, 2, v6")
    M = [P_[0], P_[1]]
    for c in (0, 1): a(f"v_mov_b32 v{M[c]}, 0xff800000")
    a(f"v_mov_b32 v{K2[0]+1}, 0")
    a(f"s_mov_b32 s42, {KV_OFF}")
    a.label("L_fb1")
    a(f"buffer_load_dwordx4 v[{K1[0]}:{K1[0]+3}], v5, s[28:31], s42 offen{CFG.SL}")
    a(f"buffer_load_dword v{K2[0]}, v6, s[28:31], s42 offen offset:1024{CFG.SL}")
    a("s_waitcnt vmcnt(0)")
    for c in (0, 1):
        S = S_[c]
        a(f"v_mfma_f32_32x32x16_bf16 v[{S}:{S+15}], v[{K1[0]}:{K1[0]+3}], v[{Q1[c]}:{Q1[c]+3}], 0")
        a(f"v_mfma_f32_32x32x16_bf16 v[{S}:{S+15}], v[{K2[0]}:{K2[0]+3}], v[{Q2[c]}:{Q2[c]+3}], v[{S}:{S+15}]")
    for c in (0, 1):
        S = S_[c]
        for k in range(8): a(f"v_max3_f32 v{M[c]}, v{M[c]}, v{S+2*k}, v{S+2*k+1}")
    a(f"s_add_u32 s42, s42, {KV_PITCH}"); a(f"s_cmp_lt_u32 s42, {KV_OFF + KV_BYTES}"); a("s_cbranch_scc1 L_fb1")
    a("v_cmp_gt_u32 vcc, 32, v1")
    a("s_mov_b32 s54, 0xffff0000")
    for c in (0, 1):
        m = M[c]; t = m + 1
        a(f"v_mov_b32 v{t}, v{m}"); a(f"v_permlane32_swap_b32 v{m}, v{t}"); a(f"v_max_f32 v{m}, v{m}, v{t}")
        a(f"v_sub_f32 v{m}, 0, v{m}")
        a(f"v_and_b32 v{t}, s54, v{m}"); a(f"v_sub_f32 v{m}, v{m}, v{t}")
        a(f"v_and_b32 v{t+1}, s54, v{m}"); a(f"v_sub_f32 v{m}, v{m}, v{t+1}")
        a(f"v_lshrrev_b32 v{t}, 16, v{t}"); a(f"v_or_b32 v{t}, v{t}, v{t+1}")
        a(f"v_lshrrev_b32 v{m}, 16, v{m}")
        a(f"v_cndmask_b32 v{Q2[c]+1}, 0, v{t}, vcc"); a(f"v_cndmask_b32 v{Q2[c]+2}, 0, v{m}, vcc")
        for k in range(16): a(f"v_mov_b32 v{O_[c]+k}, 0")
    a(f"v_mov_b32 v{K2[0]+1}, 0x3f803f80"); a(f"v_mov_b32 v{K2[0]+2}, 0x3f80")
    a(f"s_mov_b32 s42, {KV_OFF}")
    a.label("L_fb2")
    a(f"buffer_load_dwordx4 v[{K1[0]}:{K1[0]+3}], v5, s[28:31], s42 offen{CFG.SL}")
    a(f"buffer_load_dword v{K2[0]}, v6, s[28:31], s42 offen offset:1024{CFG.SL}")
    a(f"buffer_load_dwordx4 v[{VA[0]}:{VA[0]+3}], v9, s[28:31], s42 offen offset:1280{CFG.SL}")
    a(f"buffer_load_dwordx4 v[{VB[0]}:{VB[0]+3}], v9, s[28:31], s42 offen offset:{1280+608}{CFG.SL}")
    a("s_waitcnt vmcnt(0)")
    for c in (0, 1):
        S = S_[c]
        a(f"v_mfma_f32_32x32x16_bf16 v[{S}:{S+15}], v[{K1[0]}:{K1[0]+3}], v[{Q1[c]}:{Q1[c]+3}], 0")
        a(f"v_mfma_f32_32x32x16_bf16 v[{S}:{S+15}], v[{K2[0]}:{K2[0]+3}], v[{Q2[c]}:{Q2[c]+3}], v[{S}:{S+15}]")
    for c in (0, 1):
        S = S_[c]; P = P_[c]; O = O_[c]
        for k in range(16): a(f"v_exp_f32 v{S+k}, v{S+k}")
        for k in range(8): a(f"v_cvt_pk_bf16_f32 v{P+k}, v{S+2*k}, v{S+2*k+1}")
        a(f"v_mfma_f32_32x32x16_bf16 v[{O}:{O+15}], v[{VA[0]}:{VA[0]+3}], v[{P}:{P+3}], v[{O}:{O+15}]")
        a(f"v_mfma_f32_32x32x16_bf16 v[{O}:{O+15}], v[{VB[0]}:{VB[0]+3}], v[{P+4}:{P+7}], v[{O}:{O+15}]")
    a("s_nop 7")
    a(f"s_add_u32 s42, s42, {KV_PITCH}"); a(f"s_cmp_lt_u32 s42, {KV_OFF + KV_BYTES}"); a("s_cbranch_scc1 L_fb2")
    a("s_nop 15")
    a.vmq = []
```

```python
import re

TRANS = ("v_exp_f32", "v_log_f32", "v_rcp_f32", "v_rsq_f32", "v_sqrt_f32", "v_sin_f32", "v_cos_f32")

def regs_of(tok):
    tok = tok.strip()
    tok = re.sub(r"^-", "", tok)
    m = re.match(r"^abs\((.*)\)$", tok)
    if m: tok = m.group(1)
    m = re.match(r"^\|(.*)\|$", tok)
    if m: tok = m.group(1)
    m = re.match(r"^([vsa])(\d+)$", tok)
    if m: return {(m.group(1), int(m.group(2)))}
    m = re.match(r"^([vsa])\[(\d+):(\d+)\]$", tok)
    if m: return {(m.group(1), i) for i in range(int(m.group(2)), int(m.group(3)) + 1)}
    if tok in ("vcc", "vcc_lo", "vcc_hi"): return {("s", "vcc")}
    if tok in ("exec", "exec_lo", "exec_hi"): return {("s", "exec")}
    if tok == "m0": return {("s", "m0")}
    return set()

class Ins:
    __slots__ = ("text", "op", "rd", "wr", "kind", "passes", "srcc", "srcab", "states")
    def __init__(self, text):
        self.text = text
        t = text.split(";")[0].strip()
        parts = t.split(None, 1)
        self.op = op = parts[0]
        ops = []
        if len(parts) > 1:
            rest = parts[1]
            cur = ""; depth = 0
            for ch in rest:
                if ch in "[(": depth += 1
                if ch in "])": depth -= 1
                if ch == "," and depth == 0: ops.append(cur.strip()); cur = ""
                else: cur += ch
            ops.append(cur.strip())
            last = ops[-1].split()
            ops[-1] = last[0] if last else ""
            mods = last[1:]
        else:
            mods = []
        self.rd = set(); self.wr = set(); self.passes = 0; self.srcc = set(); self.srcab = set(); self.states = 1
        R = [regs_of(o) for o in ops]
        base = re.sub(r"_(e32|e64|dpp|sdwa)$", "", op)
        if op == "s_nop":
            self.kind = "nop"; self.states = int(ops[0], 0) + 1
        elif op.startswith("v_mfma"):
            self.kind = "mfma"; self.wr = R[0]; self.srcab = R[1] | R[2]; self.srcc = R[3]; self.rd = self.srcab | self.srcc
            self.passes = 8 if "32x32x16" in op else 4 if "16x16x32" in op else None
            assert self.passes
        elif op.startswith("v_cmp"):
            self.kind = "valu"; self.wr = R[0]; self.rd = set().union(*R[1:])
        elif op.startswith("v_readfirstlane") or op.startswith("v_readlane"):
            self.kind = "valu_rl"; self.wr = R[0]; self.rd = set().union(*R[1:])
        elif op.startswith("v_permlane"):
            self.kind = "valu_perm"; self.wr = R[0] | R[1]; self.rd = R[0] | R[1]
        elif op.startswith("v_"):
            self.kind = "trans" if base in TRANS else "valu"
            if "dpp" in op or any(m.startswith(("row_", "quad_perm")) for m in mods): self.kind = "valu_dpp"
            self.wr = R[0]; self.rd = set().union(*R[1:]) if len(R) > 1 else set()
            if base in ("v_fmac_f32", "v_dot2c_f32_bf16", "v_pk_fmac_f16"): self.rd |= R[0]
            if base in ("v_add_co_u32", "v_sub_co_u32", "v_addc_co_u32"): self.wr |= R[1]
            if base == "v_cndmask_b32" and len(ops) == 3: self.rd |= {("s", "vcc")}
        elif op.startswith("ds_"):
            self.kind = "ds"
            if op.startswith(("ds_read", "ds_bpermute", "ds_swizzle", "ds_permute")) or "_rtn" in op:
                self.wr = R[0]; self.rd = set().union(*R[1:])
            else:
                self.rd = set().union(*R)
        elif op.startswith(("buffer_", "global_")):
            self.kind = "vmem"
            if "lds" in mods or "_lds_" in op:
                self.kind = "vmem_lds"; self.rd = set().union(*R) | {("s", "m0")}
            elif "load" in op:
                self.wr = R[0]; self.rd = set().union(*R[1:])
            elif "atomic" in op:
                self.rd = set().union(*R)
                if "sc0" in mods: self.wr = R[0]
            elif "store" in op:
                self.kind = "vmem_store"; self.rd = set().union(*R)
                self.srcc = (R[0] if op.startswith("buffer_") else R[1]) if ("x4" in op or "x3" in op) else set()
            else:
                self.rd = set().union(*R) if R else set()
        elif op.startswith("s_"):
            self.kind = "salu"
            if op.startswith(("s_cmp", "s_cbranch", "s_branch", "s_waitcnt", "s_barrier", "s_endpgm", "s_setprio", "s_sleep", "s_bitcmp")):
                self.rd = set().union(*R) if R else set()
            else:
                self.wr = R[0] if R else set(); self.rd = set().union(*R[1:]) if len(R) > 1 else set()
                if "saveexec" in op: self.wr |= {("s", "exec")}
        else:
            raise ValueError("unknown op " + text)

def need_states(p, c):
    n = 0
    pv = p.kind in ("valu", "trans", "valu_rl", "valu_perm", "valu_dpp")
    cv = c.kind in ("valu", "trans", "valu_rl", "valu_perm", "valu_dpp")
    vw = {r for r in p.wr if r[0] in "va"}
    sw = {r for r in p.wr if r[0] == "s"}
    if pv:
        if c.kind == "mfma" and vw & c.rd: n = max(n, 2)
        if c.kind == "valu_perm" and vw & c.rd: n = max(n, 2)
        if c.kind == "valu_dpp" and vw & c.rd: n = max(n, 2)
        if c.kind == "valu_rl" and vw & c.rd: n = max(n, 1)
        if p.kind == "trans" and cv and c.kind != "trans" and vw & c.rd: n = max(n, 1)
        if p.kind == "trans" and c.kind == "trans" and vw & c.rd: n = max(n, 1)
        if sw & c.rd:
            if cv: n = max(n, 4 if c.kind == "valu_rl" else 2)
            if c.kind.startswith("vmem"): n = max(n, 5)
            if c.kind == "salu": n = max(n, 2)
        if ("s", "exec") in sw: n = max(n, 5)
    if p.kind == "mfma":
        big = {8: 12, 4: 8}[p.passes]; ovl = {8: 10, 4: 6}[p.passes]; war = {8: 7, 4: 3}[p.passes]
        if c.kind == "mfma":
            if p.wr & c.srcab: n = max(n, big)
            if p.wr & c.srcc and not (p.wr == c.srcc and p.passes == c.passes): n = max(n, ovl)
            if p.wr & c.wr and not (p.wr == c.srcc and p.passes == c.passes): n = max(n, ovl)
        else:
            if p.wr & (c.rd | c.wr): n = max(n, big)
            if cv and p.srcc & c.wr: n = max(n, war)
            if c.kind in ("ds", "vmem") and p.srcc & c.wr: n = max(n, war)
    if p.kind == "salu" and ("s", "m0") in p.wr and c.kind == "vmem_lds": n = max(n, 1)
    if p.kind == "salu" and ("s", "exec") in p.wr and c.kind in ("valu_dpp","valu_perm","valu_rl"): n = max(n, 1)
    if p.kind == "vmem_store" and p.srcc & c.wr: n = max(n, 2)
    return n

class Asm:
    def __init__(self):
        self.items = []
        self.vmq = []
        self.lgq = []
    def raw(self, s): self.items.append(s)
    def label(self, s): self.items.append(s + ":")
    def __call__(self, text, tag=None):
        ins = Ins(text)
        self.items.append(ins)
        if ins.kind.startswith("vmem") and not ins.op.startswith(("buffer_inv","buffer_wbl2")): self.vmq.append(tag)
        elif ins.kind == "ds": self.lgq.append(tag)
        return ins
    def wait_vm(self, tags, extra=""):
        if not isinstance(tags, (list, tuple, set)): tags = [tags]
        idx = [i for i, t in enumerate(self.vmq) if t in tags]
        if not idx: return
        n = len(self.vmq) - 1 - max(idx)
        assert n <= 63
        self(f"s_waitcnt vmcnt({n})")
        self.vmq = self.vmq[max(idx) + 1:]
    def wait_vm0(self):
        self("s_waitcnt vmcnt(0)"); self.vmq = []
    def wait_lg(self, tags):
        if not isinstance(tags, (list, tuple, set)): tags = [tags]
        idx = [i for i, t in enumerate(self.lgq) if t in tags]
        if not idx: return
        n = len(self.lgq) - 1 - max(idx)
        n = min(n, 15)
        self(f"s_waitcnt lgkmcnt({n})")
        self.lgq = self.lgq[len(self.lgq) - n:] if n else []
    def wait_lg0(self):
        self("s_waitcnt lgkmcnt(0)"); self.lgq = []
    def text(self):
        out = []
        hists = [[]]
        pending = {}
        def need_for(it):
            need = 0
            for hist in hists:
                dist = 0
                for p in reversed(hist):
                    n = need_states(p, it)
                    if n - dist > need: need = n - dist
                    dist += p.states
                    if dist > 24: break
            return need
        def push(x):
            for k in range(len(hists)):
                hists[k].append(x)
                if len(hists[k]) > 30: hists[k] = hists[k][-30:]
        age = [0]
        for it in self.items:
            if isinstance(it, str):
                out.append(it)
                if it.endswith(":") and it[:-1] in pending:
                    for h in pending.pop(it[:-1]): hists.append(list(h)); age.append(0)
                continue
            need = need_for(it)
            while need > 0:
                k = min(need, 16)
                nop = Ins(f"s_nop {k-1}")
                out.append("    " + nop.text); push(nop); need -= k
            out.append("    " + it.text); push(it)
            for k in range(1, len(age)): age[k] += 1
            keep = [0] + [k for k in range(1, len(hists)) if age[k] < 26]
            hists[:] = [hists[k] for k in keep]; age[:] = [age[k] for k in keep]
            if it.op.startswith(("s_cbranch", "s_branch")):
                tgt = it.text.split()[1]
                for h in hists: pending.setdefault(tgt, []).append(list(h))
                if it.op == "s_branch": hists[:] = [[]]; age[:] = [0]
        return "\n".join(out) + "\n"

def check_backedge(items_tail, items_head):
    need = 0
    for ci, c in enumerate(items_head[:24]):
        d0 = sum(x.states for x in items_head[:ci])
        dist = d0
        for p in reversed(items_tail[-24:]):
            n = need_states(p, c)
            if n - dist > need: need = n - dist
            dist += p.states
    return need

def kernel_header(name):
    return [".text", f".globl {name}", ".p2align 8", f".type {name},@function", f"{name}:"]

def kernel_desc(name, vgpr, sgpr=102, acc=None):
    if acc is None: acc = (vgpr + 3) // 4 * 4
    return "\n".join(['.section .rodata,"a"', ".p2align 6", f".amdhsa_kernel {name}",
        f"  .amdhsa_next_free_vgpr {vgpr}", f"  .amdhsa_next_free_sgpr {sgpr}", f"  .amdhsa_accum_offset {acc}",
        "  .amdhsa_group_segment_fixed_size 0", "  .amdhsa_kernarg_size 96", "  .amdhsa_user_sgpr_count 2",
        "  .amdhsa_user_sgpr_kernarg_segment_ptr 1", "  .amdhsa_system_sgpr_workgroup_id_x 1", ".end_amdhsa_kernel"]) + "\n"
```

```python
S = 2048; D = 576; F = 4608; NH = 32; DH = 18
NSTEP = 324
H_OFF = 0
H_BYTES = 64 * NSTEP * 1024
SM_OFF = 0x1480000
KV_OFF = 0
KV_PITCH = 3072
KV_BYTES = 64 * KV_PITCH
KMAX_OFF = KV_OFF + KV_BYTES
KVF_OFF = KMAX_OFF + 1024
Q_OFF = KVF_OFF + 4096
Q_PITCH = 1536
Q_BYTES = 64 * 32 * Q_PITCH
SM_BYTES = Q_OFF
PART_OFF = 0x1500000
FL_REL = 64 * 4 * 4 * 9 * 1024
PART_BYTES = FL_REL + 256 * 128
import math
QSCALE = math.log2(math.e) / math.sqrt(18.0)
TS_OFF = 0x3800000
TS_KPITCH = 256 * 8 * 64
```

```python
from dsl import *
from layout import *
import stamps, struct
def f32(x): return struct.unpack("<I", struct.pack("<f", x))[0]
EXP = set()
import cfg as CFG

XB = 112; ACC = 48; FR = 16; NFR = 8
LB = 1024
BIAS = 4096
SLOT = 16384; R = 7; KVIMG = LB + 7 * SLOT; PF = 6
NCH = 45
KVH = KVIMG + 36864
PITCH2 = 320; STEP2 = 32 * PITCH2; GRP2 = 2 * STEP2; NRING2 = 5; NG2 = 21
ACC2 = 176; BR = 112
NQ = 31; QB = 12288
PRIO = False; FILLN = 2; PH = 3
HL = 56; OL = 61; PKI = 37; VO1 = 52; VO2 = 57; LAG = 0; QI = 5; APRIO = 6
def X(t): return f"v[{XB+4*t}:{XB+4*t+3}]"
def acc(c): return f"v[{ACC+16*c}:{ACC+16*c+15}]"
def acc2(u): return f"v[{ACC2+4*u}:{ACC2+4*u+3}]"
def acc32(t): return f"v[{ACC2+16*t}:{ACC2+16*t+15}]"
RA = 2

def srd(a, d, p, nbytes, off=0):
    if off: a(f"s_add_u32 s{d}, s{p}, {off}"); a(f"s_addc_u32 s{d+1}, s{p+1}, 0")
    else: a(f"s_mov_b32 s{d}, s{p}"); a(f"s_mov_b32 s{d+1}, s{p+1}")
    a(f"s_mov_b32 s{d+2}, {nbytes}"); a(f"s_mov_b32 s{d+3}, 0x20000")

def common(a):
    a("s_cmp_ge_u32 s2, 256"); a("s_cbranch_scc1 L_end")
    a("s_load_dwordx16 s[64:79], s[0:1], 0"); a("s_load_dwordx8 s[80:87], s[0:1], 64")
    a("v_lshrrev_b32 v2, 6, v0"); a("v_and_b32 v1, 63, v0"); a("v_readfirstlane_b32 s55, v2")
    stamps.stamp(a, 0)
    a("s_and_b32 s40, s2, 7"); a("s_lshr_b32 s41, s2, 3")
    a("s_and_b32 s37, s40, 1"); a("s_lshl_b32 s37, s37, 3"); a("s_and_b32 s42, s41, 7"); a("s_add_u32 s37, s37, s42")
    a("s_lshr_b32 s38, s40, 1"); a("s_lshl_b32 s38, s38, 2"); a("s_lshr_b32 s42, s41, 3"); a("s_add_u32 s38, s38, s42")
    a("s_and_b32 s36, s55, 3"); a("s_mov_b32 s3, 0")
    a("s_lshl_b32 s39, s37, 2"); a("s_add_u32 s39, s39, s36")
    a("v_lshlrev_b32 v11, 4, v1")
    a("s_waitcnt lgkmcnt(0)")
    srd(a, 24, 86, H_BYTES, H_OFF); srd(a, 28, 86, SM_BYTES, SM_OFF); srd(a, 32, 84, 256)
    a("v_mov_b32 v0, 4")
    a("v_mov_b32 v2, 0"); a("v_mov_b32 v3, 0"); a("ds_write_b64 v2, v[2:3]"); a("ds_write_b64 v2, v[2:3] offset:8"); a("ds_write_b64 v2, v[2:3] offset:16"); a("ds_write_b64 v2, v[2:3] offset:24")
    stamps.tb_init(a, 12)
    a("s_cmp_ge_u32 s55, 4"); a("s_cbranch_scc1 L_at")

def atomic_inc(a, label, off_expr_sgpr, val, vt=13):
    a(f"v_mov_b32 v{vt}, {off_expr_sgpr}"); a(f"v_mov_b32 v{vt+1}, {val}")
    a("s_mov_b64 exec, 1")
    a(f"buffer_atomic_add v{vt+1}, v{vt}, s[32:35], 0 offen")
    a("s_mov_b64 exec, -1")
    a.vmq = a.vmq[:-1]

def poll_issue(a, off, tag, va=14, vv=15):
    return [f"v_mov_b32 v{va}, {off}", (f"buffer_load_dword v{vv}, v{va}, s[32:35], 0 offen{CFG.SP}", tag)]
def poll_check(a, name, tag, shift, width, target, va=14, vv=15):
    a.wait_vm(tag)
    a("s_cmp_lg_u32 s36, 0"); a(f"s_cbranch_scc1 L_{name}_ok")
    a("s_mov_b32 s56, 0")
    a.label(f"L_{name}_chk")
    a(f"v_readfirstlane_b32 s40, v{vv}")
    a(f"s_bfe_u32 s40, s40, {shift | (width << 16):#x}")
    a(f"s_cmp_ge_u32 s40, {target}")
    a(f"s_cbranch_scc1 L_{name}_ok")
    a("s_add_u32 s56, s56, 1"); a("s_cmp_ge_u32 s56, 0x80000"); a(f"s_cbranch_scc1 L_{name}_ok")
    a("s_sleep 16")
    a(f"buffer_load_dword v{vv}, v{va}, s[32:35], 0 offen{CFG.SP}"); a.vmq = a.vmq[:-1]
    a("s_waitcnt vmcnt(0)")
    a(f"s_branch L_{name}_chk")
    a.label(f"L_{name}_ok")

def arrive(a, off, vtb=12):
    stamps.mark(a, vtb)
    a("s_mov_b64 exec, 1"); a(f"ds_add_u32 v0, v0 offset:{off}"); a("s_mov_b64 exec, -1")
def chk_issue(a, off, v=15): a(f"ds_read_b32 v{v}, v0 offset:{off}", tag="chk")
def chk(a, name, off, k, v=15, sleep=0):
    a.wait_lg("chk")
    a.label(f"L_c{name}")
    a(f"v_cmp_gt_u32 vcc, {16 * k if isinstance(k, int) else k}, v{v}")
    a(f"s_cbranch_vccz L_c{name}_ok")
    a("s_add_u32 s3, s3, 1"); a("s_cmp_ge_u32 s3, 0x400000"); a(f"s_cbranch_scc1 L_c{name}_ok")
    if sleep: a(f"s_sleep {sleep}")
    a(f"ds_read_b32 v{v}, v0 offset:{off}"); a.lgq = a.lgq[:-1]
    a("s_waitcnt lgkmcnt(0)")
    a(f"s_branch L_c{name}")
    a.label(f"L_c{name}_ok")

def flag_send(a, srd_, base_sgpr, stride, vt=13):
    a(f"v_mul_u32_u24 v{vt}, {stride}, v1"); a(f"v_mov_b32 v{vt+1}, 1")
    a("s_mov_b64 exec, 15")
    a(f"buffer_store_dword v{vt+1}, v{vt}, s[{srd_}:{srd_+3}], s{base_sgpr} offen{CFG.SS}")
    a("s_mov_b64 exec, -1")
    a.vmq = a.vmq[:-1]
def flag_issue(srd_, line_sgpr, off, tag, va=14, vv=13):
    return [f"v_and_b32 v{va}, 3, v1", f"v_lshlrev_b32 v{va}, 2, v{va}",
            (f"buffer_load_dword v{vv}, v{va}, s[{srd_}:{srd_+3}], s{line_sgpr} offen offset:{off}{CFG.SP}", tag)]
def flag_check(a, name, tag, srd_, line_sgpr, off, va=14, vv=13):
    a.wait_vm(tag)
    a("s_cmp_lg_u32 s36, 0"); a(f"s_cbranch_scc1 L_{name}_ok")
    a.label(f"L_{name}_chk")
    a(f"v_cmp_ne_u32 vcc, 1, v{vv}")
    a(f"s_cbranch_vccz L_{name}_ok")
    a("s_add_u32 s3, s3, 16"); a("s_cmp_ge_u32 s3, 0x400000"); a(f"s_cbranch_scc1 L_{name}_ok")
    a("s_sleep 4")
    a(f"buffer_load_dword v{vv}, v{va}, s[{srd_}:{srd_+3}], s{line_sgpr} offen offset:{off}{CFG.SP}"); a.vmq = a.vmq[:-1]
    a("s_waitcnt vmcnt(0)")
    a(f"s_branch L_{name}_chk")
    a.label(f"L_{name}_ok")

def w_setup(a, for_at):
    if for_at: srd(a, 8, 66, D * D * 2)
    for d, p in ((12, 76), (16, 78)):
        a(f"s_sub_u32 s{d}, s{p}, {BIAS}"); a(f"s_subb_u32 s{d+1}, s{p+1}, 0"); a(f"s_mov_b32 s{d+2}, {D*F*2 + BIAS}"); a(f"s_mov_b32 s{d+3}, 0x20000")
    a("s_bfe_u32 s62, s2, 0x30003"); a("s_lshr_b32 s40, s2, 6"); a("s_lshl_b32 s40, s40, 1"); a("s_add_u32 s62, s62, s40")
    a("s_cmp_ge_u32 s62, 9"); a("s_cselect_b32 s40, 9, 0"); a("s_sub_u32 s62, s62, s40")
    a("s_lshl_b32 s45, s36, 12"); a(f"s_add_u32 s45, s45, {LB}")
def w_table(a):
    for c in range(9):
        a(f"s_add_u32 s{64+c}, s62, {c}"); a(f"s_cmp_ge_u32 s{64+c}, 9"); a("s_cselect_b32 s40, 9, 0"); a(f"s_sub_u32 s{64+c}, s{64+c}, s40")
def w_scalars(a):
    a(f"s_mul_i32 s46, s36, {16*9216}"); a("s_mul_i32 s40, s38, 576"); a("s_add_u32 s46, s46, s40")
    a("s_and_b32 s40, s38, 1")
    a("s_lshl_b32 s41, s40, 6"); a("s_add_u32 s47, s46, s41")
    a("s_xor_b32 s41, s40, 1"); a("s_lshl_b32 s41, s41, 9"); a("s_add_u32 s48, s46, s41"); a(f"s_add_u32 s48, s48, {BIAS}")
    a(f"s_mul_i32 s49, s36, {16*1152}"); a("s_mul_i32 s41, s38, 72"); a("s_add_u32 s49, s49, s41")
def w_voffs(a):
    a("v_lshrrev_b32 v14, 3, v1"); a("v_bfe_u32 v15, v1, 1, 2"); a("v_and_b32 v13, 1, v1"); a("v_lshlrev_b32 v13, 4, v13")
    a("v_and_b32 v5, 2, v14"); a("v_xor_b32 v5, v15, v5")
    a("v_lshrrev_b32 v4, 1, v5"); a("v_mul_u32_u24 v4, 36, v4"); a("v_and_b32 v5, 1, v5"); a("v_lshl_add_u32 v4, v5, 5, v4")
    a("v_mul_u32_u24 v5, 1152, v14"); a("v_add3_u32 v6, v5, v4, v13")
    a("v_lshrrev_b32 v2, 2, v1"); a("v_mul_u32_u24 v2, 9216, v2"); a("v_and_b32 v3, 3, v1"); a("v_lshl_add_u32 v7, v3, 4, v2"); a("v_xor_b32 v8, 32, v7")
    a("v_bfe_u32 v5, v14, 1, 1"); a("v_xor_b32 v5, v15, v5"); a("v_lshl_add_u32 v5, v5, 5, v13")
    a("v_mul_u32_u24 v4, 9216, v14"); a("v_add_u32 v9, v4, v5"); a(f"v_add_u32 v9, {BIAS}, v9"); a(f"v_add_u32 v10, {8*9216 - 1024}, v9")
    for c in range(9): a(f"s_mul_i32 s{64+c}, s{64+c}, {64*9216}")
def wdma(g):
    p, c = divmod(g, 9); slot = g % R
    out = []
    for i in range(4):
        if p == 0:
            hc = 2 * g + (i >> 1); c = hc % 9
            if hc < 9:
                pre = [f"s_lshr_b32 s43, s{64+c}, 3", f"s_add_u32 s43, s43, s49"] if i % 2 == 0 else [f"s_add_u32 s43, s43, {8*1152}"]
                v, srd_ = 6, 8
            else:
                pre = [f"s_add_u32 s43, s{64+c}, s48"] if i % 2 == 0 else []
                v, srd_ = 7 + (i & 1), (12 if i % 2 == 0 else 16)
            out.append(pre + [f"s_add_u32 m0, s45, {slot*SLOT + i*1024}",
                              (f"buffer_load_dwordx4 v{v}, s[{srd_}:{srd_+3}], s43 offen lds", f"w{g}")])
        else:
            pre = []
            if i == 0:
                if g == 9: pre = ["v_xor_b32 v7, 64, v9", "v_subrev_u32 v7, 2048, v7", f"v_add_u32 v8, {8*9216 - 1024}, v7"]
                pre += [f"s_add_u32 m0, s45, {slot*SLOT}", f"s_add_u32 s43, s{64+c}, s47"]
                if c == 8: pre.append("s_add_u32 s47, s47, 128")
            v, srd_ = (9, 10, 7, 8)[i], (12 if i < 2 else 16)
            out.append(pre + [(f"buffer_load_dwordx4 v{v}, s[{srd_}:{srd_+3}], s43 offen offset:{i*1024} lds", f"w{g}")])
    return out
def emit_group_to(a, grp):
    for x in grp:
        if isinstance(x, tuple): a(x[0], tag=x[1])
        else: a(x)

def gen_g(a):
    srd(a, 4, 64, S * D * 2)
    for d, p, nb_ in ((8, 80, F * D * 2), (20, 72, D * D * 2)):
        a(f"s_sub_u32 s{d}, s{p}, {BIAS}"); a(f"s_subb_u32 s{d+1}, s{p+1}, 0"); a(f"s_mov_b32 s{d+2}, {nb_ + BIAS}"); a(f"s_mov_b32 s{d+3}, 0x20000")
    w_setup(a, False)
    a(f"s_mul_i32 s44, s39, {32*1152}")
    a("v_lshrrev_b32 v2, 3, v1"); a("v_and_b32 v3, 7, v1"); a("v_lshrrev_b32 v4, 1, v2"); a("v_xor_b32 v3, v3, v4")
    a("v_mul_u32_u24 v5, 1152, v2"); a("v_lshl_add_u32 v12, v3, 4, v5"); a("v_xor_b32 v13, 64, v12")
    w_table(a)
    def xdma(c, slot):
        a(f"s_lshl_b32 s43, s{64+c}, 7"); a("s_add_u32 s43, s43, s44")
        for i in range(4):
            a(f"s_add_u32 m0, s45, {slot*SLOT + i*1024}")
            a(f"s_add_u32 s42, s43, {8*i*1152}")
            a(f"buffer_load_dwordx4 v{12 + (i&1)}, s[4:7], s42 offen lds", tag=f"x{c}")
    for c in range(7): xdma(c, c)
    w_scalars(a)
    a(f"s_mul_i32 s51, s39, {NSTEP*1024}")
    a(f"s_mul_i32 s41, s38, {18*1024}"); a("s_add_u32 s50, s51, s41")
    a("s_mov_b32 s53, 0x3f803f80"); a("s_mov_b32 s54, 0xffff0000")
    a("v_and_b32 v2, 31, v1"); a("v_lshrrev_b32 v3, 5, v1"); a("v_bfe_u32 v4, v1, 1, 3"); a("v_xor_b32 v3, v3, v4")
    a("v_lshlrev_b32 v2, 7, v2"); a("v_lshl_add_u32 v2, v3, 4, v2"); a("v_add_u32 v2, s45, v2")
    a("v_xor_b32 v3, 32, v2"); a("v_xor_b32 v4, 64, v2"); a("v_xor_b32 v5, 96, v2")
    for k in range(4): a(f"v_add_u32 v{6+k}, {4*SLOT}, v{2+k}")
    st = ACC
    for k in range(4): a(f"v_mov_b32 v{st+k}, 0")
    def stats(c):
        for t in range(4*c, 4*c+4):
            for k in range(4):
                r = XB + 4*t + k
                a(f"v_dot2c_f32_bf16 v{st + (k&1)}, s53, v{r}")
                a(f"v_dot2c_f32_bf16 v{st + 2 + (k&1)}, v{r}, v{r}")
    for c in range(9):
        slot = c if c < 7 else c - 7
        a.wait_vm(f"x{c}")
        for tt in range(4):
            if slot < 4: a(f"ds_read_b128 {X(4*c+tt)}, v{2+tt} offset:{slot*SLOT}", tag=f"xr{c}")
            else: a(f"ds_read_b128 {X(4*c+tt)}, v{6+tt} offset:{(slot-4)*SLOT}", tag=f"xr{c}")
        if c < 2:
            a.wait_lg(f"xr{c}"); xdma(7 + c, c)
        if c > 0:
            a.wait_lg(f"xr{c-1}"); stats(c - 1)
    a.wait_lg0()
    stamps.stamp(a, 1)
    a("s_barrier"); nbar = 1
    def emit_group(grp):
        for x in grp:
            if isinstance(x, tuple): a(x[0], tag=x[1])
            elif x == "PRIO2": setprio(2)
            elif x == "PRIO0":
                if not fill: setprio(0)
            else: a(x)
    stats(8)
    a("s_nop 2")
    a(f"v_add_f32 v{st}, v{st}, v{st+1}"); a(f"v_add_f32 v{st+2}, v{st+2}, v{st+3}")
    a(f"v_mov_b32 v{st+1}, v{st}"); a(f"v_mov_b32 v{st+3}, v{st+2}")
    a(f"v_permlane32_swap_b32 v{st}, v{st+1}"); a(f"v_permlane32_swap_b32 v{st+2}, v{st+3}")
    a(f"v_add_f32 v{st}, v{st}, v{st+1}"); a(f"v_add_f32 v{st+2}, v{st+2}, v{st+3}")
    a(f"v_mul_f32 v{st}, {f32(1.0/576):#x}, v{st}"); a(f"v_mul_f32 v{st+2}, {f32(1.0/576):#x}, v{st+2}")
    a(f"v_fma_f32 v{st+2}, -v{st}, v{st}, v{st+2}"); a(f"v_max_f32 v{st+2}, 0, v{st+2}"); a(f"v_add_f32 v{st+2}, {f32(1e-5):#x}, v{st+2}")
    a(f"v_rsq_f32 v{st+2}, v{st+2}")
    a(f"v_mul_f32 v{st+4}, v{st}, v{st+2}"); a(f"v_sub_f32 v{st+4}, 0, v{st+4}")
    a(f"v_mov_b32 v{st+3}, v{st+2}"); a(f"v_mov_b32 v{st+5}, v{st+4}")
    T = ACC + 8
    for r0 in range(0, 144, 4):
        for k in range(4):
            r = XB + r0 + k; t = T + 2*k
            a(f"v_lshlrev_b32 v{t}, 16, v{r}"); a(f"v_and_b32 v{t+1}, s54, v{r}")
        for k in range(4):
            t = T + 2*k
            a(f"v_pk_fma_f32 v[{t}:{t+1}], v[{t}:{t+1}], v[{st+2}:{st+3}], v[{st+4}:{st+5}]")
        for k in range(4):
            r = XB + r0 + k; t = T + 2*k
            a(f"v_cvt_pk_bf16_f32 v{r}, v{t}, v{t+1}")
    w_voffs(a)
    a("s_mov_b32 s60, -1"); a("s_mov_b32 s61, 0")
    a("s_cmp_ge_u32 s38, 2"); a("s_cbranch_scc1 L_g_nokv")
    a("v_lshrrev_b32 v2, 5, v1"); a("v_lshlrev_b32 v2, 3, v2"); a("v_bfe_u32 v3, v1, 2, 2"); a("v_add_u32 v2, v2, v3"); a("v_lshlrev_b32 v2, 6, v2")
    a("v_bfe_u32 v3, v1, 4, 1"); a("v_lshl_add_u32 v2, v3, 5, v2"); a("v_and_b32 v3, 3, v1"); a("v_lshl_add_u32 v2, v3, 3, v2")
    a(f"v_add_u32 v2, {KVIMG}, v2")
    a(f"s_lshl_b32 s43, s36, 11"); a(f"s_add_u32 s43, s43, {KVH}"); a("v_add_u32 v3, s43, v11"); a("v_mov_b32 v5, v3")
    saved_vmq = list(a.vmq)
    def kvpass(isV):
        def rd(t):
            b = FR + 4 * (t % NFR)
            a(f"ds_read_b64_tr_b16 v[{b}:{b+1}], v2 offset:{t*1024}", tag=f"kv{t}")
            a(f"ds_read_b64_tr_b16 v[{b+2}:{b+3}], v2 offset:{t*1024+256}", tag=f"kv{t}")
        for t in range(PF): rd(t)
        for t in range(36):
            b = FR + 4 * (t % NFR)
            a.wait_lg(f"kv{t}")
            cc = "0" if t == 0 else acc(0)
            if isV: a(f"v_mfma_f32_32x32x16_bf16 {acc(0)}, {X(t)}, v[{b}:{b+3}], {cc}")
            else: a(f"v_mfma_f32_32x32x16_bf16 {acc(0)}, v[{b}:{b+3}], {X(t)}, {cc}")
            if t + PF < 36: rd(t + PF)
    a("s_cmp_eq_u32 s38, 1"); a("s_cbranch_scc1 L_g_v")
    kvpass(False)
    B = ACC; T = ACC + 16
    for k in range(5): a(f"v_cvt_pk_bf16_f32 v{T+k}, v{B+2*k}, v{B+2*k+1}")
    a(f"ds_write_b128 v3, v[{T}:{T+3}]")
    a(f"v_mul_f32 v{T+8}, v{B+8}, v{B+8}"); a(f"v_fmac_f32 v{T+8}, v{B+9}, v{B+9}"); a(f"v_cndmask_b32 v{T+8}, 0, v{T+8}, s[60:61]")
    for k in range(8): a(f"v_fmac_f32 v{T+8}, v{B+k}, v{B+k}")
    a(f"v_mov_b32 v{T+9}, v{T+8}"); a(f"v_permlane32_swap_b32 v{T+8}, v{T+9}"); a(f"v_add_f32 v{T+8}, v{T+8}, v{T+9}")
    a(f"v_mov_b32 v{T+5}, v{T+8}")
    a(f"ds_write_b64 v3, v[{T+4}:{T+5}] offset:1024")
    a("s_branch L_g_kvdone")
    a.label("L_g_v")
    a.lgq = []
    kvpass(True)
    for k in range(8): a(f"v_cvt_pk_bf16_f32 v{T+k}, v{B+2*k}, v{B+2*k+1}")
    a("v_and_b32 v3, 31, v1"); a("v_cmp_eq_u32 vcc, 18, v3"); a("v_mov_b32 v4, s53")
    for k in range(8): a(f"v_cndmask_b32 v{T+k}, v{T+k}, v4, vcc")
    a("v_cmp_gt_u32 vcc, 19, v3")
    for k in range(8): a(f"v_cndmask_b32 v{T+k}, 0, v{T+k}, vcc")
    a(f"ds_write_b128 v5, v[{T}:{T+3}]"); a(f"ds_write_b128 v5, v[{T+4}:{T+7}] offset:1024")
    a.label("L_g_kvdone")
    a("s_waitcnt lgkmcnt(0)")
    a("s_mov_b64 exec, 1"); a("ds_add_u32 v0, v0 offset:20"); a("s_mov_b64 exec, -1")
    a.label("L_g_nokv")
    a("s_nop 7"); a("s_nop 7")
    a.vmq = saved_vmq; a.lgq = []
    def tr_addrs(p):
        if p == 0:
            return ["v_lshrrev_b32 v13, 5, v1", "v_lshlrev_b32 v2, 10, v13", "v_bfe_u32 v14, v1, 2, 2", "v_lshl_add_u32 v2, v14, 7, v2",
                    "v_and_b32 v15, 2, v14", "v_bfe_u32 v3, v1, 4, 1", "v_xor_b32 v15, v15, v3", "v_lshl_add_u32 v2, v15, 5, v2",
                    "v_and_b32 v15, 3, v1", "v_lshl_add_u32 v2, v15, 3, v2", f"v_add_u32 v2, {LB}, v2", "v_xor_b32 v3, 64, v2",
                    "v_lshl_add_u32 v4, v13, 3, v14", "v_lshlrev_b32 v4, 6, v4", "v_bfe_u32 v13, v1, 4, 1", "v_mul_u32_u24 v13, 1056, v13",
                    "v_add_u32 v4, v4, v13", f"v_add_u32 v4, {LB}, v4", "v_lshl_add_u32 v4, v15, 3, v4", "v_xor_b32 v5, 32, v4"]
        return ["v_bfe_u32 v13, v1, 4, 1", "v_lshrrev_b32 v14, 5, v1", "v_lshl_add_u32 v14, v13, 1, v14", "v_lshlrev_b32 v2, 10, v14",
                "v_bfe_u32 v14, v1, 2, 2", "v_lshl_add_u32 v2, v14, 7, v2", "v_lshrrev_b32 v14, 1, v14", "v_lshl_add_u32 v14, v13, 1, v14",
                "v_lshl_add_u32 v2, v14, 5, v2", "v_and_b32 v14, 3, v1", "v_lshl_add_u32 v2, v14, 3, v2", f"v_add_u32 v2, {LB}, v2",
                "v_xor_b32 v3, 32, v2", "v_xor_b32 v4, 64, v2", "v_xor_b32 v5, 96, v2"]
    for x in tr_addrs(0): a(x)
    chk_issue(a, 8); chk(a, "l0", 8, 1, sleep=1)

    order = [(s, t) for t in range(4) for s in range(4)]
    fa = []
    for hc in range(18):
        for t in range(2):
            for s_ in range(4): fa.append(("a", hc // 2, (hc % 9, s_, (hc % 2) * 2048), t + (2 if hc >= 9 else 0)))
    for g in range(9, NCH):
        for (s_, t) in order: fa.append(("a", g, (g % 9, s_, 0), t))
    fb = [("b", pos, f, 0) for pos in range(41) for f in range(10 if pos < 40 else 5)]
    frs = fa + fb
    N1 = NCH * 16
    state = {"slot": 0, "pass": 0}
    fill = []
    def setprio(v):
        if state.get("prio", 0) != v: a(f"s_setprio {v}"); state["prio"] = v
    def rd(n):
        kind, g, s, t = frs[n]
        b = FR + 4 * (n % NFR)
        if kind == "b":
            if g == 0 and s == 0:
                for grp in raddr2(): emit_group(grp)
            sl = (g // 2 + 3) % NRING2; hi = 1 if sl >= 3 else 0
            o = (sl - 3 * hi) * GRP2 + (g % 2) * STEP2 + (s // 5) * 16 * PITCH2 + (s % 5) * 64
            v = RA + hi
            a(f"ds_read_b64_tr_b16 v[{b}:{b+1}], v{v} offset:{o}", tag=f"f{n}")
            a(f"ds_read_b64_tr_b16 v[{b+2}:{b+3}], v{v} offset:{o + 8*PITCH2}", tag=f"f{n}")
            return
        p = g // 9; slot = g % R
        if p == 1 and state["pass"] == 0:
            for x in tr_addrs(1): a(x)
            state["slot"] = 0
        state["pass"] = p
        hi = 4 if slot >= 4 else 0
        if hi != state["slot"]:
            if g >= APRIO: setprio(2)
            for k in range(4):
                if hi: a(f"v_add_u32 v{2+k}, {4*SLOT}, v{2+k}")
                else: a(f"v_subrev_u32 v{2+k}, {4*SLOT}, v{2+k}")
            state["slot"] = hi
            if not fill: setprio(0)
        jj = 256 if (p == 0 and t >= 2) else 512
        o = (slot - hi) * SLOT + s[1] * 4096 + s[2]
        if 'x4' in EXP and 12 <= g < 36: return
        a(f"ds_read_b64_tr_b16 v[{b}:{b+1}], v{2+t} offset:{o}", tag=f"f{n}")
        a(f"ds_read_b64_tr_b16 v[{b+2}:{b+3}], v{2+t} offset:{o+jj}", tag=f"f{n}")
    def gu_epi(t, pi, p):
        B = ACC + 16*t
        L = []
        for i in range(8): L.append(f"v_max_f32 v{B+i}, 0, v{B+i}")
        for i in range(8): L.append(f"v_mul_f32 v{B+i}, v{B+i}, v{B+8+i}")
        for k in range(4): L.append(f"v_cvt_pk_bf16_f32 v{B+8+k}, v{B+2*k}, v{B+2*k+1}")
        L.append(f"s_add_u32 s52, s50, {pi*1024}")
        L.append((f"buffer_store_dwordx4 v[{B+8}:{B+11}], v11, s[24:27], s52 offen{CFG.SS}", f"hst{p}"))
        return L
    def q_epi(t):
        B = ACC + 16*t
        L = []
        for i in range(10): L.append(f"v_mul_f32 v{B+i}, {f32(QSCALE):#x}, v{B+i}")
        n = B + 10
        L += [f"v_mul_f32 v{n}, v{B+8}, v{B+8}", f"v_fmac_f32 v{n}, v{B+9}, v{B+9}", f"v_cndmask_b32 v{n}, 0, v{n}, s[60:61]"]
        for k in range(8): L.append(f"v_fmac_f32 v{n}, v{B+k}, v{B+k}")
        L += [f"v_mov_b32 v{n+1}, v{n}", f"v_permlane32_swap_b32 v{n}, v{n+1}", f"v_add_f32 v{n}, v{n}, v{n+1}",
              f"v_sqrt_f32 v{n}, v{n}", f"v_mul_f32 v{n}, {f32(-(1+1/64.)):#x}, v{n}",
              f"v_cndmask_b32 v{n}, 0, v{n}, s[60:61]", f"v_cndmask_b32 v{B+8}, 0, v{B+8}, s[60:61]", f"v_cndmask_b32 v{B+9}, 0, v{B+9}, s[60:61]", f"v_mov_b32 v{n+1}, 0"]
        for k in range(4): L.append(f"v_cvt_pk_bf16_f32 v{B+12+k}, v{B+2*k}, v{B+2*k+1}")
        L += [f"v_cvt_pk_bf16_f32 v{B}, v{B+8}, v{B+9}", f"v_cvt_pk_bf16_f32 v{B+1}, v{n}, v{n+1}"]
        L += [f"s_lshl_b32 s52, s39, 5", f"s_lshl_b32 s40, s38, 1", f"s_add_u32 s52, s52, s40", f"s_add_u32 s52, s52, {t}",
              f"s_mul_i32 s52, s52, {Q_PITCH}", f"s_add_u32 s52, s52, {Q_OFF}",
              (f"buffer_store_dwordx4 v[{B+12}:{B+15}], v11, s[28:31], s52 offen", "qst"),
              f"v_lshlrev_b32 v{B+2}, 3, v1",
              (f"buffer_store_dwordx2 v[{B}:{B+1}], v{B+2}, s[28:31], s52 offen offset:1024", "qst")]
        return L
    def emit_fill(nmax, upto_tile=None):
        k = 0
        while fill and (k < nmax or (upto_tile is not None and any(f[0] == upto_tile for f in fill))):
            L = fill[0][2]
            x = L.pop(0)
            if isinstance(x, tuple): a(x[0], tag=x[1])
            else: a(x)
            if not L: fill.pop(0)
            k += 1
    def grouped(L, n=4):
        groups = []; cur = []
        for x in L:
            if len(cur) >= n and not x.startswith(("s_addc", "s_cselect", "v_cndmask")): groups.append(cur); cur = []
            cur.append(x)
        return groups + [cur]
    def hp(groups):
        return [["PRIO2"] + g_ + ["PRIO0"] for g_ in groups]
    def g2_setup():
        L = []
        A = L.append
        A("s_lshr_b32 s73, s38, 2"); A("s_and_b32 s74, s38, 3")
        A(f"s_add_u32 s28, s86, {PART_OFF}"); A("s_addc_u32 s29, s87, 0"); A(f"s_mov_b32 s30, {PART_BYTES}"); A("s_mov_b32 s31, 0x20000")
        A(f"s_mul_i32 s63, s36, {GRP2 // 4}"); A(f"s_add_u32 s63, s63, {LB}")
        A(f"s_mul_i32 s75, s73, {144*1152}"); A("s_mul_i32 s40, s74, 288"); A("s_add_u32 s75, s75, s40")
        for k in range(4):
            A(f"s_add_u32 s40, s74, {k}"); A("s_and_b32 s40, s40, 3"); A("s_lshl_b32 s41, s73, 2"); A("s_add_u32 s40, s40, s41")
            A(f"s_mul_i32 s40, s40, {18*1024}"); A(f"s_add_u32 s{76+k}, s40, s51")
        A("s_lshl_b32 s40, s73, 13"); A("s_add_u32 s40, s40, s51"); A(f"s_add_u32 s48, s40, {288*1024}")
        A("s_lshl_b32 s40, s73, 10"); A("s_add_u32 s40, s40, s51"); A(f"s_add_u32 s49, s40, {320*1024}")
        A("s_lshl_b32 s40, s37, 4"); A("s_add_u32 s41, s40, s38"); A("s_lshl_b32 s41, s41, 7"); A(f"s_add_u32 s44, s41, {FL_REL}")
        A("s_and_b32 s41, s38, 12"); A("s_add_u32 s41, s41, s40"); A("s_lshl_b32 s41, s41, 7"); A("s_lshl_b32 s46, s74, 2")
        A("s_add_u32 s41, s41, s46"); A(f"s_add_u32 s46, s41, {FL_REL}")
        A("s_add_u32 s41, s40, s74"); A("s_lshl_b32 s41, s41, 7"); A("s_lshl_b32 s62, s73, 2")
        A("s_add_u32 s41, s41, s62"); A(f"s_add_u32 s62, s41, {FL_REL + 48}")
        A("s_lshl_b32 s40, s37, 2"); A("s_add_u32 s40, s40, s74"); A("s_lshl_b32 s40, s40, 2"); A("s_add_u32 s40, s40, s36")
        A("s_lshl_b32 s40, s40, 2"); A("s_add_u32 s40, s40, s73"); A("s_mul_i32 s57, s40, 9216")
        return grouped(L)
    def touch():
        L = [["PRIO2", "v_min_u32 v13, 35, v1", "v_mul_u32_u24 v13, 1152, v13", "PRIO0",
              "s_and_b32 s40, s37, 7", "s_lshl_b32 s40, s40, 2", "s_add_u32 s40, s40, s36", f"s_mul_i32 s40, s40, {36*1152}",
              f"s_mul_i32 s41, s73, {1152*1152}", "s_add_u32 s40, s40, s41", "s_mul_i32 s41, s74, 288", "s_add_u32 s40, s40, s41", f"s_add_u32 s56, s40, {BIAS}"]]
        for l in range(3): L.append([(f"buffer_load_dword v14, v13, s[8:11], s56 offen offset:{128*l}", "touch")])
        L.append(["PRIO2", "v_min_u32 v13, 17, v1", "v_mul_u32_u24 v13, 1152, v13", "PRIO0",
                  "s_and_b32 s40, s37, 7", f"s_mul_i32 s40, s40, {18*1152}", "s_add_u32 s40, s40, s75", "s_min_u32 s41, s36, 2", "s_lshl_b32 s41, s41, 7",
                  "s_add_u32 s40, s40, s41", f"s_add_u32 s56, s40, {BIAS}", (f"buffer_load_dword v14, v13, s[20:23], s56 offen", "touch")])
        return L
    def voff2(mode):
        L = []
        for k in range(5):
            d = 6 + k
            G_ = [f"v_add_u32 v13, {k*1024}, v11", "v_mul_hi_u32 v14, v13, s41"]
            if mode == 0:
                G_ += [f"v_mul_u32_u24 v{d}, {PITCH2}, v14", f"v_sub_u32 v13, v13, v{d}", f"v_add_u32 v{d}, 224, v13", f"v_lshrrev_b32 v{d}, 9, v{d}", f"v_lshl_add_u32 v13, v{d}, 30, v13",
                       "v_mul_u32_u24 v14, 1152, v14", f"v_add3_u32 v{d}, v14, v13, s56"]
            else:
                G_ += ["v_lshrrev_b32 v14, 1, v14", f"v_mul_u32_u24 v14, {16*1152}, v14", f"v_add_u32 v{d}, v{d}, v14"]
            L.append([f"s_mov_b32 s56, {BIAS - (k % 4) * 1024}", f"s_mov_b32 s41, {(1 << 32) // PITCH2 + 1}", "PRIO2"] + G_ + ["PRIO0"])
        return L
    def rows2():
        L = []
        pre = ["s_and_b32 s40, s36, 1", f"s_mul_i32 s45, s40, {16*1152}", "s_mul_i32 s42, s74, 288", "s_add_u32 s45, s45, s42",
               f"s_mul_i32 s40, s40, {18*1152}", f"s_add_u32 s72, s75, {16*1152}", "s_add_u32 s75, s75, s40"]
        for k in range(4):
            L += [f"s_add_u32 s40, s74, {k}", "s_and_b32 s40, s40, 3", "s_lshl_b32 s41, s73, 2", "s_add_u32 s41, s41, s40", f"s_mul_i32 s41, s41, {288*1152}",
                  "s_add_u32 s41, s41, s45", "s_nop 0", "s_bitcmp1_b32 s40, 0", f"s_cselect_b32 s40, 0, {32*1152}", f"s_cselect_b32 s42, 0, {256*1152}",
                  f"s_sub_u32 s{64+k}, s41, s40", f"s_add_u32 s{68+k}, s41, s42"]
        L += ["s_mov_b32 s12, s82", "s_mov_b32 s13, s83", f"s_mov_b32 s14, {S*D*2}", "s_mov_b32 s15, 0x20000"]
        return [pre] + [L[12*k:12*k+12] for k in range(4)] + [L[48:]]
    def raddr2():
        return hp([["v_lshrrev_b32 v4, 5, v1", "v_bfe_u32 v5, v1, 2, 2", "v_lshl_add_u32 v4, v4, 2, v5", f"v_mul_u32_u24 v4, {PITCH2}, v4",
                    "v_and_b32 v5, 3, v1", "v_lshl_add_u32 v4, v5, 3, v4", "v_bfe_u32 v5, v1, 4, 1", "v_lshl_add_u32 v4, v5, 5, v4",
                    f"v_add_u32 v{RA}, {LB}, v4", f"v_add_u32 v{RA+1}, {LB + 3*GRP2}, v4"]])
    def step_soff(dst, pos):
        if pos < 36:
            k, tau = (pos // 7, pos % 7) if pos < 28 else ((pos - 28) // 2, 7 + (pos - 28) % 2)
            return f"s_mov_b32 s{dst}, s{68+k}" if tau == 0 else f"s_add_u32 s{dst}, s{64+k}, {32*1152*tau}"
        return f"s_add_u32 s{dst}, s75, {36*1152*(pos-36)}" if pos < 40 else f"s_mov_b32 s{dst}, s72"
    def quad(j):
        vb, srd_ = 6, (8 if j < 18 else 20)
        sl = (j + 3) % NRING2
        g0 = [step_soff(42, 2*j), step_soff(43, 2*j+1), "s_cmp_lt_u32 s36, 2", "s_cselect_b32 s43, s42, s43", f"s_add_u32 m0, s63, {sl*GRP2}"]
        ld = lambda k: (f"buffer_load_dwordx4 v{vb+k}, s[{srd_}:{srd_+3}], s43 offen offset:{(k%4)*1024} lds", f"q{j}")
        return [g0 + [ld(0), ld(1)], [ld(2), ld(3), f"s_add_u32 m0, s63, {sl*GRP2 + 4096}", ld(4)]]
    def bload(pos):
        if pos < 28: pre = f"s_add_u32 s42, s{76 + pos//7}, {(pos%7)*2048}"
        elif pos < 36: pre = f"s_add_u32 s42, s{76 + (pos-28)//2}, {(7 + (pos-28)%2)*2048}"
        elif pos < 40: pre = f"s_add_u32 s42, s48, {(pos-36)*2048}"
        else: pre = "s_mov_b32 s42, s49"
        b = BR + 8 * (pos % 8)
        L = [pre, (f"buffer_load_dwordx4 v[{b}:{b+3}], v11, s[24:27], s42 offen{CFG.SL}", f"b{pos}")]
        if pos == 40: return L
        return L + [(f"buffer_load_dwordx4 v[{b+4}:{b+7}], v11, s[24:27], s42 offen offset:1024{CFG.SL}", f"b{pos}")]
    side = []
    st2 = {"q": 0, "b": 0, "landed": -1}
    def push_quads(upto):
        while st2["q"] <= min(upto, NG2 - 1):
            if 'x6' not in EXP: side.extend(quad(st2["q"]))
            st2["q"] += 1
    def push_b(upto):
        while st2["b"] <= min(upto, 40): side.append(bload(st2["b"])); st2["b"] += 1
    def flush_side():
        while side: emit_group(side.pop(0))
    nissued = 0
    lim = {"a": 1}
    def issue_reads(upto):
        nonlocal nissued
        while nissued < min(upto, len(frs)):
            kind, g, s, t = frs[nissued]
            if kind == "b" and g > st2["landed"]: break
            if kind == "a" and g > lim["a"]: break
            rd(nissued); nissued += 1
    def wait_frag(n):
        if f"f{n}" in a.lgq: a.wait_lg([f"f{n}", f"f{n+1}"])
    def do_arrive(I):
        flush_side()
        if I + 2 < NCH: a.wait_vm(f"w{I+2}")
        if I == QI: assert a.vmq.count("qst") == 4; a.wait_vm("qst")
        if I == 38: a.wait_vm("hst3")
        if I == 48: assert not fill; a.wait_vm("hst4")
        if I >= 43:
            assert I - 43 < st2["q"], (I, st2)
            if 'x5' not in EXP: a.wait_vm(f"q{I-43}")
            st2["pend"][I] = min(2 * (I - 43) + 1, 40)
        if I == 57: a.wait_vm("clr")
        if I == 63: flag_check(a, "c", "cp", 28, 44, 48)
        if I == PKI: poll_check(a, "pk", "pkp", 12, 20, 256, 14, 13)
        if I == 45: flag_check(a, "h", "hp", 28, 44, 0)
        if I == HL - 1: flag_check(a, "hl", "hl", 28, 44, 16)
        if I == OL - 1: flag_check(a, "o", "op", 28, 44, 32)
        arrive(a, 0)
    st2["pend"] = {}
    def do_check(I):
        if I >= APRIO: setprio(2)
        chk(a, f"g{I}", 0, I - LAG)
        if not fill: setprio(0)
        if I == 1: chk_issue(a, 12); chk(a, "l1", 12, 1)
        if I == 3: chk_issue(a, 16); chk(a, "l2", 16, 1)
        lim["a"] = max(3 if I < 3 else 6, I + 1)
        if I - 1 in st2["pend"]: st2["landed"] = st2["pend"][I - 1]
        if I - 1 + R < NCH and not ('x1' in EXP and 12 <= I < 36): side.extend(wdma(I - 1 + R))
        if I == 20: side.extend(g2_setup())
        if I == PKI - 1: side.append(poll_issue(a, 128, "pkp", 14, 13))
        if I == 39: side.extend(rows2() + voff2(0))
        if I == 40: push_quads(0); push_b(2)
        if I == 41: push_b(4)
        if I == 42: push_quads(1); push_b(6)
        if I == 44: push_quads(2)
        if I == 45: push_quads(4)
        if I == 60: side.extend(["DUMMY"] and voff2(2) if False else [])
        if I == 61: side.extend(voff2(2))
        if I >= 46: push_quads(I - 41)
        if I in (39, 49):
            a("s_cmp_lg_u32 s36, 0"); a(f"s_cbranch_scc1 L_g_nohp{I}")
            if I == 49: a("s_add_u32 s46, s46, 16")
            flag_send(a, 28, 46, 128); a.label(f"L_g_nohp{I}")
        if I == 44: side.append(flag_issue(28, 44, 0, "hp"))
        if I == 46: st2["bcap"] = 27; push_b(10)
        if I == 46: side.append([f"v_mov_b32 v{48+k}, -1" for k in range(4)])
        if 46 <= I <= 54: side.append([(f"buffer_store_dwordx4 v[48:51], v11, s[28:31], s57 offen{CFG.SS}", "clr"), "s_add_u32 s57, s57, 1024"])
        if I == 58:
            a("s_cmp_lg_u32 s36, 0"); a("s_cbranch_scc1 L_g_nocl"); flag_send(a, 28, 62, 512); a.label("L_g_nocl")
            side.extend(xres_groups())
        if I == 62: side.append(flag_issue(28, 44, 48, "cp"))
        if I == HL - 2: side.append(flag_issue(28, 44, 16, "hl"))
        if I == HL: st2["bcap"] = 35
        if I == OL - 2: side.append(flag_issue(28, 44, 32, "op"))
        if I == OL: st2["bcap"] = 40
    st2["bcap"] = 6
    issue_reads(PF)
    for n, (kind, g, s, t) in enumerate(frs):
        b = FR + 4 * (n % NFR)
        if kind == "a":
            p = g // 9; c, s, _ = s
            first = (c == 0 and s == 0)
            if first: emit_fill(0, upto_tile=t)
            wait_frag(n)
            setprio(2 if (g >= APRIO and (fill or (PH and n % PH == 0))) else 0)
            a(f"v_mfma_f32_32x32x16_bf16 {acc(t)}, v[{b}:{b+3}], {X(4*c+s)}, {'0' if first else acc(t)}")
            if not fill: setprio(0)
            if n % 16 == 6 and g > 0 and not ('x2' in EXP and 12 <= g < 36): chk_issue(a, 0)
            if n % 16 == 9 and g > 0: do_check(g)
            issue_reads(n + 1 + PF)
            if side: emit_group(side.pop(0))
            for f in fill: f[1] -= 1
            if fill and fill[0][1] <= 0: emit_fill(FILLN if p else 5)
            if c == 8 and s == 3:
                L = q_epi(t) if (p == 0 and t < 2) else gu_epi(t, (t - 2) if p == 0 else 2 + 4*(p-1) + t, p)
                fill.append([t, 1, L])
            if n % 16 == 15:
                do_arrive(g)
        else:
            pos, f = g, s
            I = NCH + pos // 2; m = (pos % 2) * 10 + f
            bb = BR + 8 * (pos % 8)
            if f == 0:
                if pos == 0: stamps.stamp(a, 3)
                if pos == 34: stamps.stamp(a, 2)
                assert st2["b"] > pos, pos
                if any(isinstance(x[-1], tuple) and x[-1][1] == f"b{pos}" for x in side): flush_side()
                a.wait_vm(f"b{pos}")
            assert nissued > n, (pos, f, st2)
            wait_frag(n)
            setprio(2 if (fill or (PH and n % PH == 0)) else 0)
            t_ = f % 5; p_ = f // 5
            a(f"v_mfma_f32_32x32x16_bf16 {acc32(t_)}, v[{b}:{b+3}], v[{bb+4*p_}:{bb+4*p_+3}], {'0' if (pos == 0 and p_ == 0) else acc32(t_)}")
            if not fill: setprio(0)
            if m == 10: chk_issue(a, 0)
            if m == 13: do_check(I)
            issue_reads(n + 1 + PF)
            if fill: emit_fill(3)
            elif side: emit_group(side.pop(0))
            if f == 9:
                if pos % 2 == 1 and pos < 39: do_arrive(I)
                push_b(min(pos + 8, st2["bcap"]))
    flush_side()
    finish(a)
    return nbar

OWN = LB + 0
def finish(a):
    stamps.stamp(a, 4)
    a("s_lshl_b32 s40, s37, 2"); a("s_add_u32 s40, s40, s74"); a(f"s_mul_i32 s70, s40, {16*9216}")
    a("s_cmp_eq_u32 s36, s73"); a("s_cbranch_scc1 L_g_own")
    a(f"s_lshl_b32 s41, s73, 2"); a("s_add_u32 s41, s41, s36"); a("s_mul_i32 s41, s41, 9216"); a("s_add_u32 s41, s41, s70")
    for r in range(9):
        T = 48 + 4 * (r % 4)
        for k in range(4): a(f"v_cvt_pk_bf16_f32 v{T+k}, v{ACC2+8*r+2*k}, v{ACC2+8*r+2*k+1}")
        if r % 4 == 0 and r: a(f"s_add_u32 s41, s41, 4096")
        a(f"buffer_store_dwordx4 v[{T}:{T+3}], v11, s[28:31], s41 offen offset:{(r%4)*1024}{CFG.SS}")
    a("s_branch L_g_st")
    a.label("L_g_own")
    a("s_nop 11")
    for u in range(18): a(f"ds_write_b128 v11, {acc2(u)} offset:{OWN + u*1024}")
    a.label("L_g_st")
    a.vmq = []; a.lgq = []
    XR = XRES; OW = 76; G = 100
    a("s_mul_i32 s41, s73, 9216"); a("s_add_u32 s41, s41, s70"); a("s_lshl_b32 s42, s36, 10"); a("s_add_u32 s41, s41, s42")
    sj = [71, 69, 43]
    for j in range(3):
        a(f"s_add_u32 s40, s73, {j+1}"); a("s_and_b32 s40, s40, 3"); a(f"s_mul_i32 s40, s40, {4*9216}"); a(f"s_add_u32 s{sj[j]}, s40, s41")
    a("s_movk_i32 s62, 0x1000"); a("s_cmp_eq_u32 s36, 0"); a("s_cselect_b32 s62, 8192, s62"); a("v_add_u32 v7, 4096, v11"); a("v_add_u32 v8, s62, v11")
    vk = [11, 7, 8]
    def loads():
        for k in range(3):
            for j in range(3):
                r = G + 12*k + 4*j
                a(f"buffer_load_dwordx4 v[{r}:{r+3}], v{vk[k]}, s[28:31], s{sj[j]} offen{CFG.SL}")
    loads()
    a("s_waitcnt lgkmcnt(0)")
    a("s_barrier")
    a("s_lshl_b32 s40, s36, 11"); a("v_add_u32 v6, s40, v11")
    for k in range(3):
        for e in range(2): a(f"ds_read_b128 v[{OW+8*k+4*e}:{OW+8*k+4*e+3}], v6 offset:{OWN + k*8192+e*1024}")
    a.label("L_g_gchk")
    a("s_waitcnt vmcnt(0)")
    a(f"v_max3_u32 v2, v{G}, v{G+1}, v{G+2}")
    for q in range(3, 35, 2): a(f"v_max3_u32 v2, v2, v{G+q}, v{G+q+1}")
    a(f"v_max_u32 v2, v2, v{G+35}")
    a("v_cmp_eq_u32 vcc, -1, v2")
    a("s_cbranch_vccz L_g_gok")
    a("s_add_u32 s3, s3, 64"); a("s_cmp_ge_u32 s3, 0x400000"); a("s_cbranch_scc1 L_g_gok")
    loads()
    a("s_branch L_g_gchk")
    a.label("L_g_gok")
    stamps.stamp(a, 5)
    a("s_waitcnt lgkmcnt(0)")
    def fin(k):
        o = OW + 8*k; T = 140
        srcs = [G + 12*k + 4*j for j in range(3)] + [XR + 4*k]
        for r in srcs:
            for q in range(4):
                a(f"v_lshlrev_b32 v{T+2*q}, 16, v{r+q}"); a(f"v_and_b32 v{T+2*q+1}, s54, v{r+q}")
            for q in range(4): a(f"v_pk_add_f32 v[{o+2*q}:{o+2*q+1}], v[{o+2*q}:{o+2*q+1}], v[{T+2*q}:{T+2*q+1}]")
        for q in range(4): a(f"v_cvt_pk_bf16_f32 v{T+8+4*k+q}, v{o+2*q}, v{o+2*q+1}")
        for e in range(2): a(f"buffer_store_dwordx2 v[{T+8+4*k+2*e}:{T+9+4*k+2*e}], v5, s[12:15], s{XS[k]} offen offset:{16*e}{CFG.SO}")
    fin(0); fin(1)
    a("s_cmp_lg_u32 s36, 0"); a("s_cbranch_scc1 L_g_no3")
    fin(2)
    a.label("L_g_no3")
    stamps.flush(a, 0, 55); stamps.tb_flush(a, 12, 55)
    a("s_endpgm")

XS = [16, 17, 18]
def xres_groups():
    L = [["s_lshl_b32 s40, s37, 2", "s_add_u32 s40, s40, s73", f"s_mul_i32 s47, s40, {32*1152}", "s_mul_i32 s41, s74, 288", "s_add_u32 s47, s47, s41",
          "s_lshl_b32 s40, s36, 5", "s_add_u32 s16, s47, s40", "s_add_u32 s17, s16, 128", "s_add_u32 s18, s47, 256", f"s_add_u32 s19, s18, {16*1152}"],
         ["PRIO2", "v_and_b32 v4, 31, v1", "v_mul_u32_u24 v4, 1152, v4", "v_lshrrev_b32 v5, 5, v1", "v_lshl_add_u32 v5, v5, 3, v4", "PRIO0"]]
    for k in range(3):
        for e in range(2): L.append([(f"buffer_load_dwordx2 v[{XRES+4*k+2*e}:{XRES+4*k+2*e+1}], v5, s[4:7], s{XS[k]} offen offset:{16*e}", "xres")])
    return L
XRES = 64
```

```python
from dsl import *
from layout import *
import stamps, struct
def f32(x): return struct.unpack("<I", struct.pack("<f", x))[0]

import mk
ATB = mk.KVIMG
GRP = 4 * KV_PITCH
Q1 = [16, 24]; Q2 = [20, 28]
S_ = [32, 48]; P_ = [64, 72]; O_ = [80, 96]
K1 = [112, 120]; K2 = [116, 124]
VA = [128, 136]; VB = [132, 140]
aK1, aK2, aV = 2, 3, 4
LTHR = f32(2.0 ** -60)


import cfg as CFG
def srd(a, d, p, nbytes, off=0):
    if off: a(f"s_add_u32 s{d}, s{p}, {off}"); a(f"s_addc_u32 s{d+1}, s{p+1}, 0")
    else: a(f"s_mov_b32 s{d}, s{p}"); a(f"s_mov_b32 s{d+1}, s{p+1}")
    a(f"s_mov_b32 s{d+2}, {nbytes}"); a(f"s_mov_b32 s{d+3}, 0x20000")

ALIGN = 0; NPEEL = 1; APRE = 6; TOUCH0 = False
PACE0 = 6; PACE = 3
def gen_at(a):
    a.label("L_at")
    a.vmq = []; a.lgq = []
    mk.w_setup(a, True)
    a("s_cmp_ge_u32 s38, 2"); a("s_cbranch_scc1 L_at_nokvdma")
    a("s_bitcmp1_b32 s38, 0"); a("s_cselect_b32 s20, s70, s68"); a("s_cselect_b32 s21, s71, s69")
    a(f"s_mov_b32 s22, {D*DH*2}"); a("s_mov_b32 s23, 0x20000")
    a("v_lshrrev_b32 v3, 2, v1"); a("v_mul_u32_u24 v3, 36, v3"); a("v_and_b32 v4, 3, v1"); a("v_lshl_add_u32 v14, v4, 4, v3")
    a(f"s_mul_i32 s40, s36, {9*1024}"); a(f"s_add_u32 s40, s40, {mk.KVIMG}")
    a("s_mul_i32 s41, s36, 9"); a("s_lshl_b32 s42, s62, 2"); a("s_add_u32 s41, s41, s42")
    for t in range(9):
        a(f"s_add_u32 s42, s41, {t}"); a("s_cmp_ge_u32 s42, 36"); a("s_cselect_b32 s43, 36, 0"); a("s_sub_u32 s42, s42, s43"); a("s_mul_i32 s42, s42, 576")
        a(f"s_add_u32 m0, s40, {t*1024}")
        a("buffer_load_dwordx4 v14, s[20:23], s42 offen lds")
    a.label("L_at_nokvdma")
    if "nocp" not in mk.EXP:
        a("s_getpc_b64 s[4:5]")
        a.label("L_pc")
        a("s_sub_u32 s4, s4, L_pc-KSTART"); a("s_subb_u32 s5, s5, 0"); a("s_mov_b32 s6, L_end-KSTART"); a("s_mov_b32 s7, 0x20000")
        a("s_lshr_b32 s40, s2, 3"); a("s_lshl_b32 s40, s40, 2"); a("s_add_u32 s40, s40, s36")
        a("s_mul_hi_u32 s41, s40, 0x1c71c71d"); a("s_mul_i32 s41, s41, 9"); a("s_sub_u32 s40, s40, s41"); a("s_lshl_b32 s40, s40, 13")
        a("v_lshlrev_b32 v2, 7, v1")
        a("buffer_load_dword v20, v2, s[4:7], s40 offen")
    if TOUCH0:
        srd(a, 4, 80, F * D * 2); srd(a, 20, 72, D * D * 2)
        a("s_lshl_b32 s40, s2, 2"); a("s_add_u32 s40, s40, s36"); a(f"s_mul_i32 s41, s40, {41*128}"); a("v_min_u32 v2, 40, v1"); a("v_lshlrev_b32 v2, 7, v2")
        a("buffer_load_dword v20, v2, s[4:7], s41 offen")
        a(f"s_mul_i32 s41, s40, {6*128}"); a("v_min_u32 v2, 5, v1"); a("v_lshlrev_b32 v2, 7, v2")
        a("buffer_load_dword v21, v2, s[20:23], s41 offen")
    a("s_mov_b32 s74, s72"); a("s_mov_b32 s75, s73")
    mk.w_table(a); mk.w_scalars(a); mk.w_voffs(a)
    a(f"s_waitcnt vmcnt({3 if TOUCH0 else 1}) lgkmcnt(0)")
    a("s_barrier")
    def sig(tags, off):
        a.wait_vm(tags)
        a("s_mov_b64 exec, 1"); a(f"ds_add_u32 v0, v0 offset:{off}"); a("s_mov_b64 exec, -1")
    for g in range(mk.R):
        for grp in mk.wdma(g): mk.emit_group_to(a, grp)
        if g == 3: sig(["w0", "w1"], 8)
        if g == 5: sig(["w2", "w3"], 12)
    srd(a, 12, 86, PART_BYTES, PART_OFF)
    a("s_lshl_b32 s40, s37, 4"); a("s_add_u32 s40, s40, s38"); a("s_lshl_b32 s40, s40, 7"); a(f"s_add_u32 s40, s40, {FL_REL}")
    a("v_mov_b32 v2, 0"); a("v_lshlrev_b32 v3, 2, v1")
    a("s_mov_b32 exec_hi, 0"); a(f"buffer_store_dword v2, v3, s[12:15], s40 offen{CFG.SS}", tag="pst"); a("s_mov_b32 exec_hi, -1")
    sig(["w4", "w5", "w6"], 16)
    a("s_cmp_ge_u32 s38, 2"); a("s_cbranch_scc1 L_at_nopubkv")
    a(f"s_lshl_b32 s43, s36, 11"); a(f"s_add_u32 s43, s43, {mk.KVH}"); a("v_add_u32 v3, s43, v11")
    a(f"s_mul_i32 s43, s39, {KV_PITCH}"); a(f"s_add_u32 s43, s43, {KV_OFF}")
    a("v_and_b32 v6, 31, v1"); a("v_lshrrev_b32 v4, 5, v1"); a("v_mul_u32_u24 v4, 320, v4"); a("v_lshl_add_u32 v4, v6, 4, v4"); a("v_lshlrev_b32 v7, 2, v1")
    mk.chk_issue(a, 20); mk.chk(a, "kvh", 20, 1, sleep=1)
    a("ds_read_b128 v[16:19], v3"); a("ds_read_b128 v[20:23], v3 offset:1024"); a("s_waitcnt lgkmcnt(0)")
    a("s_cmp_eq_u32 s38, 1"); a("s_cbranch_scc1 L_at_pubv")
    a(f"buffer_store_dwordx4 v[16:19], v11, s[28:31], s43 offen{CFG.SS}")
    a(f"buffer_store_dword v20, v7, s[28:31], s43 offen offset:1024{CFG.SS}")
    for off in (0x041F, 0x081F, 0x101F, 0x201F, 0x401F):
        a(f"ds_swizzle_b32 v22, v21 offset:{off:#x}"); a("s_waitcnt lgkmcnt(0)"); a("v_max_f32 v21, v21, v22")
    a(f"s_lshl_b32 s42, s39, 2"); a(f"s_add_u32 s42, s42, {KMAX_OFF}"); a("v_mov_b32 v7, 0")
    a(f"buffer_store_dword v21, v7, s[28:31], s42 offen{CFG.SS}")
    a("s_branch L_at_pubf")
    a.label("L_at_pubv")
    a("v_cmp_gt_u32 vcc, 20, v6")
    a("s_and_saveexec_b64 s[56:57], vcc")
    a(f"buffer_store_dwordx4 v[16:19], v4, s[28:31], s43 offen offset:1280{CFG.SS}")
    a(f"buffer_store_dwordx4 v[20:23], v4, s[28:31], s43 offen offset:{1280+640}{CFG.SS}")
    a("s_mov_b64 exec, s[56:57]")
    a.label("L_at_pubf")
    a("s_waitcnt vmcnt(0)")
    a("s_mov_b64 exec, 1"); a("ds_add_u32 v0, v0 offset:24"); a("s_mov_b64 exec, -1")
    a("s_cmp_lg_u32 s36, 0"); a("s_cbranch_scc1 L_at_nopubkv")
    a.lgq = []
    mk.chk_issue(a, 24); mk.chk(a, "kvs", 24, 1)
    a("s_lshl_b32 s40, s37, 1"); a("s_add_u32 s40, s40, s38"); a("s_lshl_b32 s40, s40, 2"); a("v_mov_b32 v7, 0"); a("v_mov_b32 v6, 1")
    a("s_mov_b64 exec, 1"); a(f"buffer_store_dword v6, v7, s[32:35], s40 offen{CFG.SS}"); a("s_mov_b64 exec, -1")
    a.label("L_at_nopubkv")
    a.vmq = ["pst"]; a.lgq = []
    a("v_mov_b32 v5, v11")
    a(f"v_add_u32 v{aK1}, {ATB}, v5")
    a("v_and_b32 v6, 31, v1"); a(f"v_lshlrev_b32 v{aK2}, 2, v6"); a(f"v_add_u32 v{aK2}, {ATB+1024}, v{aK2}")
    a("v_min_u32 v7, 19, v6"); a("v_cmp_eq_u32 vcc, 22, v6"); a("v_cndmask_b32 v7, v7, 18, vcc")
    a("v_lshrrev_b32 v8, 5, v1"); a("v_mul_u32_u24 v8, 320, v8"); a(f"v_lshl_add_u32 v9, v7, 4, v8")
    a(f"v_add_u32 v{aV}, {ATB+1280}, v9")
    a(f"s_mul_i32 s44, s36, {KV_PITCH}"); a(f"s_add_u32 s45, s44, {KV_OFF}"); a(f"s_add_u32 s44, s44, {ATB}")
    for c in (0, 1):
        for k in range(16): a(f"v_mov_b32 v{O_[c]+k}, 0")
        a(f"v_mov_b32 v{Q2[c]+2}, 0"); a(f"v_mov_b32 v{Q2[c]+3}, 0"); a(f"v_mov_b32 v{K2[c]+2}, 0"); a(f"v_mov_b32 v{K2[c]+3}, 0")
    a("s_lshl_b32 s43, s39, 5"); a("s_lshl_b32 s40, s38, 1"); a("s_add_u32 s43, s43, s40"); a(f"s_mul_i32 s43, s43, {Q_PITCH}"); a(f"s_add_u32 s43, s43, {Q_OFF}")
    a("v_lshlrev_b32 v10, 3, v1")
    a(f"s_add_u32 s10, s45, {16*GRP}"); a("s_bfe_u32 s40, s2, 0x40003"); a(f"s_mul_i32 s40, s40, {GRP}"); a("s_add_u32 s48, s45, s40")
    mk.chk_issue(a, 0); mk.chk(a, "aq", 0, mk.QI + 1, sleep=2)
    for c in (0, 1):
        a(f"buffer_load_dwordx4 v[{Q1[c]}:{Q1[c]+3}], v5, s[28:31], s43 offen offset:{c*Q_PITCH}{CFG.SL}", tag="q")
        a(f"buffer_load_dwordx2 v[{Q2[c]}:{Q2[c]+1}], v10, s[28:31], s43 offen offset:{c*Q_PITCH+1024}{CFG.SL}", tag="q")
    a("s_cmp_lg_u32 s36, 0"); a("s_cbranch_scc1 L_at_go")
    a("v_and_b32 v10, 31, v1"); a("v_lshlrev_b32 v10, 2, v10")
    a.label("L_at_poll")
    a(f"buffer_load_dword v12, v10, s[32:35], 0 offen{CFG.SP}")
    a("s_waitcnt vmcnt(0)")
    a("v_cmp_ne_u32 vcc, 1, v12")
    a("s_cbranch_vccz L_at_go")
    a("s_add_u32 s3, s3, 16"); a("s_cmp_ge_u32 s3, 0x400000"); a("s_cbranch_scc1 L_at_go")
    a("s_sleep 8"); a("s_branch L_at_poll")
    a.label("L_at_go")
    a.vmq = ["pst", "q", "q", "q", "q"]
    mk.arrive(a, 4, 14)
    mk.chk_issue(a, 4); mk.chk(a, "a1", 4, 1, sleep=1)
    stamps.stamp(a, 1)
    def nextgrp():
        a(f"s_add_u32 s48, s48, {GRP}"); a("s_cmp_eq_u32 s48, s10"); a("s_cselect_b32 s48, s45, s48")
    def kvdma(m, slot):
        a(f"s_add_u32 m0, s44, {slot*GRP}")
        for j in range(3): a(f"buffer_load_dwordx4 v5, s[28:31], s48 offen offset:{j*1024}{CFG.SL} lds", tag=f"kv{m}")
        nextgrp()
    a("v_lshlrev_b32 v13, 2, v1")
    a(f"s_mov_b32 s40, {KMAX_OFF}")
    a(f"buffer_load_dword v12, v13, s[28:31], s40 offen{CFG.SL}", tag="km")
    kvdma(0, 0); kvdma(1, 1)
    a.wait_vm("km")
    for off in (0x041F, 0x081F, 0x101F, 0x201F, 0x401F):
        a(f"ds_swizzle_b32 v13, v12 offset:{off:#x}"); a.wait_lg0(); a("v_max_f32 v12, v12, v13")
    a("v_mov_b32 v13, v12"); a("v_permlane32_swap_b32 v12, v13"); a("v_max_f32 v12, v12, v13")
    a("v_sqrt_f32 v12, v12"); a(f"v_mul_f32 v12, {f32(1+1/64.):#x}, v12"); a("v_mov_b32 v13, 0")
    a(f"v_cvt_pk_bf16_f32 v{K2[0]+1}, v12, v13"); a(f"v_mov_b32 v{K2[1]+1}, v{K2[0]+1}")
    a.wait_vm("kv0")
    mk.arrive(a, 4, 14)
    mk.chk_issue(a, 4); mk.chk(a, "a2", 4, 2)
    stamps.stamp(a, 2)
    a("s_setprio 1")

    def rdK(i, b):
        a(f"ds_read_b128 v[{K1[b]}:{K1[b]+3}], v{aK1} offset:{i*KV_PITCH}", tag=f"k{b}")
        a(f"ds_read_b32 v{K2[b]}, v{aK2} offset:{i*KV_PITCH}", tag=f"k{b}")
    def rdV(i, b):
        a(f"ds_read_b128 v[{VA[b]}:{VA[b]+3}], v{aV} offset:{i*KV_PITCH}", tag=f"v{b}")
        a(f"ds_read_b128 v[{VB[b]}:{VB[b]+3}], v{aV} offset:{i*KV_PITCH+640}", tag=f"v{b}")
    def qk(c, b):
        S = S_[c]
        return [f"v_mfma_f32_32x32x16_bf16 v[{S}:{S+15}], v[{K1[b]}:{K1[b]+3}], v[{Q1[c]}:{Q1[c]+3}], 0",
                f"v_mfma_f32_32x32x16_bf16 v[{S}:{S+15}], v[{K2[b]}:{K2[b]+3}], v[{Q2[c]}:{Q2[c]+3}], v[{S}:{S+15}]"]
    def pv(c, b):
        O = O_[c]; P = P_[c]
        return [f"v_mfma_f32_32x32x16_bf16 v[{O}:{O+15}], v[{VA[b]}:{VA[b]+3}], v[{P}:{P+3}], v[{O}:{O+15}]",
                f"v_mfma_f32_32x32x16_bf16 v[{O}:{O+15}], v[{VB[b]}:{VB[b]+3}], v[{P+4}:{P+7}], v[{O}:{O+15}]"]
    def cvt(d, s0):
        if 'perm' in mk.EXP: return f"v_perm_b32 v{d}, v{s0+1}, v{s0}, s60"
        return f"v_cvt_pk_bf16_f32 v{d}, v{s0}, v{s0+1}"
    a("s_mov_b32 s60, 0x07060302")
    def half(i, c, do_qk, do_pv, pre=None, mid=None):
        S = S_[c]; P = P_[c]; cn = 1 - c
        bq = (i + c) & 1
        bv = (i + 1) & 1 if c == 0 else i & 1
        mq = qk(cn, bq) if do_qk else [None, None]
        mp = pv(cn, bv) if do_pv else [None, None]
        slots = [mq[0], mq[1], mp[0], mp[1]]
        for s in range(4):
            if s == 0 and do_qk: a.wait_lg(f"k{bq}")
            if s == 2 and do_pv: a.wait_lg(f"v{bv}")
            if slots[s]: a(slots[s])
            if s == 0 and pre: pre()
            if s == 2 and mid: mid()
            for e in range(4): a(f"v_exp_f32 v{S+4*s+e}, v{S+4*s+e}")
            if s > 0:
                for k in range(2): a(cvt(P+2*(s-1)+k, S+4*(s-1)+2*k))
        for k in range(2): a(cvt(P+6+k, S+12+2*k))
    rdK(0, 0)
    a.wait_vm("q")
    a.wait_lg("k0")
    for m in qk(0, 0): a(m)
    a("s_nop 7"); a("s_nop 3")
    uid = [0]
    def body(first, last, dma, m=None):
        uid[0] += 1; u = uid[0]
        for i in range(4):
            def pre0():
                if i == 3:
                    if not last:
                        a(f"v_add_u32 v{aK1}, s46, v{aK1}"); a(f"v_add_u32 v{aK2}, s46, v{aK2}")
                        rdK(0, 0)
                else:
                    rdK(i + 1, (i + 1) & 1)
                rdV(i, i & 1)
                if i == 3 and not last: a(f"v_add_u32 v{aV}, s46, v{aV}")
                if i == 0 and not first and not last: mk.chk_issue(a, 4)
                if i == 2 and not last: mk.chk_issue(a, 4)
                if i == 3 and not last and PACE: mk.chk_issue(a, 0, v=13)
            for c in (0, 1):
                hs = 2 * i + c
                def mid():
                    if hs == 1 and not first and not last: mk.chk(a, f"w{u}", 4, "s52")
                    if hs == 1 and dma:
                        a("s_mov_b32 m0, s49"); a("s_nop 0")
                        for j in range(3):
                            a(f"buffer_load_dwordx4 v5, s[28:31], s48 offen offset:{j*1024}{CFG.SL} lds", tag=f"kv{m+2}" if m is not None else "kvn")
                    if hs == 3 and not last:
                        if m is None: a(f"s_waitcnt vmcnt({3 if dma else 0})")
                        else: a.wait_vm([f"kv{m+1}"] + (["pst", "clr"] if m == NPEEL - 1 else []))
                        mk.arrive(a, 4, 14); a("s_add_u32 s52, s52, s53")
                        if m is None and dma:
                            a("s_cmp_lg_u32 s50, s61"); a("s_cbranch_scc1 L_at_notouch")
                            a("buffer_load_dword v146, v144, s[4:7], s8 offen"); a("buffer_load_dword v147, v145, s[20:23], s9 offen")
                            a.label("L_at_notouch")
                    if hs == 5 and not last: mk.chk(a, f"r{u}", 4, "s52")
                    if hs == 7 and not last:
                        mk.arrive(a, 4, 14); a("s_add_u32 s52, s52, s53")
                if c == 0: half(i, 0, True, not (first and i == 0), pre=pre0, mid=mid)
                else: half(i, 1, not (last and i == 3), True, mid=mid)
    def advance():
        a("s_add_u32 s47, s47, 1"); a("s_cmp_eq_u32 s47, 3"); a("s_cselect_b32 s47, 0, s47")
        a("s_cmp_eq_u32 s47, 2"); a(f"s_cselect_b32 s46, {(-2*GRP) & 0xffffffff:#x}, s63")
        nextgrp()
        a(f"s_add_u32 s49, s49, {GRP}"); a(f"s_add_u32 s40, s44, {3*GRP}"); a("s_cmp_eq_u32 s49, s40"); a("s_cselect_b32 s49, s44, s49")
        if PACE:
            uid[0] += 1
            a("s_add_u32 s54, s54, s57")
            mk.chk(a, f"p{uid[0]}", 0, "s54", v=13, sleep=2)
    a("s_mov_b32 s47, 0"); a(f"s_mov_b32 s46, {GRP}"); a(f"s_mov_b32 s63, {GRP}"); a(f"s_add_u32 s49, s44, {2*GRP}")
    a("s_mov_b32 s53, 16"); a("s_mov_b32 s52, 32")
    a(f"s_mov_b32 s54, {PACE0*16}"); a(f"s_mov_b32 s57, {PACE*16}")
    a("s_bfe_u32 s61, s2, 0x30003"); a("s_add_u32 s61, s61, 3")
    srd(a, 4, 80, F * D * 2); srd(a, 20, 74, D * D * 2)
    a("s_lshl_b32 s40, s2, 2"); a("s_add_u32 s40, s40, s36"); a(f"s_mul_i32 s8, s40, {41*128}"); a(f"s_mul_i32 s9, s40, {6*128}")
    a("v_min_u32 v144, 40, v1"); a("v_lshlrev_b32 v144, 7, v144"); a("v_min_u32 v145, 5, v1"); a("v_lshlrev_b32 v145, 7, v145")
    a("s_bfe_u32 s62, s2, 0x10003"); a(f"s_sub_u32 s62, {14 - NPEEL}, s62"); a("s_cmp_lg_u32 s36, 0"); a("s_cselect_b32 s62, 99, s62")
    for m in range(NPEEL):
        body(m == 0, False, True, m)
        advance()
    a(f"s_mov_b32 s50, {14 - NPEEL}")
    if "noat" in mk.EXP:
        a("s_cmp_lg_u32 s36, 0"); a("s_cbranch_scc1 L_at_fin")
        a("v_mov_b32 v12, 128"); a("v_mov_b32 v10, 4096"); a("s_mov_b64 exec, 1"); a("buffer_atomic_add v10, v12, s[32:35], 0 offen"); a("s_mov_b64 exec, -1")
        a("s_branch L_at_fin")
    lg_in = list(a.lgq)
    i0 = len(a.items)
    if ALIGN is not None:
        a.raw(".p2align 6")
        for _ in range(ALIGN): a("s_nop 0")
    a.label("L_at_loop")
    body(False, False, True)
    a("s_cmp_lg_u32 s50, s62"); a("s_cbranch_scc1 L_at_nopk")
    a("v_mov_b32 v12, 128"); a("v_mov_b32 v10, 4096"); a("s_mov_b64 exec, 1"); a("buffer_atomic_add v10, v12, s[32:35], 0 offen"); a("s_mov_b64 exec, -1")
    a.label("L_at_nopk")
    advance()
    a("s_sub_u32 s50, s50, 1"); a("s_cmp_lg_u32 s50, 0"); a("s_cbranch_scc1 L_at_loop")
    assert a.lgq == lg_in, (a.lgq, lg_in)
    loop_ins = [x for x in a.items[i0:] if not isinstance(x, str)]
    assert check_backedge(loop_ins, loop_ins) == 0
    body(False, False, False)
    advance()
    body(False, True, False)
    for m in pv(1, 1): a(m)
    a("s_setprio 0")
    stamps.stamp(a, 3)
    a("s_nop 15")
    a(f"v_min_f32 v12, v{O_[0]+10}, v{O_[1]+10}")
    a(f"s_mov_b32 s40, {LTHR:#x}")
    a("v_cmp_nle_f32 vcc, s40, v12")
    a("s_nop 4")
    a("s_cbranch_vccz L_at_fin")
    fallback(a)
    a.label("L_at_fin")
    a(f"s_mul_i32 s43, s39, {NSTEP}"); a("s_lshl_b32 s40, s38, 1"); a("s_add_u32 s41, s43, s40"); a("s_add_u32 s41, s41, 288"); a("s_lshl_b32 s41, s41, 10")
    a("s_lshr_b32 s42, s40, 3"); a("s_add_u32 s43, s43, s42"); a("s_add_u32 s43, s43, 320"); a("s_lshl_b32 s43, s43, 10")
    a("s_and_b32 s42, s38, 1"); a("s_lshl_b32 s42, s42, 9"); a("s_add_u32 s43, s43, s42")
    a("s_bfe_u32 s42, s38, 0x10001"); a("s_lshl_b32 s42, s42, 3"); a("s_add_u32 s43, s43, s42")
    for c in (0, 1):
        O = O_[c]; T = S_[c]
        a(f"v_rcp_f32 v{T}, v{O+10}")
        for k in range(10): a(f"v_mul_f32 v{O+k}, v{O+k}, v{T}")
        for k in range(5): a(f"v_cvt_pk_bf16_f32 v{T+4+k}, v{O+2*k}, v{O+2*k+1}")
        a(f"buffer_store_dwordx4 v[{T+4}:{T+7}], v5, s[24:27], s41 offen offset:{c*1024}{CFG.SS}")
    a("s_mov_b32 exec_hi, 0")
    a(f"v_mov_b32 v{S_[0]+9}, v{S_[1]+8}")
    a(f"buffer_store_dwordx2 v[{S_[0]+8}:{S_[0]+9}], v5, s[24:27], s43 offen{CFG.SS}")
    a("s_mov_b32 exec_hi, -1")
    a("s_waitcnt vmcnt(0)")
    mk.arrive(a, 4, 14); a("s_add_u32 s52, s52, s53")
    a("s_cmp_lg_u32 s36, 0"); a("s_cbranch_scc1 L_at_nopub")
    a.lgq = []
    mk.chk_issue(a, 4); mk.chk(a, "fin", 4, "s52", sleep=1)
    a("s_lshl_b32 s40, s37, 4"); a("s_and_b32 s41, s38, 12"); a("s_add_u32 s40, s40, s41"); a("s_lshl_b32 s40, s40, 7")
    a("s_and_b32 s41, s38, 3"); a("s_lshl_b32 s41, s41, 2"); a("s_add_u32 s40, s40, s41"); a(f"s_add_u32 s40, s40, {FL_REL + 32}")
    mk.flag_send(a, 12, 40, 128, 12)
    a.label("L_at_nopub")
    for i in (4, 5): stamps.stamp(a, i)
    stamps.flush(a, 0, 55); stamps.tb_flush(a, 14, 55)

def fallback(a):
    a("v_and_b32 v6, 31, v1"); a("v_lshlrev_b32 v6, 2, v6")
    M = [P_[0], P_[1]]
    for c in (0, 1): a(f"v_mov_b32 v{M[c]}, 0xff800000")
    a(f"v_mov_b32 v{K2[0]+1}, 0")
    a(f"s_mov_b32 s42, {KV_OFF}")
    a.label("L_fb1")
    a(f"buffer_load_dwordx4 v[{K1[0]}:{K1[0]+3}], v5, s[28:31], s42 offen{CFG.SL}")
    a(f"buffer_load_dword v{K2[0]}, v6, s[28:31], s42 offen offset:1024{CFG.SL}")
    a("s_waitcnt vmcnt(0)")
    for c in (0, 1):
        S = S_[c]
        a(f"v_mfma_f32_32x32x16_bf16 v[{S}:{S+15}], v[{K1[0]}:{K1[0]+3}], v[{Q1[c]}:{Q1[c]+3}], 0")
        a(f"v_mfma_f32_32x32x16_bf16 v[{S}:{S+15}], v[{K2[0]}:{K2[0]+3}], v[{Q2[c]}:{Q2[c]+3}], v[{S}:{S+15}]")
    for c in (0, 1):
        S = S_[c]
        for k in range(8): a(f"v_max3_f32 v{M[c]}, v{M[c]}, v{S+2*k}, v{S+2*k+1}")
    a(f"s_add_u32 s42, s42, {KV_PITCH}"); a(f"s_cmp_lt_u32 s42, {KV_OFF + KV_BYTES}"); a("s_cbranch_scc1 L_fb1")
    a("v_cmp_gt_u32 vcc, 32, v1")
    a("s_mov_b32 s54, 0xffff0000")
    for c in (0, 1):
        m = M[c]; t = m + 1
        a(f"v_mov_b32 v{t}, v{m}"); a(f"v_permlane32_swap_b32 v{m}, v{t}"); a(f"v_max_f32 v{m}, v{m}, v{t}")
        a(f"v_sub_f32 v{m}, 0, v{m}")
        a(f"v_and_b32 v{t}, s54, v{m}"); a(f"v_sub_f32 v{m}, v{m}, v{t}")
        a(f"v_and_b32 v{t+1}, s54, v{m}"); a(f"v_sub_f32 v{m}, v{m}, v{t+1}")
        a(f"v_lshrrev_b32 v{t}, 16, v{t}"); a(f"v_or_b32 v{t}, v{t}, v{t+1}")
        a(f"v_lshrrev_b32 v{m}, 16, v{m}")
        a(f"v_cndmask_b32 v{Q2[c]+1}, 0, v{t}, vcc"); a(f"v_cndmask_b32 v{Q2[c]+2}, 0, v{m}, vcc")
        for k in range(16): a(f"v_mov_b32 v{O_[c]+k}, 0")
    a(f"v_mov_b32 v{K2[0]+1}, 0x3f803f80"); a(f"v_mov_b32 v{K2[0]+2}, 0x3f80")
    a(f"s_mov_b32 s42, {KV_OFF}")
    a.label("L_fb2")
    a(f"buffer_load_dwordx4 v[{K1[0]}:{K1[0]+3}], v5, s[28:31], s42 offen{CFG.SL}")
    a(f"buffer_load_dword v{K2[0]}, v6, s[28:31], s42 offen offset:1024{CFG.SL}")
    a(f"buffer_load_dwordx4 v[{VA[0]}:{VA[0]+3}], v9, s[28:31], s42 offen offset:1280{CFG.SL}")
    a(f"buffer_load_dwordx4 v[{VB[0]}:{VB[0]+3}], v9, s[28:31], s42 offen offset:{1280+640}{CFG.SL}")
    a("s_waitcnt vmcnt(0)")
    for c in (0, 1):
        S = S_[c]
        a(f"v_mfma_f32_32x32x16_bf16 v[{S}:{S+15}], v[{K1[0]}:{K1[0]+3}], v[{Q1[c]}:{Q1[c]+3}], 0")
        a(f"v_mfma_f32_32x32x16_bf16 v[{S}:{S+15}], v[{K2[0]}:{K2[0]+3}], v[{Q2[c]}:{Q2[c]+3}], v[{S}:{S+15}]")
    for c in (0, 1):
        S = S_[c]; P = P_[c]; O = O_[c]
        for k in range(16): a(f"v_exp_f32 v{S+k}, v{S+k}")
        for k in range(8): a(f"v_cvt_pk_bf16_f32 v{P+k}, v{S+2*k}, v{S+2*k+1}")
        a(f"v_mfma_f32_32x32x16_bf16 v[{O}:{O+15}], v[{VA[0]}:{VA[0]+3}], v[{P}:{P+3}], v[{O}:{O+15}]")
        a(f"v_mfma_f32_32x32x16_bf16 v[{O}:{O+15}], v[{VB[0]}:{VB[0]+3}], v[{P+4}:{P+7}], v[{O}:{O+15}]")
    a("s_nop 7")
    a(f"s_add_u32 s42, s42, {KV_PITCH}"); a(f"s_cmp_lt_u32 s42, {KV_OFF + KV_BYTES}"); a("s_cbranch_scc1 L_fb2")
    a("s_nop 15")
    a.vmq = []
```

```python
from dsl import *
from layout import *
import stamps, struct
def f32(x): return struct.unpack("<I", struct.pack("<f", x))[0]

import mk
ATB = mk.KVIMG
GRP = 4 * KV_PITCH
Q1 = [16, 24]; Q2 = [20, 28]
S_ = [32, 48]; P_ = [64, 72]; O_ = [80, 96]
K1 = [112, 120]; K2 = [116, 124]
VA = [128, 136]; VB = [132, 140]
aK1, aK2, aV = 2, 3, 4
LTHR = f32(2.0 ** -60)


import cfg as CFG
def srd(a, d, p, nbytes, off=0):
    if off: a(f"s_add_u32 s{d}, s{p}, {off}"); a(f"s_addc_u32 s{d+1}, s{p+1}, 0")
    else: a(f"s_mov_b32 s{d}, s{p}"); a(f"s_mov_b32 s{d+1}, s{p+1}")
    a(f"s_mov_b32 s{d+2}, {nbytes}"); a(f"s_mov_b32 s{d+3}, 0x20000")

ALIGN = 0; NPEEL = 1; APRE = 5; TOUCH0 = False
PACE0 = 6; PACE = 3
def gen_at(a):
    a.label("L_at")
    a.vmq = []; a.lgq = []
    a("v_mov_b32 v28, 136")
    a("s_or_b32 s40, s2, s36"); a("s_cmp_lg_u32 s40, 0"); a("s_cbranch_scc1 L_at_notag")
    a("s_memrealtime s[60:61]"); a("s_waitcnt lgkmcnt(0)")
    a("s_or_b32 s60, s60, 1"); a("s_or_b32 s61, s61, 0x80000000"); a("v_mov_b32 v24, s60"); a("v_mov_b32 v25, s61")
    a("s_mov_b64 exec, 1"); a(f"buffer_store_dwordx2 v[24:25], v28, s[32:35], 0 offen{CFG.SS}"); a("s_mov_b64 exec, -1")
    a.label("L_at_notag")
    a.vmq = []
    if "nocp" not in mk.EXP:
        a("s_getpc_b64 s[4:5]")
        a.label("L_pc")
        a("s_sub_u32 s4, s4, L_pc-KSTART"); a("s_subb_u32 s5, s5, 0"); a("s_mov_b32 s6, L_end-KSTART"); a("s_mov_b32 s7, 0x20000")
        a("s_lshr_b32 s40, s2, 3"); a("s_lshl_b32 s40, s40, 2"); a("s_add_u32 s40, s40, s36")
        a("s_mul_hi_u32 s41, s40, 0x1c71c71d"); a("s_mul_i32 s41, s41, 9"); a("s_sub_u32 s40, s40, s41"); a("s_lshl_b32 s40, s40, 13")
        a("v_lshlrev_b32 v2, 7, v1")
        a("buffer_load_dword v20, v2, s[4:7], s40 offen")
    mk.w_setup(a, True)
    a("s_cmp_ge_u32 s38, 2"); a("s_cbranch_scc1 L_at_nokvdma")
    a("s_bitcmp1_b32 s38, 0"); a("s_cselect_b32 s20, s70, s68"); a("s_cselect_b32 s21, s71, s69")
    a(f"s_mov_b32 s22, {D*DH*2}"); a("s_mov_b32 s23, 0x20000")
    a("v_lshrrev_b32 v3, 2, v1"); a("v_mul_u32_u24 v3, 36, v3"); a("v_and_b32 v4, 3, v1"); a("v_lshl_add_u32 v14, v4, 4, v3")
    a(f"s_mul_i32 s40, s36, {9*1024}"); a(f"s_add_u32 s40, s40, {mk.KVIMG}")
    a("s_mul_i32 s41, s36, 9"); a("s_lshl_b32 s42, s62, 2"); a("s_add_u32 s41, s41, s42")
    for t in range(9):
        a(f"s_add_u32 s42, s41, {t}"); a("s_cmp_ge_u32 s42, 36"); a("s_cselect_b32 s43, 36, 0"); a("s_sub_u32 s42, s42, s43"); a("s_mul_i32 s42, s42, 576")
        a(f"s_add_u32 m0, s40, {t*1024}")
        a("buffer_load_dwordx4 v14, s[20:23], s42 offen lds")
    a.label("L_at_nokvdma")
    a("s_waitcnt vmcnt(0)")
    a.vmq = []
    a("s_mov_b32 s74, s72"); a("s_mov_b32 s75, s73")
    mk.w_table(a); mk.w_scalars(a); mk.w_voffs(a)
    a("s_waitcnt lgkmcnt(0)")
    a("s_barrier")
    def sig(tags, off):
        a.wait_vm(tags)
        a("s_mov_b64 exec, 1"); a(f"ds_add_u32 v0, v0 offset:{off}"); a("s_mov_b64 exec, -1")
    for g in range(mk.R):
        for grp in mk.wdma(g): mk.emit_group_to(a, grp)
        if g == 3: sig(["w0", "w1"], 8)
        if g == 5: sig(["w2", "w3"], 12)
    a(f"buffer_load_dwordx2 v[24:25], v28, s[32:35], 0 offen{CFG.SP}", tag="tag")
    srd(a, 12, 86, PART_BYTES, PART_OFF)
    sig(["w4", "w5", "w6"], 16)
    a.wait_vm("tag")
    a.label("L_at_tagchk")
    a("v_readfirstlane_b32 s60, v24"); a("v_readfirstlane_b32 s61, v25")
    a("s_min_u32 s40, s60, s61"); a("s_cmp_lg_u32 s40, 0"); a("s_cbranch_scc1 L_at_tagok")
    a("s_add_u32 s3, s3, 16"); a("s_cmp_ge_u32 s3, 0x400000"); a("s_cbranch_scc1 L_at_tagok")
    a("s_sleep 8")
    a(f"buffer_load_dwordx2 v[24:25], v28, s[32:35], 0 offen{CFG.SP}"); a("s_waitcnt vmcnt(0)")
    a("s_branch L_at_tagchk")
    a.label("L_at_tagok")
    a("ds_write_b32 v0, v24 offset:28"); a("ds_write_b32 v0, v25 offset:32")
    a.vmq = []
    a("s_cmp_ge_u32 s38, 2"); a("s_cbranch_scc1 L_at_nopubkv")
    a(f"s_lshl_b32 s43, s36, 11"); a(f"s_add_u32 s43, s43, {mk.KVH}"); a("v_add_u32 v3, s43, v11")
    a(f"s_mul_i32 s43, s39, {KV_PITCH}"); a(f"s_add_u32 s43, s43, {KV_OFF}")
    a("v_and_b32 v6, 31, v1"); a("v_lshrrev_b32 v4, 5, v1"); a("v_mul_u32_u24 v4, 320, v4"); a("v_lshl_add_u32 v4, v6, 4, v4"); a("v_lshlrev_b32 v7, 2, v1")
    mk.chk_issue(a, 20); mk.chk(a, "kvh", 20, 1, sleep=1)
    a("ds_read_b128 v[16:19], v3"); a("ds_read_b128 v[20:23], v3 offset:1024"); a("s_waitcnt lgkmcnt(0)")
    a("s_cmp_eq_u32 s38, 1"); a("s_cbranch_scc1 L_at_pubv")
    a(f"buffer_store_dwordx4 v[16:19], v11, s[28:31], s43 offen{CFG.SS}")
    a(f"buffer_store_dword v20, v7, s[28:31], s43 offen offset:1024{CFG.SS}")
    for off in (0x041F, 0x081F, 0x101F, 0x201F, 0x401F):
        a(f"ds_swizzle_b32 v22, v21 offset:{off:#x}"); a("s_waitcnt lgkmcnt(0)"); a("v_max_f32 v21, v21, v22")
    a(f"s_lshl_b32 s42, s39, 2"); a(f"s_add_u32 s42, s42, {KMAX_OFF}"); a("v_mov_b32 v7, 0")
    a(f"buffer_store_dword v21, v7, s[28:31], s42 offen{CFG.SS}")
    a("s_branch L_at_pubf")
    a.label("L_at_pubv")
    a("v_cmp_gt_u32 vcc, 20, v6")
    a("s_and_saveexec_b64 s[56:57], vcc")
    a(f"buffer_store_dwordx4 v[16:19], v4, s[28:31], s43 offen offset:1280{CFG.SS}")
    a(f"buffer_store_dwordx4 v[20:23], v4, s[28:31], s43 offen offset:{1280+640}{CFG.SS}")
    a("s_mov_b64 exec, s[56:57]")
    a.label("L_at_pubf")
    a("s_waitcnt vmcnt(0)")
    a("s_mov_b64 exec, 1"); a("ds_add_u32 v0, v0 offset:24"); a("s_mov_b64 exec, -1")
    a("s_cmp_lg_u32 s36, 0"); a("s_cbranch_scc1 L_at_nopubkv")
    a.lgq = []
    mk.chk_issue(a, 24); mk.chk(a, "kvs", 24, 1)
    a("s_lshl_b32 s40, s37, 1"); a("s_add_u32 s40, s40, s38"); a("s_lshl_b32 s40, s40, 2"); a(f"s_add_u32 s40, s40, {KVF_OFF}")
    a("v_and_b32 v7, 15, v1"); a("v_lshlrev_b32 v7, 8, v7"); a("v_bfe_u32 v6, v1, 4, 1"); a("v_lshl_add_u32 v7, v6, 7, v7")
    a("v_cmp_eq_u32 vcc, 0, v6"); a("v_cndmask_b32 v6, v25, v24, vcc")
    a("s_mov_b32 exec_hi, 0"); a(f"buffer_store_dword v6, v7, s[28:31], s40 offen{CFG.SS}"); a("s_mov_b32 exec_hi, -1")
    a.label("L_at_nopubkv")
    a.vmq = []; a.lgq = []
    a("v_mov_b32 v5, v11")
    a(f"v_add_u32 v{aK1}, {ATB}, v5")
    a("v_and_b32 v6, 31, v1"); a(f"v_lshlrev_b32 v{aK2}, 2, v6"); a(f"v_add_u32 v{aK2}, {ATB+1024}, v{aK2}")
    a("v_min_u32 v7, 19, v6"); a("v_cmp_eq_u32 vcc, 22, v6"); a("v_cndmask_b32 v7, v7, 18, vcc")
    a("v_lshrrev_b32 v8, 5, v1"); a("v_mul_u32_u24 v8, 320, v8"); a(f"v_lshl_add_u32 v9, v7, 4, v8")
    a(f"v_add_u32 v{aV}, {ATB+1280}, v9")
    a(f"s_mul_i32 s44, s36, {KV_PITCH}"); a(f"s_add_u32 s45, s44, {KV_OFF}"); a(f"s_add_u32 s44, s44, {ATB}")
    for c in (0, 1):
        for k in range(16): a(f"v_mov_b32 v{O_[c]+k}, 0")
        a(f"v_mov_b32 v{Q2[c]+2}, 0"); a(f"v_mov_b32 v{Q2[c]+3}, 0"); a(f"v_mov_b32 v{K2[c]+2}, 0"); a(f"v_mov_b32 v{K2[c]+3}, 0")
    a("s_mul_i32 s43, s36, 3072"); a(f"s_add_u32 s43, s43, {mk.QH}"); a("v_lshl_add_u32 v10, v1, 3, s43")
    a(f"s_add_u32 s10, s45, {16*GRP}"); a("s_bfe_u32 s40, s2, 0x40003"); a(f"s_mul_i32 s40, s40, {GRP}"); a("s_add_u32 s48, s45, s40")
    a("s_cmp_lg_u32 s36, 0"); a("s_cbranch_scc1 L_at_go")
    mk.chk_issue(a, 0); mk.chk(a, "apre", 0, APRE, sleep=2)
    a("v_lshlrev_b32 v15, 2, v1"); a("s_bfe_u32 s40, s2, 0x40003"); a("s_lshl_b32 s40, s40, 8"); a(f"s_add_u32 s40, s40, {KVF_OFF}")
    a("v_cmp_gt_u32 vcc, 32, v1"); a("v_mov_b32 v12, s60"); a("v_mov_b32 v13, s61"); a("v_cndmask_b32 v13, v13, v12, vcc")
    a.label("L_at_poll")
    a(f"buffer_load_dword v12, v15, s[28:31], s40 offen{CFG.SP}")
    a("s_waitcnt vmcnt(0)")
    a("v_cmp_ne_u32 vcc, v13, v12")
    a("s_cbranch_vccz L_at_go")
    a("s_add_u32 s3, s3, 16"); a("s_cmp_ge_u32 s3, 0x400000"); a("s_cbranch_scc1 L_at_go")
    a("s_sleep 12"); a("s_branch L_at_poll")
    a.label("L_at_go")
    a.vmq = []
    mk.arrive(a, 4, 14)
    mk.chk_issue(a, 4); mk.chk(a, "a1", 4, 1, sleep=1)
    stamps.stamp(a, 1)
    def nextgrp():
        a(f"s_add_u32 s48, s48, {GRP}"); a("s_cmp_eq_u32 s48, s10"); a("s_cselect_b32 s48, s45, s48")
    def kvdma(m, slot):
        a(f"s_add_u32 m0, s44, {slot*GRP}")
        for j in range(3): a(f"buffer_load_dwordx4 v5, s[28:31], s48 offen offset:{j*1024}{CFG.SL} lds", tag=f"kv{m}")
        nextgrp()
    a("v_lshlrev_b32 v13, 2, v1")
    a(f"s_mov_b32 s40, {KMAX_OFF}")
    a(f"buffer_load_dword v12, v13, s[28:31], s40 offen{CFG.SL}", tag="km")
    kvdma(0, 0); kvdma(1, 1)
    a.wait_vm("km")
    for off in (0x041F, 0x081F, 0x101F, 0x201F, 0x401F):
        a(f"ds_swizzle_b32 v13, v12 offset:{off:#x}"); a.wait_lg0(); a("v_max_f32 v12, v12, v13")
    a("v_mov_b32 v13, v12"); a("v_permlane32_swap_b32 v12, v13"); a("v_max_f32 v12, v12, v13")
    a("v_sqrt_f32 v12, v12"); a(f"v_mul_f32 v12, {f32(1+1/64.):#x}, v12"); a("v_mov_b32 v13, 0")
    a(f"v_cvt_pk_bf16_f32 v{K2[0]+1}, v12, v13"); a(f"v_mov_b32 v{K2[1]+1}, v{K2[0]+1}")
    a("v_add_u32 v12, s43, v5")
    mk.chk_issue(a, 0); mk.chk(a, "aq", 0, mk.QI + 1, sleep=1)
    for c in (0, 1):
        a(f"ds_read_b128 v[{Q1[c]}:{Q1[c]+3}], v12 offset:{c*1536}"); a(f"ds_read_b64 v[{Q2[c]}:{Q2[c]+1}], v10 offset:{c*1536+1024}")
    a.wait_vm("kv0"); a.wait_lg0()
    mk.arrive(a, 4, 14)
    mk.chk_issue(a, 4); mk.chk(a, "a2", 4, 2)
    stamps.stamp(a, 2)
    a("s_setprio 1")

    def rdK(i, b):
        a(f"ds_read_b128 v[{K1[b]}:{K1[b]+3}], v{aK1} offset:{i*KV_PITCH}", tag=f"k{b}")
        a(f"ds_read_b32 v{K2[b]}, v{aK2} offset:{i*KV_PITCH}", tag=f"k{b}")
    def rdV(i, b):
        a(f"ds_read_b128 v[{VA[b]}:{VA[b]+3}], v{aV} offset:{i*KV_PITCH}", tag=f"v{b}")
        a(f"ds_read_b128 v[{VB[b]}:{VB[b]+3}], v{aV} offset:{i*KV_PITCH+640}", tag=f"v{b}")
    def qk(c, b):
        S = S_[c]
        return [f"v_mfma_f32_32x32x16_bf16 v[{S}:{S+15}], v[{K1[b]}:{K1[b]+3}], v[{Q1[c]}:{Q1[c]+3}], 0",
                f"v_mfma_f32_32x32x16_bf16 v[{S}:{S+15}], v[{K2[b]}:{K2[b]+3}], v[{Q2[c]}:{Q2[c]+3}], v[{S}:{S+15}]"]
    def pv(c, b):
        O = O_[c]; P = P_[c]
        return [f"v_mfma_f32_32x32x16_bf16 v[{O}:{O+15}], v[{VA[b]}:{VA[b]+3}], v[{P}:{P+3}], v[{O}:{O+15}]",
                f"v_mfma_f32_32x32x16_bf16 v[{O}:{O+15}], v[{VB[b]}:{VB[b]+3}], v[{P+4}:{P+7}], v[{O}:{O+15}]"]
    def cvt(d, s0):
        if 'perm' in mk.EXP: return f"v_perm_b32 v{d}, v{s0+1}, v{s0}, s60"
        return f"v_cvt_pk_bf16_f32 v{d}, v{s0}, v{s0+1}"
    def half(i, c, do_qk, do_pv, pre=None, mid=None):
        S = S_[c]; P = P_[c]; cn = 1 - c
        bq = (i + c) & 1
        bv = (i + 1) & 1 if c == 0 else i & 1
        mq = qk(cn, bq) if do_qk else [None, None]
        mp = pv(cn, bv) if do_pv else [None, None]
        slots = [mq[0], mq[1], mp[0], mp[1]]
        for s in range(4):
            if s == 0 and do_qk: a.wait_lg(f"k{bq}")
            if s == 2 and do_pv: a.wait_lg(f"v{bv}")
            if slots[s]: a(slots[s])
            if s == 0 and pre: pre()
            if s == 2 and mid: mid()
            for e in range(4): a(f"v_exp_f32 v{S+4*s+e}, v{S+4*s+e}")
            if s > 0:
                for k in range(2): a(cvt(P+2*(s-1)+k, S+4*(s-1)+2*k))
        for k in range(2): a(cvt(P+6+k, S+12+2*k))
    rdK(0, 0)
    a.wait_lg("k0")
    for m in qk(0, 0): a(m)
    a("s_nop 7"); a("s_nop 3")
    uid = [0]
    def body(first, last, dma, m=None):
        uid[0] += 1; u = uid[0]
        for i in range(4):
            def pre0():
                if i == 3:
                    if not last:
                        a(f"v_add_u32 v{aK1}, s46, v{aK1}"); a(f"v_add_u32 v{aK2}, s46, v{aK2}")
                        rdK(0, 0)
                else:
                    rdK(i + 1, (i + 1) & 1)
                rdV(i, i & 1)
                if i == 3 and not last: a(f"v_add_u32 v{aV}, s46, v{aV}")
                if i == 0 and not first and not last: mk.chk_issue(a, 4)
                if i == 2 and not last: mk.chk_issue(a, 4)
                if i == 3 and not last and PACE: mk.chk_issue(a, 0, v=13)
            for c in (0, 1):
                hs = 2 * i + c
                def mid():
                    if hs == 1 and not first and not last: mk.chk(a, f"w{u}", 4, "s52")
                    if hs == 1 and dma:
                        a("s_mov_b32 m0, s49"); a("s_nop 0")
                        for j in range(3):
                            a(f"buffer_load_dwordx4 v5, s[28:31], s48 offen offset:{j*1024}{CFG.SL} lds", tag=f"kv{m+2}" if m is not None else "kvn")
                    if hs == 3 and not last:
                        if m is None: a(f"s_waitcnt vmcnt({3 if dma else 0})")
                        else: a.wait_vm([f"kv{m+1}"] + (["pst", "clr"] if m == NPEEL - 1 else []))
                        mk.arrive(a, 4, 14); a("s_add_u32 s52, s52, s53")
                        if m is None and dma:
                            a("s_cmp_lg_u32 s50, s62"); a("s_cbranch_scc1 L_at_notouch")
                            a("buffer_load_dword v146, v144, s[4:7], s8 offen"); a("buffer_load_dword v147, v145, s[20:23], s9 offen")
                            a.label("L_at_notouch")
                    if hs == 5 and not last: mk.chk(a, f"r{u}", 4, "s52")
                    if hs == 7 and not last:
                        mk.arrive(a, 4, 14); a("s_add_u32 s52, s52, s53")
                if c == 0: half(i, 0, True, not (first and i == 0), pre=pre0, mid=mid)
                else: half(i, 1, not (last and i == 3), True, mid=mid)
    def advance():
        a("s_add_u32 s47, s47, 1"); a("s_cmp_eq_u32 s47, 3"); a("s_cselect_b32 s47, 0, s47")
        a("s_cmp_eq_u32 s47, 2"); a(f"s_cselect_b32 s46, {(-2*GRP) & 0xffffffff:#x}, s63")
        nextgrp()
        a(f"s_add_u32 s49, s49, {GRP}"); a(f"s_add_u32 s40, s44, {3*GRP}"); a("s_cmp_eq_u32 s49, s40"); a("s_cselect_b32 s49, s44, s49")
        if PACE:
            uid[0] += 1
            a("s_add_u32 s54, s54, s57")
            mk.chk(a, f"p{uid[0]}", 0, "s54", v=13, sleep=2)
    a("s_mov_b32 s47, 0"); a(f"s_mov_b32 s46, {GRP}"); a(f"s_mov_b32 s63, {GRP}"); a(f"s_add_u32 s49, s44, {2*GRP}")
    a("s_mov_b32 s53, 16"); a("s_mov_b32 s52, 32")
    a(f"s_mov_b32 s54, {PACE0*16}"); a(f"s_mov_b32 s57, {PACE*16}")
    a("s_bfe_u32 s62, s2, 0x30003"); a("s_add_u32 s62, s62, 3")
    srd(a, 4, 80, F * D * 2); srd(a, 20, 74, D * D * 2)
    a("s_lshl_b32 s40, s2, 2"); a("s_add_u32 s40, s40, s36"); a(f"s_mul_i32 s8, s40, {41*128}"); a(f"s_mul_i32 s9, s40, {6*128}")
    a("v_min_u32 v144, 40, v1"); a("v_lshlrev_b32 v144, 7, v144"); a("v_min_u32 v145, 5, v1"); a("v_lshlrev_b32 v145, 7, v145")
    for m in range(NPEEL):
        body(m == 0, False, True, m)
        advance()
    a(f"s_mov_b32 s50, {14 - NPEEL}")
    if "noat" in mk.EXP: a("s_branch L_at_fin")
    lg_in = list(a.lgq)
    i0 = len(a.items)
    if ALIGN is not None:
        a.raw(".p2align 6")
        for _ in range(ALIGN): a("s_nop 0")
    a.label("L_at_loop")
    body(False, False, True)
    advance()
    a("s_sub_u32 s50, s50, 1"); a("s_cmp_lg_u32 s50, 0"); a("s_cbranch_scc1 L_at_loop")
    assert a.lgq == lg_in, (a.lgq, lg_in)
    loop_ins = [x for x in a.items[i0:] if not isinstance(x, str)]
    assert check_backedge(loop_ins, loop_ins) == 0
    body(False, False, False)
    advance()
    body(False, True, False)
    for m in pv(1, 1): a(m)
    a("s_setprio 0")
    stamps.stamp(a, 3)
    a("s_nop 15")
    a(f"v_min_f32 v12, v{O_[0]+10}, v{O_[1]+10}")
    a(f"s_mov_b32 s40, {LTHR:#x}")
    a("v_cmp_nle_f32 vcc, s40, v12")
    a("s_nop 4")
    a("s_cbranch_vccz L_at_fin")
    fallback(a)
    a.label("L_at_fin")
    a(f"s_mul_i32 s43, s39, {NSTEP}"); a("s_lshl_b32 s40, s38, 1"); a("s_add_u32 s41, s43, s40"); a("s_add_u32 s41, s41, 288"); a("s_lshl_b32 s41, s41, 10")
    a("s_lshr_b32 s42, s40, 3"); a("s_add_u32 s43, s43, s42"); a("s_add_u32 s43, s43, 320"); a("s_lshl_b32 s43, s43, 10")
    a("s_and_b32 s42, s38, 1"); a("s_lshl_b32 s42, s42, 9"); a("s_add_u32 s43, s43, s42")
    a("s_bfe_u32 s42, s38, 0x10001"); a("s_lshl_b32 s42, s42, 3"); a("s_add_u32 s43, s43, s42")
    for c in (0, 1):
        O = O_[c]; T = S_[c]
        a(f"v_rcp_f32 v{T}, v{O+10}")
        for k in range(10): a(f"v_mul_f32 v{O+k}, v{O+k}, v{T}")
        for k in range(5): a(f"v_cvt_pk_bf16_f32 v{T+4+k}, v{O+2*k}, v{O+2*k+1}")
        a(f"buffer_store_dwordx4 v[{T+4}:{T+7}], v5, s[24:27], s41 offen offset:{c*1024}{CFG.SS}")
    a("s_mov_b32 exec_hi, 0")
    a(f"v_mov_b32 v{S_[0]+9}, v{S_[1]+8}")
    a(f"buffer_store_dwordx2 v[{S_[0]+8}:{S_[0]+9}], v5, s[24:27], s43 offen{CFG.SS}")
    a("s_mov_b32 exec_hi, -1")
    a("s_waitcnt vmcnt(0)")
    mk.arrive(a, 4, 14); a("s_add_u32 s52, s52, s53")
    a("s_cmp_lg_u32 s36, 0"); a("s_cbranch_scc1 L_at_nopub")
    a.lgq = []
    mk.chk_issue(a, 4); mk.chk(a, "fin", 4, "s52", sleep=1)
    a("s_lshl_b32 s40, s37, 4"); a("s_and_b32 s41, s38, 12"); a("s_add_u32 s40, s40, s41"); a("s_lshl_b32 s40, s40, 7")
    a("s_and_b32 s41, s38, 3"); a("s_lshl_b32 s41, s41, 2"); a("s_add_u32 s40, s40, s41"); a(f"s_add_u32 s40, s40, {FL_REL + 64}")
    mk.flag_send(a, 12, 40, 128, 12)
    a.label("L_at_nopub")
    for i in (4, 5): stamps.stamp(a, i)
    stamps.flush(a, 0, 55); stamps.tb_flush(a, 14, 55)

def fallback(a):
    a("v_and_b32 v6, 31, v1"); a("v_lshlrev_b32 v6, 2, v6")
    M = [P_[0], P_[1]]
    for c in (0, 1): a(f"v_mov_b32 v{M[c]}, 0xff800000")
    a(f"v_mov_b32 v{K2[0]+1}, 0")
    a(f"s_mov_b32 s42, {KV_OFF}")
    a.label("L_fb1")
    a(f"buffer_load_dwordx4 v[{K1[0]}:{K1[0]+3}], v5, s[28:31], s42 offen{CFG.SL}")
    a(f"buffer_load_dword v{K2[0]}, v6, s[28:31], s42 offen offset:1024{CFG.SL}")
    a("s_waitcnt vmcnt(0)")
    for c in (0, 1):
        S = S_[c]
        a(f"v_mfma_f32_32x32x16_bf16 v[{S}:{S+15}], v[{K1[0]}:{K1[0]+3}], v[{Q1[c]}:{Q1[c]+3}], 0")
        a(f"v_mfma_f32_32x32x16_bf16 v[{S}:{S+15}], v[{K2[0]}:{K2[0]+3}], v[{Q2[c]}:{Q2[c]+3}], v[{S}:{S+15}]")
    for c in (0, 1):
        S = S_[c]
        for k in range(8): a(f"v_max3_f32 v{M[c]}, v{M[c]}, v{S+2*k}, v{S+2*k+1}")
    a(f"s_add_u32 s42, s42, {KV_PITCH}"); a(f"s_cmp_lt_u32 s42, {KV_OFF + KV_BYTES}"); a("s_cbranch_scc1 L_fb1")
    a("v_cmp_gt_u32 vcc, 32, v1")
    a("s_mov_b32 s54, 0xffff0000")
    for c in (0, 1):
        m = M[c]; t = m + 1
        a(f"v_mov_b32 v{t}, v{m}"); a(f"v_permlane32_swap_b32 v{m}, v{t}"); a(f"v_max_f32 v{m}, v{m}, v{t}")
        a(f"v_sub_f32 v{m}, 0, v{m}")
        a(f"v_and_b32 v{t}, s54, v{m}"); a(f"v_sub_f32 v{m}, v{m}, v{t}")
        a(f"v_and_b32 v{t+1}, s54, v{m}"); a(f"v_sub_f32 v{m}, v{m}, v{t+1}")
        a(f"v_lshrrev_b32 v{t}, 16, v{t}"); a(f"v_or_b32 v{t}, v{t}, v{t+1}")
        a(f"v_lshrrev_b32 v{m}, 16, v{m}")
        a(f"v_cndmask_b32 v{Q2[c]+1}, 0, v{t}, vcc"); a(f"v_cndmask_b32 v{Q2[c]+2}, 0, v{m}, vcc")
        for k in range(16): a(f"v_mov_b32 v{O_[c]+k}, 0")
    a(f"v_mov_b32 v{K2[0]+1}, 0x3f803f80"); a(f"v_mov_b32 v{K2[0]+2}, 0x3f80")
    a(f"s_mov_b32 s42, {KV_OFF}")
    a.label("L_fb2")
    a(f"buffer_load_dwordx4 v[{K1[0]}:{K1[0]+3}], v5, s[28:31], s42 offen{CFG.SL}")
    a(f"buffer_load_dword v{K2[0]}, v6, s[28:31], s42 offen offset:1024{CFG.SL}")
    a(f"buffer_load_dwordx4 v[{VA[0]}:{VA[0]+3}], v9, s[28:31], s42 offen offset:1280{CFG.SL}")
    a(f"buffer_load_dwordx4 v[{VB[0]}:{VB[0]+3}], v9, s[28:31], s42 offen offset:{1280+640}{CFG.SL}")
    a("s_waitcnt vmcnt(0)")
    for c in (0, 1):
        S = S_[c]
        a(f"v_mfma_f32_32x32x16_bf16 v[{S}:{S+15}], v[{K1[0]}:{K1[0]+3}], v[{Q1[c]}:{Q1[c]+3}], 0")
        a(f"v_mfma_f32_32x32x16_bf16 v[{S}:{S+15}], v[{K2[0]}:{K2[0]+3}], v[{Q2[c]}:{Q2[c]+3}], v[{S}:{S+15}]")
    for c in (0, 1):
        S = S_[c]; P = P_[c]; O = O_[c]
        for k in range(16): a(f"v_exp_f32 v{S+k}, v{S+k}")
        for k in range(8): a(f"v_cvt_pk_bf16_f32 v{P+k}, v{S+2*k}, v{S+2*k+1}")
        a(f"v_mfma_f32_32x32x16_bf16 v[{O}:{O+15}], v[{VA[0]}:{VA[0]+3}], v[{P}:{P+3}], v[{O}:{O+15}]")
        a(f"v_mfma_f32_32x32x16_bf16 v[{O}:{O+15}], v[{VB[0]}:{VB[0]+3}], v[{P+4}:{P+7}], v[{O}:{O+15}]")
    a("s_nop 7")
    a(f"s_add_u32 s42, s42, {KV_PITCH}"); a(f"s_cmp_lt_u32 s42, {KV_OFF + KV_BYTES}"); a("s_cbranch_scc1 L_fb2")
    a("s_nop 15")
    a.vmq = []
```

```python
from dsl import *
from layout import *
import stamps, struct
def f32(x): return struct.unpack("<I", struct.pack("<f", x))[0]
EXP = set()
import cfg as CFG

XB = 112; ACC = 48; FR = 16; NFR = 8
LB = 1024
BIAS = 4096
SLOT = 16384; R = 7; KVIMG = LB + 7 * SLOT; PF = 6
NCH = 45
QH = KVIMG + 24576
KVH = KVIMG + 36864
PITCH2 = 320; STEP2 = 32 * PITCH2; GRP2 = 2 * STEP2; NRING2 = 5; NG2 = 21
ACC2 = 176; BR = 112
NQ = 31; QB = 12288
PRIO = False; FILLN = 2; PH = 3
HL = 56; OL = 61; PKI = 37; VO1 = 52; VO2 = 57; LAG = 0; QI = 5; APRIO = 6
def X(t): return f"v[{XB+4*t}:{XB+4*t+3}]"
def acc(c): return f"v[{ACC+16*c}:{ACC+16*c+15}]"
def acc2(u): return f"v[{ACC2+4*u}:{ACC2+4*u+3}]"
def acc32(t): return f"v[{ACC2+16*t}:{ACC2+16*t+15}]"
RA = 2

def srd(a, d, p, nbytes, off=0):
    if off: a(f"s_add_u32 s{d}, s{p}, {off}"); a(f"s_addc_u32 s{d+1}, s{p+1}, 0")
    else: a(f"s_mov_b32 s{d}, s{p}"); a(f"s_mov_b32 s{d+1}, s{p+1}")
    a(f"s_mov_b32 s{d+2}, {nbytes}"); a(f"s_mov_b32 s{d+3}, 0x20000")

def common(a):
    a("s_cmp_ge_u32 s2, 256"); a("s_cbranch_scc1 L_end")
    a("s_load_dwordx16 s[64:79], s[0:1], 0"); a("s_load_dwordx8 s[80:87], s[0:1], 64")
    a("v_lshrrev_b32 v2, 6, v0"); a("v_and_b32 v1, 63, v0"); a("v_readfirstlane_b32 s55, v2")
    stamps.stamp(a, 0)
    a("s_and_b32 s40, s2, 7"); a("s_lshr_b32 s41, s2, 3")
    a("s_and_b32 s37, s40, 1"); a("s_lshl_b32 s37, s37, 3"); a("s_and_b32 s42, s41, 7"); a("s_add_u32 s37, s37, s42")
    a("s_lshr_b32 s38, s40, 1"); a("s_lshl_b32 s38, s38, 2"); a("s_lshr_b32 s42, s41, 3"); a("s_add_u32 s38, s38, s42")
    a("s_and_b32 s36, s55, 3"); a("s_mov_b32 s3, 0")
    a("s_lshl_b32 s39, s37, 2"); a("s_add_u32 s39, s39, s36")
    a("v_lshlrev_b32 v11, 4, v1")
    a("s_waitcnt lgkmcnt(0)")
    srd(a, 24, 86, H_BYTES, H_OFF); srd(a, 28, 86, SM_BYTES, SM_OFF); srd(a, 32, 84, 256)
    a("v_mov_b32 v0, 4")
    a("v_mov_b32 v2, 0"); a("v_mov_b32 v3, 0"); a("ds_write_b64 v2, v[2:3]"); a("ds_write_b64 v2, v[2:3] offset:8"); a("ds_write_b64 v2, v[2:3] offset:16"); a("ds_write_b64 v2, v[2:3] offset:24")
    stamps.tb_init(a, 12)
    a("s_cmp_ge_u32 s55, 4"); a("s_cbranch_scc1 L_at")

def atomic_inc(a, label, off_expr_sgpr, val, vt=13):
    a(f"v_mov_b32 v{vt}, {off_expr_sgpr}"); a(f"v_mov_b32 v{vt+1}, {val}")
    a("s_mov_b64 exec, 1")
    a(f"buffer_atomic_add v{vt+1}, v{vt}, s[32:35], 0 offen")
    a("s_mov_b64 exec, -1")
    a.vmq = a.vmq[:-1]

def poll_issue(a, off, tag, va=14, vv=15):
    return [f"v_mov_b32 v{va}, {off}", (f"buffer_load_dword v{vv}, v{va}, s[32:35], 0 offen{CFG.SP}", tag)]
def poll_check(a, name, tag, shift, width, target, va=14, vv=15):
    a.wait_vm(tag)
    a("s_cmp_lg_u32 s36, 0"); a(f"s_cbranch_scc1 L_{name}_ok")
    a("s_mov_b32 s56, 0")
    a.label(f"L_{name}_chk")
    a(f"v_readfirstlane_b32 s40, v{vv}")
    a(f"s_bfe_u32 s40, s40, {shift | (width << 16):#x}")
    a(f"s_cmp_ge_u32 s40, {target}")
    a(f"s_cbranch_scc1 L_{name}_ok")
    a("s_add_u32 s56, s56, 1"); a("s_cmp_ge_u32 s56, 0x80000"); a(f"s_cbranch_scc1 L_{name}_ok")
    a("s_sleep 16")
    a(f"buffer_load_dword v{vv}, v{va}, s[32:35], 0 offen{CFG.SP}"); a.vmq = a.vmq[:-1]
    a("s_waitcnt vmcnt(0)")
    a(f"s_branch L_{name}_chk")
    a.label(f"L_{name}_ok")

def arrive(a, off, vtb=12):
    stamps.mark(a, vtb)
    a("s_mov_b64 exec, 1"); a(f"ds_add_u32 v0, v0 offset:{off}"); a("s_mov_b64 exec, -1")
def chk_issue(a, off, v=15): a(f"ds_read_b32 v{v}, v0 offset:{off}", tag="chk")
def chk(a, name, off, k, v=15, sleep=0):
    a.wait_lg("chk")
    a.label(f"L_c{name}")
    a(f"v_cmp_gt_u32 vcc, {16 * k if isinstance(k, int) else k}, v{v}")
    a(f"s_cbranch_vccz L_c{name}_ok")
    a("s_add_u32 s3, s3, 1"); a("s_cmp_ge_u32 s3, 0x400000"); a(f"s_cbranch_scc1 L_c{name}_ok")
    if sleep: a(f"s_sleep {sleep}")
    a(f"ds_read_b32 v{v}, v0 offset:{off}"); a.lgq = a.lgq[:-1]
    a("s_waitcnt lgkmcnt(0)")
    a(f"s_branch L_c{name}")
    a.label(f"L_c{name}_ok")

TAG = 60
def flag_send(a, srd_, base_sgpr, stride, vt=13):
    a(f"v_mov_b32 v{vt}, s{TAG+1}"); a(f"v_mov_b32 v{vt+1}, s{TAG}"); a("v_cmp_gt_u32 vcc, 4, v1"); a(f"v_cndmask_b32 v{vt+1}, v{vt}, v{vt+1}, vcc")
    a(f"v_mul_u32_u24 v{vt}, {stride}, v1")
    a("s_mov_b64 exec, 0xf0"); a(f"v_subrev_u32 v{vt}, {4*stride - 16}, v{vt}")
    a("s_mov_b64 exec, 0xff")
    a(f"buffer_store_dword v{vt+1}, v{vt}, s[{srd_}:{srd_+3}], s{base_sgpr} offen{CFG.SS}")
    a("s_mov_b64 exec, -1")
    a.vmq = a.vmq[:-1]
def flag_issue(srd_, line_sgpr, off, tag, va=14, vv=13):
    return ["PRIO2", f"v_and_b32 v{va}, 7, v1", f"v_lshlrev_b32 v{va}, 2, v{va}", "PRIO0",
            (f"buffer_load_dword v{vv}, v{va}, s[{srd_}:{srd_+3}], s{line_sgpr} offen offset:{off}{CFG.SP}", tag)]
def flag_check(a, name, tag, srd_, line_sgpr, off, va=14, vv=13):
    a.wait_vm(tag)
    a("s_cmp_lg_u32 s36, 0"); a(f"s_cbranch_scc1 L_{name}_ok")
    a.label(f"L_{name}_chk")
    a(f"v_cmp_ne_u32 s[40:41], s{TAG}, v{vv}"); a(f"v_cmp_ne_u32 vcc, s{TAG+1}, v{vv}")
    a("s_and_b32 s40, s40, 0x0f"); a("s_and_b32 s41, vcc_lo, 0xf0"); a("s_or_b32 s40, s40, s41")
    a(f"s_cbranch_scc0 L_{name}_ok")
    a("s_add_u32 s3, s3, 16"); a("s_cmp_ge_u32 s3, 0x400000"); a(f"s_cbranch_scc1 L_{name}_ok")
    a("s_sleep 4")
    a(f"buffer_load_dword v{vv}, v{va}, s[{srd_}:{srd_+3}], s{line_sgpr} offen offset:{off}{CFG.SP}"); a.vmq = a.vmq[:-1]
    a("s_waitcnt vmcnt(0)")
    a(f"s_branch L_{name}_chk")
    a.label(f"L_{name}_ok")

def w_setup(a, for_at):
    if for_at: srd(a, 8, 66, D * D * 2)
    for d, p in ((12, 76), (16, 78)):
        a(f"s_sub_u32 s{d}, s{p}, {BIAS}"); a(f"s_subb_u32 s{d+1}, s{p+1}, 0"); a(f"s_mov_b32 s{d+2}, {D*F*2 + BIAS}"); a(f"s_mov_b32 s{d+3}, 0x20000")
    a("s_bfe_u32 s62, s2, 0x30003"); a("s_lshr_b32 s40, s2, 6"); a("s_lshl_b32 s40, s40, 1"); a("s_add_u32 s62, s62, s40")
    a("s_cmp_ge_u32 s62, 9"); a("s_cselect_b32 s40, 9, 0"); a("s_sub_u32 s62, s62, s40")
    a("s_lshl_b32 s45, s36, 12"); a(f"s_add_u32 s45, s45, {LB}")
def w_table(a):
    for c in range(9):
        a(f"s_add_u32 s{64+c}, s62, {c}"); a(f"s_cmp_ge_u32 s{64+c}, 9"); a("s_cselect_b32 s40, 9, 0"); a(f"s_sub_u32 s{64+c}, s{64+c}, s40")
def w_scalars(a):
    a(f"s_mul_i32 s46, s36, {16*9216}"); a("s_mul_i32 s40, s38, 576"); a("s_add_u32 s46, s46, s40")
    a("s_and_b32 s40, s38, 1")
    a("s_lshl_b32 s41, s40, 6"); a("s_add_u32 s47, s46, s41")
    a("s_xor_b32 s41, s40, 1"); a("s_lshl_b32 s41, s41, 9"); a("s_add_u32 s48, s46, s41"); a(f"s_add_u32 s48, s48, {BIAS}")
    a(f"s_mul_i32 s49, s36, {16*1152}"); a("s_mul_i32 s41, s38, 72"); a("s_add_u32 s49, s49, s41")
def w_voffs(a):
    a("v_lshrrev_b32 v14, 3, v1"); a("v_bfe_u32 v15, v1, 1, 2"); a("v_and_b32 v13, 1, v1"); a("v_lshlrev_b32 v13, 4, v13")
    a("v_and_b32 v5, 2, v14"); a("v_xor_b32 v5, v15, v5")
    a("v_lshrrev_b32 v4, 1, v5"); a("v_mul_u32_u24 v4, 36, v4"); a("v_and_b32 v5, 1, v5"); a("v_lshl_add_u32 v4, v5, 5, v4")
    a("v_mul_u32_u24 v5, 1152, v14"); a("v_add3_u32 v6, v5, v4, v13")
    a("v_lshrrev_b32 v2, 2, v1"); a("v_mul_u32_u24 v2, 9216, v2"); a("v_and_b32 v3, 3, v1"); a("v_lshl_add_u32 v7, v3, 4, v2"); a("v_xor_b32 v8, 32, v7")
    a("v_bfe_u32 v5, v14, 1, 1"); a("v_xor_b32 v5, v15, v5"); a("v_lshl_add_u32 v5, v5, 5, v13")
    a("v_mul_u32_u24 v4, 9216, v14"); a("v_add_u32 v9, v4, v5"); a(f"v_add_u32 v9, {BIAS}, v9"); a(f"v_add_u32 v10, {8*9216 - 1024}, v9")
    for c in range(9): a(f"s_mul_i32 s{64+c}, s{64+c}, {64*9216}")
def wdma(g):
    p, c = divmod(g, 9); slot = g % R
    out = []
    for i in range(4):
        if p == 0:
            hc = 2 * g + (i >> 1); c = hc % 9
            if hc < 9:
                pre = [f"s_lshr_b32 s43, s{64+c}, 3", f"s_add_u32 s43, s43, s49"] if i % 2 == 0 else [f"s_add_u32 s43, s43, {8*1152}"]
                v, srd_ = 6, 8
            else:
                pre = [f"s_add_u32 s43, s{64+c}, s48"] if i % 2 == 0 else []
                v, srd_ = 7 + (i & 1), (12 if i % 2 == 0 else 16)
            out.append(pre + [f"s_add_u32 m0, s45, {slot*SLOT + i*1024}",
                              (f"buffer_load_dwordx4 v{v}, s[{srd_}:{srd_+3}], s43 offen lds", f"w{g}")])
        else:
            pre = []
            if i == 0:
                if g == 9: pre = ["v_xor_b32 v7, 64, v9", "v_subrev_u32 v7, 2048, v7", f"v_add_u32 v8, {8*9216 - 1024}, v7"]
                pre += [f"s_add_u32 m0, s45, {slot*SLOT}", f"s_add_u32 s43, s{64+c}, s47"]
                if c == 8: pre.append("s_add_u32 s47, s47, 128")
            v, srd_ = (9, 10, 7, 8)[i], (12 if i < 2 else 16)
            out.append(pre + [(f"buffer_load_dwordx4 v{v}, s[{srd_}:{srd_+3}], s43 offen offset:{i*1024} lds", f"w{g}")])
    return out
def emit_group_to(a, grp):
    for x in grp:
        if isinstance(x, tuple): a(x[0], tag=x[1])
        else: a(x)

def gen_g(a):
    srd(a, 4, 64, S * D * 2)
    for d, p, nb_ in ((8, 80, F * D * 2), (20, 72, D * D * 2)):
        a(f"s_sub_u32 s{d}, s{p}, {BIAS}"); a(f"s_subb_u32 s{d+1}, s{p+1}, 0"); a(f"s_mov_b32 s{d+2}, {nb_ + BIAS}"); a(f"s_mov_b32 s{d+3}, 0x20000")
    w_setup(a, False)
    a(f"s_mul_i32 s44, s39, {32*1152}")
    a("v_lshrrev_b32 v2, 3, v1"); a("v_and_b32 v3, 7, v1"); a("v_lshrrev_b32 v4, 1, v2"); a("v_xor_b32 v3, v3, v4")
    a("v_mul_u32_u24 v5, 1152, v2"); a("v_lshl_add_u32 v12, v3, 4, v5"); a("v_xor_b32 v13, 64, v12")
    w_table(a)
    def xdma(c, slot):
        a(f"s_lshl_b32 s43, s{64+c}, 7"); a("s_add_u32 s43, s43, s44")
        for i in range(4):
            a(f"s_add_u32 m0, s45, {slot*SLOT + i*1024}")
            a(f"s_add_u32 s42, s43, {8*i*1152}")
            a(f"buffer_load_dwordx4 v{12 + (i&1)}, s[4:7], s42 offen lds", tag=f"x{c}")
    for c in range(7): xdma(c, c)
    w_scalars(a)
    a(f"s_mul_i32 s51, s39, {NSTEP*1024}")
    a(f"s_mul_i32 s41, s38, {18*1024}"); a("s_add_u32 s50, s51, s41")
    a("s_mov_b32 s53, 0x3f803f80"); a("s_mov_b32 s54, 0xffff0000")
    a("v_and_b32 v2, 31, v1"); a("v_lshrrev_b32 v3, 5, v1"); a("v_bfe_u32 v4, v1, 1, 3"); a("v_xor_b32 v3, v3, v4")
    a("v_lshlrev_b32 v2, 7, v2"); a("v_lshl_add_u32 v2, v3, 4, v2"); a("v_add_u32 v2, s45, v2")
    a("v_xor_b32 v3, 32, v2"); a("v_xor_b32 v4, 64, v2"); a("v_xor_b32 v5, 96, v2")
    for k in range(4): a(f"v_add_u32 v{6+k}, {4*SLOT}, v{2+k}")
    st = ACC
    for k in range(4): a(f"v_mov_b32 v{st+k}, 0")
    def stats(c):
        for t in range(4*c, 4*c+4):
            for k in range(4):
                r = XB + 4*t + k
                a(f"v_dot2c_f32_bf16 v{st + (k&1)}, s53, v{r}")
                a(f"v_dot2c_f32_bf16 v{st + 2 + (k&1)}, v{r}, v{r}")
    for c in range(9):
        slot = c if c < 7 else c - 7
        a.wait_vm(f"x{c}")
        for tt in range(4):
            if slot < 4: a(f"ds_read_b128 {X(4*c+tt)}, v{2+tt} offset:{slot*SLOT}", tag=f"xr{c}")
            else: a(f"ds_read_b128 {X(4*c+tt)}, v{6+tt} offset:{(slot-4)*SLOT}", tag=f"xr{c}")
        if c < 2:
            a.wait_lg(f"xr{c}"); xdma(7 + c, c)
        if c > 0:
            a.wait_lg(f"xr{c-1}"); stats(c - 1)
    a.wait_lg0()
    stamps.stamp(a, 1)
    a("s_barrier"); nbar = 1
    def emit_group(grp):
        for x in grp:
            if isinstance(x, tuple): a(x[0], tag=x[1])
            elif x == "PRIO2": setprio(2)
            elif x == "PRIO0":
                if not fill: setprio(0)
            else: a(x)
    stats(8)
    a("s_nop 2")
    a(f"v_add_f32 v{st}, v{st}, v{st+1}"); a(f"v_add_f32 v{st+2}, v{st+2}, v{st+3}")
    a(f"v_mov_b32 v{st+1}, v{st}"); a(f"v_mov_b32 v{st+3}, v{st+2}")
    a(f"v_permlane32_swap_b32 v{st}, v{st+1}"); a(f"v_permlane32_swap_b32 v{st+2}, v{st+3}")
    a(f"v_add_f32 v{st}, v{st}, v{st+1}"); a(f"v_add_f32 v{st+2}, v{st+2}, v{st+3}")
    a(f"v_mul_f32 v{st}, {f32(1.0/576):#x}, v{st}"); a(f"v_mul_f32 v{st+2}, {f32(1.0/576):#x}, v{st+2}")
    a(f"v_fma_f32 v{st+2}, -v{st}, v{st}, v{st+2}"); a(f"v_max_f32 v{st+2}, 0, v{st+2}"); a(f"v_add_f32 v{st+2}, {f32(1e-5):#x}, v{st+2}")
    a(f"v_rsq_f32 v{st+2}, v{st+2}")
    a(f"v_mul_f32 v{st+4}, v{st}, v{st+2}"); a(f"v_sub_f32 v{st+4}, 0, v{st+4}")
    a(f"v_mov_b32 v{st+3}, v{st+2}"); a(f"v_mov_b32 v{st+5}, v{st+4}")
    T = ACC + 8
    for r0 in range(0, 144, 4):
        for k in range(4):
            r = XB + r0 + k; t = T + 2*k
            a(f"v_lshlrev_b32 v{t}, 16, v{r}"); a(f"v_and_b32 v{t+1}, s54, v{r}")
        for k in range(4):
            t = T + 2*k
            a(f"v_pk_fma_f32 v[{t}:{t+1}], v[{t}:{t+1}], v[{st+2}:{st+3}], v[{st+4}:{st+5}]")
        for k in range(4):
            r = XB + r0 + k; t = T + 2*k
            a(f"v_cvt_pk_bf16_f32 v{r}, v{t}, v{t+1}")
    w_voffs(a)
    a("s_mov_b32 s60, -1"); a("s_mov_b32 s61, 0")
    a("s_cmp_ge_u32 s38, 2"); a("s_cbranch_scc1 L_g_nokv")
    a("v_lshrrev_b32 v2, 5, v1"); a("v_lshlrev_b32 v2, 3, v2"); a("v_bfe_u32 v3, v1, 2, 2"); a("v_add_u32 v2, v2, v3"); a("v_lshlrev_b32 v2, 6, v2")
    a("v_bfe_u32 v3, v1, 4, 1"); a("v_lshl_add_u32 v2, v3, 5, v2"); a("v_and_b32 v3, 3, v1"); a("v_lshl_add_u32 v2, v3, 3, v2")
    a(f"v_add_u32 v2, {KVIMG}, v2")
    a(f"s_lshl_b32 s43, s36, 11"); a(f"s_add_u32 s43, s43, {KVH}"); a("v_add_u32 v3, s43, v11"); a("v_mov_b32 v5, v3")
    saved_vmq = list(a.vmq)
    def kvpass(isV):
        def rd(t):
            b = FR + 4 * (t % NFR)
            a(f"ds_read_b64_tr_b16 v[{b}:{b+1}], v2 offset:{t*1024}", tag=f"kv{t}")
            a(f"ds_read_b64_tr_b16 v[{b+2}:{b+3}], v2 offset:{t*1024+256}", tag=f"kv{t}")
        for t in range(PF): rd(t)
        for t in range(36):
            b = FR + 4 * (t % NFR)
            a.wait_lg(f"kv{t}")
            cc = "0" if t == 0 else acc(0)
            if isV: a(f"v_mfma_f32_32x32x16_bf16 {acc(0)}, {X(t)}, v[{b}:{b+3}], {cc}")
            else: a(f"v_mfma_f32_32x32x16_bf16 {acc(0)}, v[{b}:{b+3}], {X(t)}, {cc}")
            if t + PF < 36: rd(t + PF)
    a("s_cmp_eq_u32 s38, 1"); a("s_cbranch_scc1 L_g_v")
    kvpass(False)
    B = ACC; T = ACC + 16
    for k in range(5): a(f"v_cvt_pk_bf16_f32 v{T+k}, v{B+2*k}, v{B+2*k+1}")
    a(f"ds_write_b128 v3, v[{T}:{T+3}]")
    a(f"v_mul_f32 v{T+8}, v{B+8}, v{B+8}"); a(f"v_fmac_f32 v{T+8}, v{B+9}, v{B+9}"); a(f"v_cndmask_b32 v{T+8}, 0, v{T+8}, s[60:61]")
    for k in range(8): a(f"v_fmac_f32 v{T+8}, v{B+k}, v{B+k}")
    a(f"v_mov_b32 v{T+9}, v{T+8}"); a(f"v_permlane32_swap_b32 v{T+8}, v{T+9}"); a(f"v_add_f32 v{T+8}, v{T+8}, v{T+9}")
    a(f"v_mov_b32 v{T+5}, v{T+8}")
    a(f"ds_write_b64 v3, v[{T+4}:{T+5}] offset:1024")
    a("s_branch L_g_kvdone")
    a.label("L_g_v")
    a.lgq = []
    kvpass(True)
    for k in range(8): a(f"v_cvt_pk_bf16_f32 v{T+k}, v{B+2*k}, v{B+2*k+1}")
    a("v_and_b32 v3, 31, v1"); a("v_cmp_eq_u32 vcc, 18, v3"); a("v_mov_b32 v4, s53")
    for k in range(8): a(f"v_cndmask_b32 v{T+k}, v{T+k}, v4, vcc")
    a("v_cmp_gt_u32 vcc, 19, v3")
    for k in range(8): a(f"v_cndmask_b32 v{T+k}, 0, v{T+k}, vcc")
    a(f"ds_write_b128 v5, v[{T}:{T+3}]"); a(f"ds_write_b128 v5, v[{T+4}:{T+7}] offset:1024")
    a.label("L_g_kvdone")
    a("s_waitcnt lgkmcnt(0)")
    a("s_mov_b64 exec, 1"); a("ds_add_u32 v0, v0 offset:20"); a("s_mov_b64 exec, -1")
    a.label("L_g_nokv")
    a("s_nop 7"); a("s_nop 7")
    a.vmq = saved_vmq; a.lgq = []
    def tr_addrs(p):
        if p == 0:
            return ["v_lshrrev_b32 v13, 5, v1", "v_lshlrev_b32 v2, 10, v13", "v_bfe_u32 v14, v1, 2, 2", "v_lshl_add_u32 v2, v14, 7, v2",
                    "v_and_b32 v15, 2, v14", "v_bfe_u32 v3, v1, 4, 1", "v_xor_b32 v15, v15, v3", "v_lshl_add_u32 v2, v15, 5, v2",
                    "v_and_b32 v15, 3, v1", "v_lshl_add_u32 v2, v15, 3, v2", f"v_add_u32 v2, {LB}, v2", "v_xor_b32 v3, 64, v2",
                    "v_lshl_add_u32 v4, v13, 3, v14", "v_lshlrev_b32 v4, 6, v4", "v_bfe_u32 v13, v1, 4, 1", "v_mul_u32_u24 v13, 1056, v13",
                    "v_add_u32 v4, v4, v13", f"v_add_u32 v4, {LB}, v4", "v_lshl_add_u32 v4, v15, 3, v4", "v_xor_b32 v5, 32, v4"]
        return ["v_bfe_u32 v13, v1, 4, 1", "v_lshrrev_b32 v14, 5, v1", "v_lshl_add_u32 v14, v13, 1, v14", "v_lshlrev_b32 v2, 10, v14",
                "v_bfe_u32 v14, v1, 2, 2", "v_lshl_add_u32 v2, v14, 7, v2", "v_lshrrev_b32 v14, 1, v14", "v_lshl_add_u32 v14, v13, 1, v14",
                "v_lshl_add_u32 v2, v14, 5, v2", "v_and_b32 v14, 3, v1", "v_lshl_add_u32 v2, v14, 3, v2", f"v_add_u32 v2, {LB}, v2",
                "v_xor_b32 v3, 32, v2", "v_xor_b32 v4, 64, v2", "v_xor_b32 v5, 96, v2"]
    for x in tr_addrs(0): a(x)
    chk_issue(a, 8); chk(a, "l0", 8, 1, sleep=1)

    order = [(s, t) for t in range(4) for s in range(4)]
    fa = []
    for hc in range(18):
        for t in range(2):
            for s_ in range(4): fa.append(("a", hc // 2, (hc % 9, s_, (hc % 2) * 2048), t + (2 if hc >= 9 else 0)))
    for g in range(9, NCH):
        for (s_, t) in order: fa.append(("a", g, (g % 9, s_, 0), t))
    fb = [("b", pos, f, 0) for pos in range(41) for f in range(10 if pos < 40 else 5)]
    frs = fa + fb
    N1 = NCH * 16
    state = {"slot": 0, "pass": 0}
    fill = []
    def setprio(v):
        if state.get("prio", 0) != v: a(f"s_setprio {v}"); state["prio"] = v
    def rd(n):
        kind, g, s, t = frs[n]
        b = FR + 4 * (n % NFR)
        if kind == "b":
            if g == 0 and s == 0:
                for grp in raddr2(): emit_group(grp)
            sl = (g // 2 + 3) % NRING2; hi = 1 if sl >= 3 else 0
            o = (sl - 3 * hi) * GRP2 + (g % 2) * STEP2 + (s // 5) * 16 * PITCH2 + (s % 5) * 64
            v = RA + hi
            a(f"ds_read_b64_tr_b16 v[{b}:{b+1}], v{v} offset:{o}", tag=f"f{n}")
            a(f"ds_read_b64_tr_b16 v[{b+2}:{b+3}], v{v} offset:{o + 8*PITCH2}", tag=f"f{n}")
            return
        p = g // 9; slot = g % R
        if p == 1 and state["pass"] == 0:
            for x in tr_addrs(1): a(x)
            state["slot"] = 0
        state["pass"] = p
        hi = 4 if slot >= 4 else 0
        if hi != state["slot"]:
            if g >= APRIO: setprio(2)
            for k in range(4):
                if hi: a(f"v_add_u32 v{2+k}, {4*SLOT}, v{2+k}")
                else: a(f"v_subrev_u32 v{2+k}, {4*SLOT}, v{2+k}")
            state["slot"] = hi
            if not fill: setprio(0)
        jj = 256 if (p == 0 and t >= 2) else 512
        o = (slot - hi) * SLOT + s[1] * 4096 + s[2]
        if 'x4' in EXP and 12 <= g < 36: return
        a(f"ds_read_b64_tr_b16 v[{b}:{b+1}], v{2+t} offset:{o}", tag=f"f{n}")
        a(f"ds_read_b64_tr_b16 v[{b+2}:{b+3}], v{2+t} offset:{o+jj}", tag=f"f{n}")
    def gu_epi(t, pi, p):
        B = ACC + 16*t
        L = []
        for i in range(8): L.append(f"v_max_f32 v{B+i}, 0, v{B+i}")
        for i in range(8): L.append(f"v_mul_f32 v{B+i}, v{B+i}, v{B+8+i}")
        for k in range(4): L.append(f"v_cvt_pk_bf16_f32 v{B+8+k}, v{B+2*k}, v{B+2*k+1}")
        L.append(f"s_add_u32 s52, s50, {pi*1024}")
        L.append((f"buffer_store_dwordx4 v[{B+8}:{B+11}], v11, s[24:27], s52 offen{CFG.SS}", f"hst{p}"))
        return L
    def q_epi(t):
        B = ACC + 16*t
        L = []
        for i in range(10): L.append(f"v_mul_f32 v{B+i}, {f32(QSCALE):#x}, v{B+i}")
        n = B + 10
        L += [f"v_mul_f32 v{n}, v{B+8}, v{B+8}", f"v_fmac_f32 v{n}, v{B+9}, v{B+9}", f"v_cndmask_b32 v{n}, 0, v{n}, s[60:61]"]
        for k in range(8): L.append(f"v_fmac_f32 v{n}, v{B+k}, v{B+k}")
        L += [f"v_mov_b32 v{n+1}, v{n}", f"v_permlane32_swap_b32 v{n}, v{n+1}", f"v_add_f32 v{n}, v{n}, v{n+1}",
              f"v_sqrt_f32 v{n}, v{n}", f"v_mul_f32 v{n}, {f32(-(1+1/64.)):#x}, v{n}",
              f"v_cndmask_b32 v{n}, 0, v{n}, s[60:61]", f"v_cndmask_b32 v{B+8}, 0, v{B+8}, s[60:61]", f"v_cndmask_b32 v{B+9}, 0, v{B+9}, s[60:61]", f"v_mov_b32 v{n+1}, 0"]
        for k in range(4): L.append(f"v_cvt_pk_bf16_f32 v{B+12+k}, v{B+2*k}, v{B+2*k+1}")
        L += [f"v_cvt_pk_bf16_f32 v{B}, v{B+8}, v{B+9}", f"v_cvt_pk_bf16_f32 v{B+1}, v{n}, v{n+1}"]
        L += [f"s_mul_i32 s52, s36, 3072", f"s_add_u32 s52, s52, {QH + t*1536}", f"v_add_u32 v{B+2}, s52, v11", f"v_lshl_add_u32 v{B+3}, v1, 3, s52",
              (f"ds_write_b128 v{B+2}, v[{B+12}:{B+15}]", "qst"), (f"ds_write_b64 v{B+3}, v[{B}:{B+1}] offset:1024", "qst")]
        return L
    def emit_fill(nmax, upto_tile=None):
        k = 0
        while fill and (k < nmax or (upto_tile is not None and any(f[0] == upto_tile for f in fill))):
            L = fill[0][2]
            x = L.pop(0)
            if isinstance(x, tuple): a(x[0], tag=x[1])
            else: a(x)
            if not L: fill.pop(0)
            k += 1
    def grouped(L, n=4):
        groups = []; cur = []
        for x in L:
            if len(cur) >= n and not x.startswith(("s_addc", "s_cselect", "v_cndmask")): groups.append(cur); cur = []
            cur.append(x)
        return groups + [cur]
    def hp(groups):
        return [["PRIO2"] + g_ + ["PRIO0"] for g_ in groups]
    def g2_setup():
        L = []
        A = L.append
        A("s_lshr_b32 s73, s38, 2"); A("s_and_b32 s74, s38, 3")
        A(f"s_add_u32 s28, s86, {PART_OFF}"); A("s_addc_u32 s29, s87, 0"); A(f"s_mov_b32 s30, {PART_BYTES}"); A("s_mov_b32 s31, 0x20000")
        A(f"s_mul_i32 s63, s36, {GRP2 // 4}"); A(f"s_add_u32 s63, s63, {LB}")
        A(f"s_mul_i32 s75, s73, {144*1152}"); A("s_mul_i32 s40, s74, 288"); A("s_add_u32 s75, s75, s40")
        for k in range(4):
            A(f"s_add_u32 s40, s74, {k}"); A("s_and_b32 s40, s40, 3"); A("s_lshl_b32 s41, s73, 2"); A("s_add_u32 s40, s40, s41")
            A(f"s_mul_i32 s40, s40, {18*1024}"); A(f"s_add_u32 s{76+k}, s40, s51")
        A("s_lshl_b32 s40, s73, 13"); A("s_add_u32 s40, s40, s51"); A(f"s_add_u32 s48, s40, {288*1024}")
        A("s_lshl_b32 s40, s73, 10"); A("s_add_u32 s40, s40, s51"); A(f"s_add_u32 s49, s40, {320*1024}")
        A("s_lshl_b32 s40, s37, 4"); A("s_add_u32 s41, s40, s38"); A("s_lshl_b32 s41, s41, 7"); A(f"s_add_u32 s44, s41, {FL_REL}")
        A("s_and_b32 s41, s38, 12"); A("s_add_u32 s41, s41, s40"); A("s_lshl_b32 s41, s41, 7"); A("s_lshl_b32 s46, s74, 2")
        A("s_add_u32 s41, s41, s46"); A(f"s_add_u32 s46, s41, {FL_REL}")
        A("s_add_u32 s41, s40, s74"); A("s_lshl_b32 s41, s41, 7"); A("s_lshl_b32 s62, s73, 2")
        A("s_add_u32 s41, s41, s62"); A(f"s_add_u32 s62, s41, {FL_REL + 96}")
        A("s_lshl_b32 s40, s37, 2"); A("s_add_u32 s40, s40, s74"); A("s_lshl_b32 s40, s40, 2"); A("s_add_u32 s40, s40, s36")
        A("s_lshl_b32 s40, s40, 2"); A("s_add_u32 s40, s40, s73"); A("s_mul_i32 s57, s40, 9216")
        return grouped(L)
    def touch():
        L = [["PRIO2", "v_min_u32 v13, 35, v1", "v_mul_u32_u24 v13, 1152, v13", "PRIO0",
              "s_and_b32 s40, s37, 7", "s_lshl_b32 s40, s40, 2", "s_add_u32 s40, s40, s36", f"s_mul_i32 s40, s40, {36*1152}",
              f"s_mul_i32 s41, s73, {1152*1152}", "s_add_u32 s40, s40, s41", "s_mul_i32 s41, s74, 288", "s_add_u32 s40, s40, s41", f"s_add_u32 s56, s40, {BIAS}"]]
        for l in range(3): L.append([(f"buffer_load_dword v14, v13, s[8:11], s56 offen offset:{128*l}", "touch")])
        L.append(["PRIO2", "v_min_u32 v13, 17, v1", "v_mul_u32_u24 v13, 1152, v13", "PRIO0",
                  "s_and_b32 s40, s37, 7", f"s_mul_i32 s40, s40, {18*1152}", "s_add_u32 s40, s40, s75", "s_min_u32 s41, s36, 2", "s_lshl_b32 s41, s41, 7",
                  "s_add_u32 s40, s40, s41", f"s_add_u32 s56, s40, {BIAS}", (f"buffer_load_dword v14, v13, s[20:23], s56 offen", "touch")])
        return L
    def voff2(mode):
        L = []
        for k in range(5):
            d = 6 + k
            G_ = [f"v_add_u32 v13, {k*1024}, v11", "v_mul_hi_u32 v14, v13, s41"]
            if mode == 0:
                G_ += [f"v_mul_u32_u24 v{d}, {PITCH2}, v14", f"v_sub_u32 v13, v13, v{d}", f"v_add_u32 v{d}, 224, v13", f"v_lshrrev_b32 v{d}, 9, v{d}", f"v_lshl_add_u32 v13, v{d}, 30, v13",
                       "v_mul_u32_u24 v14, 1152, v14", f"v_add3_u32 v{d}, v14, v13, s56"]
            else:
                G_ += ["v_lshrrev_b32 v14, 1, v14", f"v_mul_u32_u24 v14, {16*1152}, v14", f"v_add_u32 v{d}, v{d}, v14"]
            L.append([f"s_mov_b32 s56, {BIAS - (k % 4) * 1024}", f"s_mov_b32 s41, {(1 << 32) // PITCH2 + 1}", "PRIO2"] + G_ + ["PRIO0"])
        return L
    def rows2():
        L = []
        pre = ["s_and_b32 s40, s36, 1", f"s_mul_i32 s45, s40, {16*1152}", "s_mul_i32 s42, s74, 288", "s_add_u32 s45, s45, s42",
               f"s_mul_i32 s40, s40, {18*1152}", f"s_add_u32 s72, s75, {16*1152}", "s_add_u32 s75, s75, s40"]
        for k in range(4):
            L += [f"s_add_u32 s40, s74, {k}", "s_and_b32 s40, s40, 3", "s_lshl_b32 s41, s73, 2", "s_add_u32 s41, s41, s40", f"s_mul_i32 s41, s41, {288*1152}",
                  "s_add_u32 s41, s41, s45", "s_nop 0", "s_bitcmp1_b32 s40, 0", f"s_cselect_b32 s40, 0, {32*1152}", f"s_cselect_b32 s42, 0, {256*1152}",
                  f"s_sub_u32 s{64+k}, s41, s40", f"s_add_u32 s{68+k}, s41, s42"]
        L += ["s_mov_b32 s12, s82", "s_mov_b32 s13, s83", f"s_mov_b32 s14, {S*D*2}", "s_mov_b32 s15, 0x20000"]
        return [pre] + [L[12*k:12*k+12] for k in range(4)] + [L[48:]]
    def raddr2():
        return hp([["v_lshrrev_b32 v4, 5, v1", "v_bfe_u32 v5, v1, 2, 2", "v_lshl_add_u32 v4, v4, 2, v5", f"v_mul_u32_u24 v4, {PITCH2}, v4",
                    "v_and_b32 v5, 3, v1", "v_lshl_add_u32 v4, v5, 3, v4", "v_bfe_u32 v5, v1, 4, 1", "v_lshl_add_u32 v4, v5, 5, v4",
                    f"v_add_u32 v{RA}, {LB}, v4", f"v_add_u32 v{RA+1}, {LB + 3*GRP2}, v4"]])
    def step_soff(dst, pos):
        if pos < 36:
            k, tau = (pos // 7, pos % 7) if pos < 28 else ((pos - 28) // 2, 7 + (pos - 28) % 2)
            return f"s_mov_b32 s{dst}, s{68+k}" if tau == 0 else f"s_add_u32 s{dst}, s{64+k}, {32*1152*tau}"
        return f"s_add_u32 s{dst}, s75, {36*1152*(pos-36)}" if pos < 40 else f"s_mov_b32 s{dst}, s72"
    def quad(j):
        vb, srd_ = 6, (8 if j < 18 else 20)
        sl = (j + 3) % NRING2
        g0 = [step_soff(42, 2*j), step_soff(43, 2*j+1), "s_cmp_lt_u32 s36, 2", "s_cselect_b32 s43, s42, s43", f"s_add_u32 m0, s63, {sl*GRP2}"]
        ld = lambda k: (f"buffer_load_dwordx4 v{vb+k}, s[{srd_}:{srd_+3}], s43 offen offset:{(k%4)*1024} lds", f"q{j}")
        return [g0 + [ld(0), ld(1)], [ld(2), ld(3), f"s_add_u32 m0, s63, {sl*GRP2 + 4096}", ld(4)]]
    def bload(pos):
        if pos < 28: pre = f"s_add_u32 s42, s{76 + pos//7}, {(pos%7)*2048}"
        elif pos < 36: pre = f"s_add_u32 s42, s{76 + (pos-28)//2}, {(7 + (pos-28)%2)*2048}"
        elif pos < 40: pre = f"s_add_u32 s42, s48, {(pos-36)*2048}"
        else: pre = "s_mov_b32 s42, s49"
        b = BR + 8 * (pos % 8)
        L = [pre, (f"buffer_load_dwordx4 v[{b}:{b+3}], v11, s[24:27], s42 offen{CFG.SL}", f"b{pos}")]
        if pos == 40: return L
        return L + [(f"buffer_load_dwordx4 v[{b+4}:{b+7}], v11, s[24:27], s42 offen offset:1024{CFG.SL}", f"b{pos}")]
    side = []
    st2 = {"q": 0, "b": 0, "landed": -1}
    def push_quads(upto):
        while st2["q"] <= min(upto, NG2 - 1):
            if 'x6' not in EXP: side.extend(quad(st2["q"]))
            st2["q"] += 1
    def push_b(upto):
        while st2["b"] <= min(upto, 40): side.append(bload(st2["b"])); st2["b"] += 1
    def flush_side():
        while side: emit_group(side.pop(0))
    nissued = 0
    lim = {"a": 1}
    def issue_reads(upto):
        nonlocal nissued
        while nissued < min(upto, len(frs)):
            kind, g, s, t = frs[nissued]
            if kind == "b" and g > st2["landed"]: break
            if kind == "a" and g > lim["a"]: break
            rd(nissued); nissued += 1
    def wait_frag(n):
        if f"f{n}" in a.lgq: a.wait_lg([f"f{n}", f"f{n+1}"])
    def do_arrive(I):
        flush_side()
        if I + 2 < NCH: a.wait_vm(f"w{I+2}")
        if I == QI: assert not any(f[0] < 2 for f in fill); a.wait_lg("qst")
        if I == 38: a.wait_vm("hst3")
        if I == 48: assert not fill; a.wait_vm("hst4")
        if I >= 43:
            assert I - 43 < st2["q"], (I, st2)
            if 'x5' not in EXP: a.wait_vm(f"q{I-43}")
            st2["pend"][I] = min(2 * (I - 43) + 1, 40)
        if I == 57: a.wait_vm("clr")
        if I == 63: setprio(2); flag_check(a, "c", "cp", 28, 44, 96)
        if I == 45: setprio(2); flag_check(a, "h", "hp", 28, 44, 0)
        if I == HL - 1: setprio(2); flag_check(a, "hl", "hl", 28, 44, 32)
        if I == OL - 1: setprio(2); flag_check(a, "o", "op", 28, 44, 64)
        arrive(a, 0)
    st2["pend"] = {}
    def do_check(I):
        if I >= APRIO: setprio(2)
        chk(a, f"g{I}", 0, I - LAG)
        if not fill: setprio(0)
        if I == 1: chk_issue(a, 12); chk(a, "l1", 12, 1)
        if I == 3: chk_issue(a, 16); chk(a, "l2", 16, 1)
        lim["a"] = max(3 if I < 3 else 6, I + 1)
        if I - 1 in st2["pend"]: st2["landed"] = st2["pend"][I - 1]
        if I - 1 + R < NCH and not ('x1' in EXP and 12 <= I < 36): side.extend(wdma(I - 1 + R))
        if I == 20: side.extend(g2_setup())
        if I == 21: chk_issue(a, 4); setprio(2); chk(a, "tg", 4, 1, sleep=2)
        if I == 22: side.append([("ds_read_b32 v13, v0 offset:28", "tg"), ("ds_read_b32 v14, v0 offset:32", "tg")])
        if I == 23:
            a.wait_lg("tg"); setprio(2); a(f"v_readfirstlane_b32 s{TAG}, v13"); a(f"v_readfirstlane_b32 s{TAG+1}, v14")
            if not fill: setprio(0)
        if I == 39: side.extend(rows2() + voff2(0))
        if I == 40: push_quads(0); push_b(2)
        if I == 41: push_b(4)
        if I == 42: push_quads(1); push_b(6)
        if I == 44: push_quads(2)
        if I == 45: push_quads(4)
        if I == 60: side.extend(["DUMMY"] and voff2(2) if False else [])
        if I == 61: side.extend(voff2(2))
        if I >= 46: push_quads(I - 41)
        if I in (39, 49):
            setprio(2)
            a("s_cmp_lg_u32 s36, 0"); a(f"s_cbranch_scc1 L_g_nohp{I}")
            if I == 49: a("s_add_u32 s46, s46, 32")
            flag_send(a, 28, 46, 128); a.label(f"L_g_nohp{I}")
        if I == 44: side.append(flag_issue(28, 44, 0, "hp"))
        if I == 46: st2["bcap"] = 27; push_b(10)
        if I == 46: side.append([f"v_mov_b32 v{48+k}, -1" for k in range(4)])
        if 46 <= I <= 54: side.append([(f"buffer_store_dwordx4 v[48:51], v11, s[28:31], s57 offen{CFG.SS}", "clr"), "s_add_u32 s57, s57, 1024"])
        if I == 58:
            setprio(2)
            a("s_cmp_lg_u32 s36, 0"); a("s_cbranch_scc1 L_g_nocl"); flag_send(a, 28, 62, 512); a.label("L_g_nocl")
            side.extend(xres_groups())
        if I == 62: side.append(flag_issue(28, 44, 96, "cp"))
        if I == HL - 2: side.append(flag_issue(28, 44, 32, "hl"))
        if I == HL: st2["bcap"] = 35
        if I == OL - 2: side.append(flag_issue(28, 44, 64, "op"))
        if I == OL: st2["bcap"] = 40
    st2["bcap"] = 6
    issue_reads(PF)
    for n, (kind, g, s, t) in enumerate(frs):
        b = FR + 4 * (n % NFR)
        if kind == "a":
            p = g // 9; c, s, _ = s
            first = (c == 0 and s == 0)
            if first: emit_fill(0, upto_tile=t)
            wait_frag(n)
            setprio(2 if (g >= APRIO and (fill or (PH and n % PH == 0))) else 0)
            a(f"v_mfma_f32_32x32x16_bf16 {acc(t)}, v[{b}:{b+3}], {X(4*c+s)}, {'0' if first else acc(t)}")
            if not fill: setprio(0)
            if n % 16 == 6 and g > 0 and not ('x2' in EXP and 12 <= g < 36): chk_issue(a, 0)
            if n % 16 == 9 and g > 0: do_check(g)
            issue_reads(n + 1 + PF)
            if side: emit_group(side.pop(0))
            for f in fill: f[1] -= 1
            if fill and fill[0][1] <= 0: emit_fill(FILLN if p else 5)
            if c == 8 and s == 3:
                L = q_epi(t) if (p == 0 and t < 2) else gu_epi(t, (t - 2) if p == 0 else 2 + 4*(p-1) + t, p)
                fill.append([t, 1, L])
            if n % 16 == 15:
                do_arrive(g)
        else:
            pos, f = g, s
            I = NCH + pos // 2; m = (pos % 2) * 10 + f
            bb = BR + 8 * (pos % 8)
            if f == 0:
                if pos == 0: stamps.stamp(a, 3)
                if pos == 34: stamps.stamp(a, 2)
                assert st2["b"] > pos, pos
                if any(isinstance(x[-1], tuple) and x[-1][1] == f"b{pos}" for x in side): flush_side()
                a.wait_vm(f"b{pos}")
            assert nissued > n, (pos, f, st2)
            wait_frag(n)
            setprio(2 if (fill or (PH and n % PH == 0)) else 0)
            t_ = f % 5; p_ = f // 5
            a(f"v_mfma_f32_32x32x16_bf16 {acc32(t_)}, v[{b}:{b+3}], v[{bb+4*p_}:{bb+4*p_+3}], {'0' if (pos == 0 and p_ == 0) else acc32(t_)}")
            if not fill: setprio(0)
            if m == 10: chk_issue(a, 0)
            if m == 13: do_check(I)
            issue_reads(n + 1 + PF)
            if fill: emit_fill(3)
            elif side: emit_group(side.pop(0))
            if f == 9:
                if pos % 2 == 1 and pos < 39: do_arrive(I)
                push_b(min(pos + 8, st2["bcap"]))
    flush_side()
    finish(a)
    return nbar

OWN = LB + 0
def finish(a):
    stamps.stamp(a, 4)
    a("s_lshl_b32 s40, s37, 2"); a("s_add_u32 s40, s40, s74"); a(f"s_mul_i32 s70, s40, {16*9216}")
    a("s_cmp_eq_u32 s36, s73"); a("s_cbranch_scc1 L_g_own")
    a(f"s_lshl_b32 s41, s73, 2"); a("s_add_u32 s41, s41, s36"); a("s_mul_i32 s41, s41, 9216"); a("s_add_u32 s41, s41, s70")
    for r in range(9):
        T = 48 + 4 * (r % 4)
        for k in range(4): a(f"v_cvt_pk_bf16_f32 v{T+k}, v{ACC2+8*r+2*k}, v{ACC2+8*r+2*k+1}")
        if r % 4 == 0 and r: a(f"s_add_u32 s41, s41, 4096")
        a(f"buffer_store_dwordx4 v[{T}:{T+3}], v11, s[28:31], s41 offen offset:{(r%4)*1024}{CFG.SS}")
    a("s_branch L_g_st")
    a.label("L_g_own")
    a("s_nop 11")
    for u in range(18): a(f"ds_write_b128 v11, {acc2(u)} offset:{OWN + u*1024}")
    a.label("L_g_st")
    a.vmq = []; a.lgq = []
    XR = XRES; OW = 76; G = 100
    a("s_mul_i32 s41, s73, 9216"); a("s_add_u32 s41, s41, s70"); a("s_lshl_b32 s42, s36, 10"); a("s_add_u32 s41, s41, s42")
    sj = [71, 69, 43]
    for j in range(3):
        a(f"s_add_u32 s40, s73, {j+1}"); a("s_and_b32 s40, s40, 3"); a(f"s_mul_i32 s40, s40, {4*9216}"); a(f"s_add_u32 s{sj[j]}, s40, s41")
    a("s_movk_i32 s62, 0x1000"); a("s_cmp_eq_u32 s36, 0"); a("s_cselect_b32 s62, 8192, s62"); a("v_add_u32 v7, 4096, v11"); a("v_add_u32 v8, s62, v11")
    vk = [11, 7, 8]
    def loads():
        for k in range(3):
            for j in range(3):
                r = G + 12*k + 4*j
                a(f"buffer_load_dwordx4 v[{r}:{r+3}], v{vk[k]}, s[28:31], s{sj[j]} offen{CFG.SL}")
    loads()
    a("s_waitcnt lgkmcnt(0)")
    a("s_barrier")
    a("s_lshl_b32 s40, s36, 11"); a("v_add_u32 v6, s40, v11")
    for k in range(3):
        for e in range(2): a(f"ds_read_b128 v[{OW+8*k+4*e}:{OW+8*k+4*e+3}], v6 offset:{OWN + k*8192+e*1024}")
    a.label("L_g_gchk")
    a("s_waitcnt vmcnt(0)")
    a(f"v_max3_u32 v2, v{G}, v{G+1}, v{G+2}")
    for q in range(3, 35, 2): a(f"v_max3_u32 v2, v2, v{G+q}, v{G+q+1}")
    a(f"v_max_u32 v2, v2, v{G+35}")
    a("v_cmp_eq_u32 vcc, -1, v2")
    a("s_cbranch_vccz L_g_gok")
    a("s_add_u32 s3, s3, 64"); a("s_cmp_ge_u32 s3, 0x400000"); a("s_cbranch_scc1 L_g_gok")
    loads()
    a("s_branch L_g_gchk")
    a.label("L_g_gok")
    stamps.stamp(a, 5)
    a("s_waitcnt lgkmcnt(0)")
    def fin(k):
        o = OW + 8*k; T = 140
        srcs = [G + 12*k + 4*j for j in range(3)] + [XR + 4*k]
        for r in srcs:
            for q in range(4):
                a(f"v_lshlrev_b32 v{T+2*q}, 16, v{r+q}"); a(f"v_and_b32 v{T+2*q+1}, s54, v{r+q}")
            for q in range(4): a(f"v_pk_add_f32 v[{o+2*q}:{o+2*q+1}], v[{o+2*q}:{o+2*q+1}], v[{T+2*q}:{T+2*q+1}]")
        for q in range(4): a(f"v_cvt_pk_bf16_f32 v{T+8+4*k+q}, v{o+2*q}, v{o+2*q+1}")
        for e in range(2): a(f"buffer_store_dwordx2 v[{T+8+4*k+2*e}:{T+9+4*k+2*e}], v5, s[12:15], s{XS[k]} offen offset:{16*e}{CFG.SO}")
    fin(0); fin(1)
    a("s_cmp_lg_u32 s36, 0"); a("s_cbranch_scc1 L_g_no3")
    fin(2)
    a.label("L_g_no3")
    stamps.flush(a, 0, 55); stamps.tb_flush(a, 12, 55)
    a("s_endpgm")

XS = [16, 17, 18]
def xres_groups():
    L = [["s_lshl_b32 s40, s37, 2", "s_add_u32 s40, s40, s73", f"s_mul_i32 s47, s40, {32*1152}", "s_mul_i32 s41, s74, 288", "s_add_u32 s47, s47, s41",
          "s_lshl_b32 s40, s36, 5", "s_add_u32 s16, s47, s40", "s_add_u32 s17, s16, 128", "s_add_u32 s18, s47, 256", f"s_add_u32 s19, s18, {16*1152}"],
         ["PRIO2", "v_and_b32 v4, 31, v1", "v_mul_u32_u24 v4, 1152, v4", "v_lshrrev_b32 v5, 5, v1", "v_lshl_add_u32 v5, v5, 3, v4", "PRIO0"]]
    for k in range(3):
        for e in range(2): L.append([(f"buffer_load_dwordx2 v[{XRES+4*k+2*e}:{XRES+4*k+2*e+1}], v5, s[4:7], s{XS[k]} offen offset:{16*e}", "xres")])
    return L
XRES = 64
```

```python
from dsl import *
from layout import *
import mk, at2, stamps, sys
NAME = "parallel_sum__grouped_kv_mqa__glu_gated_reglu__prompt_kernel"
def build(ts=False, exp=()):
    stamps.ENABLE = ts
    mk.EXP = set(exp)
    a = Asm()
    for l in kernel_header(NAME): a.raw(l)
    a.label('KSTART')
    mk.common(a)
    mk.gen_g(a)
    at2.gen_at(a)
    a.label("L_end"); a("s_endpgm")
    hdr = open("parallel_sum__grouped_kv_mqa__glu_gated_reglu__prompt.s.ref").read().split("; Override launch")[0]
    return (hdr + "; @launch grid=(256,1,1) block=(512,1,1) lds=163840\n" + '.amdgcn_target "amdgcn-amd-amdhsa--gfx950"\n' + a.text() + kernel_desc(NAME, 256)), None
import cfg
if __name__ == "__main__":
    D = "dev/"
    t, info = build(ts=True); open(D + "mk_ts.s", "w").write(t)
    t, info = build(); open(D + "mk.s", "w").write(t)
    stamps.TB = True
    t, info = build(); open(D + "mk_tb.s", "w").write(t)
    stamps.TBC = "s_memtime"
    t, info = build(); open(D + "mk_tc.s", "w").write(t)
    stamps.TB = False
    at2.PACE = 0
    t, info = build(); open(D + f"mk_np.s", "w").write(t)
    mk.PH = 0
    t, info = build(); open(D + f"mk_np_ph0.s", "w").write(t)
    mk.PH = 2
    t, info = build(); open(D + f"mk_np_ph2.s", "w").write(t)
    mk.PH = 5
    t, info = build(); open(D + f"mk_np_ph5.s", "w").write(t)
```

```python
from dsl import *
from layout import *
import stamps, struct
def f32(x): return struct.unpack("<I", struct.pack("<f", x))[0]

import mk
ATB = mk.KVIMG
GRP = 4 * KV_PITCH
Q1 = [16, 24]; Q2 = [20, 28]
S_ = [32, 48]; P_ = [64, 72]; O_ = [80, 96]
K1 = [112, 120]; K2 = [116, 124]
VA = [128, 136]; VB = [132, 140]
aK1, aK2, aV = 2, 3, 4
LTHR = f32(2.0 ** -60)


import cfg as CFG
def srd(a, d, p, nbytes, off=0):
    if off: a(f"s_add_u32 s{d}, s{p}, {off}"); a(f"s_addc_u32 s{d+1}, s{p+1}, 0")
    else: a(f"s_mov_b32 s{d}, s{p}"); a(f"s_mov_b32 s{d+1}, s{p+1}")
    a(f"s_mov_b32 s{d+2}, {nbytes}"); a(f"s_mov_b32 s{d+3}, 0x20000")

PSLEEP = 32; ORD = 0; ALIGN = 0; NPEEL = 1; APRE = 5; TOUCH0 = False
PACE0 = 6; PACE = 3
def gen_at(a):
    a.label("L_at")
    a.vmq = []; a.lgq = []
    mk.ws_srds(a)
    a("v_mov_b32 v2, 0"); a("v_mov_b32 v3, 0"); a("ds_write_b64 v2, v[2:3]"); a("ds_write_b64 v2, v[2:3] offset:8"); a("ds_write_b64 v2, v[2:3] offset:16"); a("ds_write_b64 v2, v[2:3] offset:24")
    a("v_mov_b32 v28, 136"); a("v_mov_b32 v26, 0"); a("v_mov_b32 v27, 0")
    a("s_or_b32 s40, s2, s36"); a("s_cmp_lg_u32 s40, 0"); a("s_cbranch_scc1 L_at_notag")
    a("s_memrealtime s[60:61]"); a("s_waitcnt lgkmcnt(0)")
    a("s_or_b32 s60, s60, 1"); a("s_or_b32 s61, s61, 0x80000000"); a("v_mov_b32 v24, s60"); a("v_mov_b32 v25, s61")
    a("s_mov_b64 exec, 1"); a(f"buffer_store_dwordx2 v[24:25], v28, s[32:35], 0 offen{CFG.SS}"); a("s_mov_b64 exec, -1")
    a.label("L_at_notag")
    a.vmq = []
    if "nocp" not in mk.EXP:
        a("s_getpc_b64 s[4:5]")
        a.label("L_pc")
        a("s_sub_u32 s4, s4, L_pc-KSTART"); a("s_subb_u32 s5, s5, 0"); a("s_mov_b32 s6, L_end-KSTART"); a("s_mov_b32 s7, 0x20000")
        a("s_lshr_b32 s40, s2, 3"); a("s_lshl_b32 s40, s40, 2"); a("s_add_u32 s40, s40, s36")
        a("s_mul_hi_u32 s41, s40, 0x1c71c71d"); a("s_mul_i32 s41, s41, 9"); a("s_sub_u32 s40, s40, s41"); a("s_lshl_b32 s40, s40, 13")
        a("v_lshlrev_b32 v2, 7, v1")
        a("buffer_load_dword v20, v2, s[4:7], s40 offen")
    mk.w_setup(a, True)
    a("s_cmp_ge_u32 s38, 2"); a("s_cbranch_scc1 L_at_nokvdma")
    a("s_bitcmp1_b32 s38, 0"); a("s_cselect_b32 s20, s70, s68"); a("s_cselect_b32 s21, s71, s69")
    a(f"s_mov_b32 s22, {D*DH*2}"); a("s_mov_b32 s23, 0x20000")
    a("v_lshrrev_b32 v3, 2, v1"); a("v_mul_u32_u24 v3, 36, v3"); a("v_and_b32 v4, 3, v1"); a("v_lshl_add_u32 v14, v4, 4, v3")
    a("v_add_u32 v4, 1, v4"); a("v_lshrrev_b32 v4, 2, v4"); a("v_lshl_add_u32 v14, v4, 30, v14")
    a(f"s_mul_i32 s40, s36, {9*1024}"); a(f"s_add_u32 s40, s40, {mk.KVIMG}")
    a("s_mul_i32 s41, s36, 9"); a("s_lshl_b32 s42, s62, 2"); a("s_add_u32 s41, s41, s42")
    for t in range(9):
        a(f"s_add_u32 s42, s41, {t}"); a("s_cmp_ge_u32 s42, 36"); a("s_cselect_b32 s43, 36, 0"); a("s_sub_u32 s42, s42, s43"); a("s_mul_i32 s42, s42, 576")
        a(f"s_add_u32 m0, s40, {t*1024}")
        a("buffer_load_dwordx4 v14, s[20:23], s42 offen lds")
    a.label("L_at_nokvdma")
    a("s_waitcnt vmcnt(0)")
    a.vmq = []
    a("s_mov_b32 s74, s72"); a("s_mov_b32 s75, s73")
    mk.w_table(a); mk.w_scalars(a); mk.w_voffs(a)
    a("s_waitcnt lgkmcnt(0)")
    a("s_barrier")
    def sig(tags, off):
        a.wait_vm(tags)
        a("s_mov_b64 exec, 1"); a(f"ds_add_u32 v0, v0 offset:{off}"); a("s_mov_b64 exec, -1")
    for g in range(mk.R):
        for grp in mk.wdma(g): mk.emit_group_to(a, grp)
        if g == 3: sig(["w0", "w1"], 8)
        if g == 5: sig(["w2", "w3"], 12)
    a(f"buffer_load_dwordx2 v[24:25], v28, s[32:35], 0 offen{CFG.SP}", tag="tag")
    srd(a, 12, 86, PART_BYTES, PART_OFF)
    sig(["w4", "w5", "w6"], 16)
    a.wait_vm("tag")
    a.label("L_at_tagchk")
    a("v_readfirstlane_b32 s60, v24"); a("v_readfirstlane_b32 s61, v25")
    a("s_min_u32 s40, s60, s61"); a("s_cmp_lg_u32 s40, 0"); a("s_cbranch_scc1 L_at_tagok")
    a("s_add_u32 s3, s3, 16"); a("s_cmp_ge_u32 s3, 0x400000"); a("s_cbranch_scc1 L_at_tagok")
    a("s_sleep 8")
    a(f"buffer_load_dwordx2 v[24:25], v28, s[32:35], 0 offen{CFG.SP}"); a("s_waitcnt vmcnt(0)")
    a("s_branch L_at_tagchk")
    a.label("L_at_tagok")
    a("ds_write_b32 v0, v24 offset:28"); a("ds_write_b32 v0, v25 offset:32")
    a.vmq = []
    a("s_cmp_ge_u32 s38, 2"); a("s_cbranch_scc1 L_at_nopubkv")
    a(f"s_lshl_b32 s43, s36, 11"); a(f"s_add_u32 s43, s43, {mk.KVH}"); a("v_add_u32 v3, s43, v11")
    a(f"s_mul_i32 s43, s39, {KV_PITCH}"); a(f"s_add_u32 s43, s43, {KV_OFF}")
    a("v_and_b32 v6, 31, v1"); a("v_lshrrev_b32 v4, 5, v1"); a("v_mul_u32_u24 v4, 320, v4"); a("v_lshl_add_u32 v4, v6, 4, v4"); a("v_lshlrev_b32 v7, 2, v1")
    mk.chk_issue(a, 20); mk.chk(a, "kvh", 20, 1, sleep=1)
    if "kvt" in mk.EXP: stamps.stamp(a, 4)
    a("ds_read_b128 v[16:19], v3"); a("ds_read_b128 v[20:23], v3 offset:1024"); a("s_waitcnt lgkmcnt(0)")
    a("s_cmp_eq_u32 s38, 1"); a("s_cbranch_scc1 L_at_pubv")
    a(f"buffer_store_dwordx4 v[16:19], v11, s[28:31], s43 offen{CFG.SS}")
    a(f"buffer_store_dword v20, v7, s[28:31], s43 offen offset:1024{CFG.SS}")
    for off in (0x041F, 0x081F, 0x101F, 0x201F, 0x401F):
        a(f"ds_swizzle_b32 v22, v21 offset:{off:#x}"); a("s_waitcnt lgkmcnt(0)"); a("v_max_f32 v21, v21, v22")
    a("v_mov_b32 v26, v21")
    a("s_branch L_at_pubf")
    a.label("L_at_pubv")
    a("v_cmp_gt_u32 vcc, 20, v6")
    a("s_and_saveexec_b64 s[56:57], vcc")
    a(f"buffer_store_dwordx4 v[16:19], v4, s[28:31], s43 offen offset:1280{CFG.SS}")
    a(f"buffer_store_dwordx4 v[20:23], v4, s[28:31], s43 offen offset:{1280+640}{CFG.SS}")
    a("s_mov_b64 exec, s[56:57]")
    a.label("L_at_pubf")
    a("s_lshl_b32 s40, s38, 6"); a("s_add_u32 s40, s40, s39"); a("s_lshl_b32 s40, s40, 4"); a(f"s_add_u32 s40, s40, {KVF_OFF}"); a("v_mov_b32 v7, 0")
    a("s_waitcnt vmcnt(0)")
    if "kvt" in mk.EXP: stamps.stamp(a, 5)
    a("s_mov_b64 exec, 1"); a(f"buffer_store_dwordx4 v[24:27], v7, s[28:31], s40 offen{CFG.SS}"); a("s_mov_b64 exec, -1")
    a.label("L_at_nopubkv")
    a.vmq = []; a.lgq = []
    a("v_mov_b32 v5, v11")
    a(f"v_add_u32 v{aK1}, {ATB}, v5")
    a("v_and_b32 v6, 31, v1"); a(f"v_lshlrev_b32 v{aK2}, 2, v6"); a(f"v_add_u32 v{aK2}, {ATB+1024}, v{aK2}")
    a("v_min_u32 v7, 19, v6"); a("v_cmp_eq_u32 vcc, 22, v6"); a("v_cndmask_b32 v7, v7, 18, vcc")
    a("v_lshrrev_b32 v8, 5, v1"); a("v_mul_u32_u24 v8, 320, v8"); a(f"v_lshl_add_u32 v9, v7, 4, v8")
    a(f"v_add_u32 v{aV}, {ATB+1280}, v9")
    a(f"s_mul_i32 s44, s36, {KV_PITCH}"); a(f"s_add_u32 s45, s44, {KV_OFF}"); a(f"s_add_u32 s44, s44, {ATB}")
    for c in (0, 1):
        for k in range(16): a(f"v_mov_b32 v{O_[c]+k}, 0")
        a(f"v_mov_b32 v{Q2[c]+2}, 0"); a(f"v_mov_b32 v{Q2[c]+3}, 0"); a(f"v_mov_b32 v{K2[c]+2}, 0"); a(f"v_mov_b32 v{K2[c]+3}, 0")
    a("s_mul_i32 s43, s36, 3072"); a(f"s_add_u32 s43, s43, {mk.QH}"); a("v_lshl_add_u32 v10, v1, 3, s43")
    a(f"s_add_u32 s10, s45, {16*GRP}"); a("s_bfe_u32 s40, s2, 0x40003"); a(f"s_mul_i32 s40, s40, {GRP}"); a("s_add_u32 s48, s45, s40")
    a("s_cmp_lg_u32 s36, 0"); a("s_cbranch_scc1 L_at_go")
    mk.chk_issue(a, 0); mk.chk(a, "apre", 0, APRE, sleep=2)
    a(f"s_mov_b32 s40, {KVF_OFF}")
    a.label("L_at_poll")
    a(f"buffer_load_dwordx4 v[32:35], v11, s[28:31], s40 offen{CFG.SP}"); a(f"buffer_load_dwordx2 v[36:37], v11, s[28:31], s40 offen offset:1024{CFG.SP}")
    a("s_waitcnt vmcnt(0)")
    a("v_cmp_ne_u64 vcc, s[60:61], v[32:33]"); a("v_cmp_ne_u64 s[8:9], s[60:61], v[36:37]"); a("s_or_b64 vcc, vcc, s[8:9]")
    a("s_cbranch_scc0 L_at_got")
    a("s_add_u32 s3, s3, 16"); a("s_cmp_ge_u32 s3, 0x400000"); a("s_cbranch_scc1 L_at_got")
    a(f"s_sleep {PSLEEP}"); a("s_branch L_at_poll")
    a.label("L_at_got")
    a("v_mov_b32 v12, v34")
    for off in (0x041F, 0x081F, 0x101F, 0x201F, 0x401F):
        a(f"ds_swizzle_b32 v13, v12 offset:{off:#x}"); a("s_waitcnt lgkmcnt(0)"); a("v_max_f32 v12, v12, v13")
    a("v_mov_b32 v13, v12"); a("v_permlane32_swap_b32 v12, v13"); a("v_max_f32 v12, v12, v13")
    a("v_sqrt_f32 v12, v12"); a(f"v_mul_f32 v12, {f32(1+1/64.):#x}, v12"); a("v_mov_b32 v13, 0")
    a("v_cvt_pk_bf16_f32 v12, v12, v13"); a("ds_write_b32 v0, v12 offset:36")
    a.label("L_at_go")
    a.vmq = []; a.lgq = []
    mk.arrive(a, 4, 14)
    mk.chk_issue(a, 4); mk.chk(a, "a1", 4, 1, sleep=1)
    stamps.stamp(a, 1)
    def nextgrp():
        a(f"s_add_u32 s48, s48, {GRP}"); a("s_cmp_eq_u32 s48, s10"); a("s_cselect_b32 s48, s45, s48")
    def kvdma(m, slot):
        a(f"s_add_u32 m0, s44, {slot*GRP}")
        for j in range(3): a(f"buffer_load_dwordx4 v5, s[28:31], s48 offen offset:{j*1024}{CFG.SL} lds", tag=f"kv{m}")
        nextgrp()
    kvdma(0, 0); kvdma(1, 1)
    a(f"ds_read_b32 v{K2[0]+1}, v0 offset:36"); a(f"ds_read_b32 v{K2[1]+1}, v0 offset:36")
    a("v_add_u32 v12, s43, v5")
    mk.chk_issue(a, 0); mk.chk(a, "aq", 0, mk.QI + 1, sleep=1)
    for c in (0, 1):
        a(f"ds_read_b128 v[{Q1[c]}:{Q1[c]+3}], v12 offset:{c*1536}"); a(f"ds_read_b64 v[{Q2[c]}:{Q2[c]+1}], v10 offset:{c*1536+1024}")
    a.wait_vm("kv0"); a.wait_lg0()
    mk.arrive(a, 4, 14)
    mk.chk_issue(a, 4); mk.chk(a, "a2", 4, 2)
    stamps.stamp(a, 2)
    a("s_setprio 1")

    def rdK(i, b):
        a(f"ds_read_b128 v[{K1[b]}:{K1[b]+3}], v{aK1} offset:{i*KV_PITCH}", tag=f"k{b}")
        a(f"ds_read_b32 v{K2[b]}, v{aK2} offset:{i*KV_PITCH}", tag=f"k{b}")
    def rdV(i, b):
        a(f"ds_read_b128 v[{VA[b]}:{VA[b]+3}], v{aV} offset:{i*KV_PITCH}", tag=f"v{b}")
        a(f"ds_read_b128 v[{VB[b]}:{VB[b]+3}], v{aV} offset:{i*KV_PITCH+640}", tag=f"v{b}")
    def qk(c, b):
        S = S_[c]
        return [f"v_mfma_f32_32x32x16_bf16 v[{S}:{S+15}], v[{K1[b]}:{K1[b]+3}], v[{Q1[c]}:{Q1[c]+3}], 0",
                f"v_mfma_f32_32x32x16_bf16 v[{S}:{S+15}], v[{K2[b]}:{K2[b]+3}], v[{Q2[c]}:{Q2[c]+3}], v[{S}:{S+15}]"]
    def pv(c, b):
        O = O_[c]; P = P_[c]
        return [f"v_mfma_f32_32x32x16_bf16 v[{O}:{O+15}], v[{VA[b]}:{VA[b]+3}], v[{P}:{P+3}], v[{O}:{O+15}]",
                f"v_mfma_f32_32x32x16_bf16 v[{O}:{O+15}], v[{VB[b]}:{VB[b]+3}], v[{P+4}:{P+7}], v[{O}:{O+15}]"]
    def cvt(d, s0):
        if 'perm' in mk.EXP: return f"v_perm_b32 v{d}, v{s0+1}, v{s0}, s60"
        return f"v_cvt_pk_bf16_f32 v{d}, v{s0}, v{s0+1}"
    def half(i, c, do_qk, do_pv, pre=None, mid=None):
        S = S_[c]; P = P_[c]; cn = 1 - c
        bq = (i + c) & 1
        bv = (i + 1) & 1 if c == 0 else i & 1
        mq = qk(cn, bq) if do_qk else [None, None]
        mp = pv(cn, bv) if do_pv else [None, None]
        slots = {0: [[mq[0]], [mq[1]], [mp[0]], [mp[1]]], 1: [[mq[0], mq[1]], [], [mp[0], mp[1]], []], 2: [[mq[0]], [mp[0]], [mq[1]], [mp[1]]],
                 3: [[mp[0]], [mq[0]], [mp[1]], [mq[1]]]}[ORD]
        for s in range(4):
            for m_ in slots[s]:
                if m_ is None: continue
                if m_ is mq[0]: a.wait_lg(f"k{bq}")
                if m_ is mp[0]: a.wait_lg(f"v{bv}")
                a(m_)
            if s == 0 and pre: pre()
            if s == 2 and mid:
                if do_pv: a.wait_lg(f"v{bv}")
                if do_qk: a.wait_lg(f"k{bq}")
                mid()
            for e in range(4): a(f"v_exp_f32 v{S+4*s+e}, v{S+4*s+e}")
            if s > 0:
                for k in range(2): a(cvt(P+2*(s-1)+k, S+4*(s-1)+2*k))
        for k in range(2): a(cvt(P+6+k, S+12+2*k))
    rdK(0, 0)
    a.wait_lg("k0")
    for m in qk(0, 0): a(m)
    a("s_nop 7"); a("s_nop 3")
    uid = [0]
    def body(first, last, dma, m=None):
        uid[0] += 1; u = uid[0]
        for i in range(4):
            def pre0():
                if i == 3:
                    if not last:
                        a(f"v_add_u32 v{aK1}, s46, v{aK1}"); a(f"v_add_u32 v{aK2}, s46, v{aK2}")
                        rdK(0, 0)
                else:
                    rdK(i + 1, (i + 1) & 1)
                rdV(i, i & 1)
                if i == 3 and not last: a(f"v_add_u32 v{aV}, s46, v{aV}")
                if i == 0 and not first and not last: mk.chk_issue(a, 4)
                if i == 2 and not last: mk.chk_issue(a, 4)
                if i == 3 and not last and PACE: mk.chk_issue(a, 0, v=13)
            for c in (0, 1):
                hs = 2 * i + c
                def mid():
                    if hs == 1 and not first and not last: mk.chk(a, f"w{u}", 4, "s52")
                    if hs == 1 and dma:
                        a("s_mov_b32 m0, s49"); a("s_nop 0")
                        for j in range(3):
                            a(f"buffer_load_dwordx4 v5, s[28:31], s48 offen offset:{j*1024}{CFG.SL} lds", tag=f"kv{m+2}" if m is not None else "kvn")
                    if hs == 3 and not last:
                        if m is None: a(f"s_waitcnt vmcnt({3 if dma else 0})")
                        else: a.wait_vm([f"kv{m+1}"] + (["pst", "clr"] if m == NPEEL - 1 else []))
                        mk.arrive(a, 4, 14); a("s_add_u32 s52, s52, s53")
                        if m is None and dma:
                            a("s_cmp_lg_u32 s50, s62"); a("s_cbranch_scc1 L_at_notouch")
                            a("buffer_load_dword v146, v144, s[4:7], s8 offen"); a("buffer_load_dword v147, v145, s[20:23], s9 offen")
                            a.label("L_at_notouch")
                    if hs == 5 and not last: mk.chk(a, f"r{u}", 4, "s52")
                    if hs == 7 and not last:
                        mk.arrive(a, 4, 14); a("s_add_u32 s52, s52, s53")
                if c == 0: half(i, 0, True, not (first and i == 0), pre=pre0, mid=mid)
                else: half(i, 1, not (last and i == 3), True, mid=mid)
    def advance():
        a("s_add_u32 s47, s47, 1"); a("s_cmp_eq_u32 s47, 3"); a("s_cselect_b32 s47, 0, s47")
        a("s_cmp_eq_u32 s47, 2"); a(f"s_cselect_b32 s46, {(-2*GRP) & 0xffffffff:#x}, s63")
        nextgrp()
        a(f"s_add_u32 s49, s49, {GRP}"); a(f"s_add_u32 s40, s44, {3*GRP}"); a("s_cmp_eq_u32 s49, s40"); a("s_cselect_b32 s49, s44, s49")
        if PACE:
            uid[0] += 1
            a("s_add_u32 s54, s54, s57")
            mk.chk(a, f"p{uid[0]}", 0, "s54", v=13, sleep=2)
    a("s_mov_b32 s47, 0"); a(f"s_mov_b32 s46, {GRP}"); a(f"s_mov_b32 s63, {GRP}"); a(f"s_add_u32 s49, s44, {2*GRP}")
    a("s_mov_b32 s53, 16"); a("s_mov_b32 s52, 32")
    a(f"s_mov_b32 s54, {PACE0*16}"); a(f"s_mov_b32 s57, {PACE*16}")
    a("s_bfe_u32 s62, s2, 0x30003"); a("s_add_u32 s62, s62, 3")
    srd(a, 4, 80, F * D * 2); srd(a, 20, 74, D * D * 2)
    a("s_lshl_b32 s40, s2, 2"); a("s_add_u32 s40, s40, s36"); a(f"s_mul_i32 s8, s40, {41*128}"); a(f"s_mul_i32 s9, s40, {6*128}")
    a("v_min_u32 v144, 40, v1"); a("v_lshlrev_b32 v144, 7, v144"); a("v_min_u32 v145, 5, v1"); a("v_lshlrev_b32 v145, 7, v145")
    for m in range(NPEEL):
        body(m == 0, False, True, m)
        advance()
    a(f"s_mov_b32 s50, {14 - NPEEL}")
    if "noat" in mk.EXP: a("s_branch L_at_fin")
    lg_in = list(a.lgq)
    i0 = len(a.items)
    if ALIGN is not None:
        a.raw(".p2align 6")
        for _ in range(ALIGN): a("s_nop 0")
    a.label("L_at_loop")
    body(False, False, True)
    advance()
    a("s_sub_u32 s50, s50, 1"); a("s_cmp_lg_u32 s50, 0"); a("s_cbranch_scc1 L_at_loop")
    assert a.lgq == lg_in, (a.lgq, lg_in)
    loop_ins = [x for x in a.items[i0:] if not isinstance(x, str)]
    assert check_backedge(loop_ins, loop_ins) == 0
    body(False, False, False)
    advance()
    body(False, True, False)
    for m in pv(1, 1): a(m)
    a("s_setprio 0")
    stamps.stamp(a, 3)
    a("s_nop 15")
    a(f"v_min_f32 v12, v{O_[0]+10}, v{O_[1]+10}")
    a(f"s_mov_b32 s40, {LTHR:#x}")
    a("v_cmp_nle_f32 vcc, s40, v12")
    a("s_nop 4")
    a("s_cbranch_vccz L_at_fin")
    fallback(a)
    a.label("L_at_fin")
    a(f"s_mul_i32 s43, s39, {NSTEP}"); a("s_lshl_b32 s40, s38, 1"); a("s_add_u32 s41, s43, s40"); a("s_add_u32 s41, s41, 288"); a("s_lshl_b32 s41, s41, 10")
    a("s_lshr_b32 s42, s40, 3"); a("s_add_u32 s43, s43, s42"); a("s_add_u32 s43, s43, 320"); a("s_lshl_b32 s43, s43, 10")
    a("s_and_b32 s42, s38, 1"); a("s_lshl_b32 s42, s42, 9"); a("s_add_u32 s43, s43, s42")
    a("s_bfe_u32 s42, s38, 0x10001"); a("s_lshl_b32 s42, s42, 3"); a("s_add_u32 s43, s43, s42")
    for c in (0, 1):
        O = O_[c]; T = S_[c]
        a(f"v_rcp_f32 v{T}, v{O+10}")
        for k in range(10): a(f"v_mul_f32 v{O+k}, v{O+k}, v{T}")
        for k in range(5): a(f"v_cvt_pk_bf16_f32 v{T+4+k}, v{O+2*k}, v{O+2*k+1}")
        a(f"buffer_store_dwordx4 v[{T+4}:{T+7}], v5, s[24:27], s41 offen offset:{c*1024}{CFG.SS}")
    a("s_mov_b32 exec_hi, 0")
    a(f"v_mov_b32 v{S_[0]+9}, v{S_[1]+8}")
    a(f"buffer_store_dwordx2 v[{S_[0]+8}:{S_[0]+9}], v5, s[24:27], s43 offen{CFG.SS}")
    a("s_mov_b32 exec_hi, -1")
    a("s_waitcnt vmcnt(0)")
    mk.arrive(a, 4, 14); a("s_add_u32 s52, s52, s53")
    a("s_cmp_lg_u32 s36, 0"); a("s_cbranch_scc1 L_at_nopub")
    a.lgq = []
    mk.chk_issue(a, 4); mk.chk(a, "fin", 4, "s52", sleep=1)
    a("s_lshl_b32 s40, s37, 4"); a("s_and_b32 s41, s38, 12"); a("s_add_u32 s40, s40, s41"); a("s_lshl_b32 s40, s40, 7")
    a("s_and_b32 s41, s38, 3"); a("s_lshl_b32 s41, s41, 2"); a("s_add_u32 s40, s40, s41"); a(f"s_add_u32 s40, s40, {FL_REL + 64}")
    mk.flag_send(a, 12, 40, 128, 12)
    a.label("L_at_nopub")
    for i in (4, 5):
        if 'kvt' not in mk.EXP: stamps.stamp(a, i)
    stamps.flush(a, 0, 55); stamps.tb_flush(a, 14, 55)

def fallback(a):
    a("v_and_b32 v6, 31, v1"); a("v_lshlrev_b32 v6, 2, v6")
    M = [P_[0], P_[1]]
    for c in (0, 1): a(f"v_mov_b32 v{M[c]}, 0xff800000")
    a(f"v_mov_b32 v{K2[0]+1}, 0")
    a(f"s_mov_b32 s42, {KV_OFF}")
    a.label("L_fb1")
    a(f"buffer_load_dwordx4 v[{K1[0]}:{K1[0]+3}], v5, s[28:31], s42 offen{CFG.SL}")
    a(f"buffer_load_dword v{K2[0]}, v6, s[28:31], s42 offen offset:1024{CFG.SL}")
    a("s_waitcnt vmcnt(0)")
    for c in (0, 1):
        S = S_[c]
        a(f"v_mfma_f32_32x32x16_bf16 v[{S}:{S+15}], v[{K1[0]}:{K1[0]+3}], v[{Q1[c]}:{Q1[c]+3}], 0")
        a(f"v_mfma_f32_32x32x16_bf16 v[{S}:{S+15}], v[{K2[0]}:{K2[0]+3}], v[{Q2[c]}:{Q2[c]+3}], v[{S}:{S+15}]")
    for c in (0, 1):
        S = S_[c]
        for k in range(8): a(f"v_max3_f32 v{M[c]}, v{M[c]}, v{S+2*k}, v{S+2*k+1}")
    a(f"s_add_u32 s42, s42, {KV_PITCH}"); a(f"s_cmp_lt_u32 s42, {KV_OFF + KV_BYTES}"); a("s_cbranch_scc1 L_fb1")
    a("v_cmp_gt_u32 vcc, 32, v1")
    a("s_mov_b32 s54, 0xffff0000")
    for c in (0, 1):
        m = M[c]; t = m + 1
        a(f"v_mov_b32 v{t}, v{m}"); a(f"v_permlane32_swap_b32 v{m}, v{t}"); a(f"v_max_f32 v{m}, v{m}, v{t}")
        a(f"v_sub_f32 v{m}, 0, v{m}")
        a(f"v_and_b32 v{t}, s54, v{m}"); a(f"v_sub_f32 v{m}, v{m}, v{t}")
        a(f"v_and_b32 v{t+1}, s54, v{m}"); a(f"v_sub_f32 v{m}, v{m}, v{t+1}")
        a(f"v_lshrrev_b32 v{t}, 16, v{t}"); a(f"v_or_b32 v{t}, v{t}, v{t+1}")
        a(f"v_lshrrev_b32 v{m}, 16, v{m}")
        a(f"v_cndmask_b32 v{Q2[c]+1}, 0, v{t}, vcc"); a(f"v_cndmask_b32 v{Q2[c]+2}, 0, v{m}, vcc")
        for k in range(16): a(f"v_mov_b32 v{O_[c]+k}, 0")
    a(f"v_mov_b32 v{K2[0]+1}, 0x3f803f80"); a(f"v_mov_b32 v{K2[0]+2}, 0x3f80")
    a(f"s_mov_b32 s42, {KV_OFF}")
    a.label("L_fb2")
    a(f"buffer_load_dwordx4 v[{K1[0]}:{K1[0]+3}], v5, s[28:31], s42 offen{CFG.SL}")
    a(f"buffer_load_dword v{K2[0]}, v6, s[28:31], s42 offen offset:1024{CFG.SL}")
    a(f"buffer_load_dwordx4 v[{VA[0]}:{VA[0]+3}], v9, s[28:31], s42 offen offset:1280{CFG.SL}")
    a(f"buffer_load_dwordx4 v[{VB[0]}:{VB[0]+3}], v9, s[28:31], s42 offen offset:{1280+640}{CFG.SL}")
    a("s_waitcnt vmcnt(0)")
    for c in (0, 1):
        S = S_[c]
        a(f"v_mfma_f32_32x32x16_bf16 v[{S}:{S+15}], v[{K1[0]}:{K1[0]+3}], v[{Q1[c]}:{Q1[c]+3}], 0")
        a(f"v_mfma_f32_32x32x16_bf16 v[{S}:{S+15}], v[{K2[0]}:{K2[0]+3}], v[{Q2[c]}:{Q2[c]+3}], v[{S}:{S+15}]")
    for c in (0, 1):
        S = S_[c]; P = P_[c]; O = O_[c]
        for k in range(16): a(f"v_exp_f32 v{S+k}, v{S+k}")
        for k in range(8): a(f"v_cvt_pk_bf16_f32 v{P+k}, v{S+2*k}, v{S+2*k+1}")
        a(f"v_mfma_f32_32x32x16_bf16 v[{O}:{O+15}], v[{VA[0]}:{VA[0]+3}], v[{P}:{P+3}], v[{O}:{O+15}]")
        a(f"v_mfma_f32_32x32x16_bf16 v[{O}:{O+15}], v[{VB[0]}:{VB[0]+3}], v[{P+4}:{P+7}], v[{O}:{O+15}]")
    a("s_nop 7")
    a(f"s_add_u32 s42, s42, {KV_PITCH}"); a(f"s_cmp_lt_u32 s42, {KV_OFF + KV_BYTES}"); a("s_cbranch_scc1 L_fb2")
    a("s_nop 15")
    a.vmq = []
```

```python
from dsl import *
from layout import *
import stamps, struct
def f32(x): return struct.unpack("<I", struct.pack("<f", x))[0]
EXP = set()
import cfg as CFG

XB = 112; ACC = 48; FR = 16; NFR = 8
LB = 1024
BIAS = 4096
SLOT = 16384; R = 7; KVIMG = LB + 7 * SLOT; PF = 6
NCH = 45
QH = KVIMG + 24576
KVH = KVIMG + 36864
PITCH2 = 320; STEP2 = 32 * PITCH2; GRP2 = 2 * STEP2; NRING2 = 5; NG2 = 21
ACC2 = 176; BR = 112
NQ = 31; QB = 12288
PRIO = False; FILLN = 2; PH = 3
HL = 56; OL = 61; PKI = 37; VO1 = 52; VO2 = 57; LAG = 0; QI = 5; APRIO = 6
def X(t): return f"v[{XB+4*t}:{XB+4*t+3}]"
def acc(c): return f"v[{ACC+16*c}:{ACC+16*c+15}]"
def acc2(u): return f"v[{ACC2+4*u}:{ACC2+4*u+3}]"
def acc32(t): return f"v[{ACC2+16*t}:{ACC2+16*t+15}]"
RA = 2

def srd(a, d, p, nbytes, off=0):
    if off: a(f"s_add_u32 s{d}, s{p}, {off}"); a(f"s_addc_u32 s{d+1}, s{p+1}, 0")
    else: a(f"s_mov_b32 s{d}, s{p}"); a(f"s_mov_b32 s{d+1}, s{p+1}")
    a(f"s_mov_b32 s{d+2}, {nbytes}"); a(f"s_mov_b32 s{d+3}, 0x20000")

def common(a):
    a("s_cmp_ge_u32 s2, 256"); a("s_cbranch_scc1 L_end")
    a("s_load_dwordx16 s[64:79], s[0:1], 0"); a("s_load_dwordx8 s[80:87], s[0:1], 64")
    a("v_lshrrev_b32 v2, 6, v0"); a("v_and_b32 v1, 63, v0"); a("v_readfirstlane_b32 s55, v2")
    stamps.stamp(a, 0)
    a("s_and_b32 s40, s2, 7"); a("s_lshr_b32 s41, s2, 3")
    a("s_and_b32 s37, s40, 1"); a("s_lshl_b32 s37, s37, 3"); a("s_and_b32 s42, s41, 7"); a("s_add_u32 s37, s37, s42")
    a("s_lshr_b32 s38, s40, 1"); a("s_lshl_b32 s38, s38, 2"); a("s_lshr_b32 s42, s41, 3"); a("s_add_u32 s38, s38, s42")
    a("s_and_b32 s36, s55, 3"); a("s_mov_b32 s3, 0")
    a("s_lshl_b32 s39, s37, 2"); a("s_add_u32 s39, s39, s36")
    a("v_lshlrev_b32 v11, 4, v1")
    a("s_bfe_u32 s62, s2, 0x30003"); a("s_lshr_b32 s40, s2, 6"); a("s_lshl_b32 s40, s40, 1"); a("s_add_u32 s62, s62, s40")
    a("s_cmp_ge_u32 s62, 9"); a("s_cselect_b32 s40, 9, 0"); a("s_sub_u32 s62, s62, s40")
    a("s_lshl_b32 s45, s36, 12"); a(f"s_add_u32 s45, s45, {LB}")
    a(f"s_mul_i32 s44, s39, {32*1152}")
    a("v_lshrrev_b32 v2, 3, v1"); a("v_and_b32 v3, 7, v1"); a("v_lshrrev_b32 v4, 1, v2"); a("v_xor_b32 v3, v3, v4")
    a("v_mul_u32_u24 v5, 1152, v2"); a("v_lshl_add_u32 v12, v3, 4, v5"); a("v_xor_b32 v13, 64, v12")
    a("s_waitcnt lgkmcnt(0)")
    a("v_mov_b32 v0, 4")
    stamps.tb_init(a, 12)
    a("s_cmp_ge_u32 s55, 4"); a("s_cbranch_scc1 L_at")

def atomic_inc(a, label, off_expr_sgpr, val, vt=13):
    a(f"v_mov_b32 v{vt}, {off_expr_sgpr}"); a(f"v_mov_b32 v{vt+1}, {val}")
    a("s_mov_b64 exec, 1")
    a(f"buffer_atomic_add v{vt+1}, v{vt}, s[32:35], 0 offen")
    a("s_mov_b64 exec, -1")
    a.vmq = a.vmq[:-1]

def poll_issue(a, off, tag, va=14, vv=15):
    return [f"v_mov_b32 v{va}, {off}", (f"buffer_load_dword v{vv}, v{va}, s[32:35], 0 offen{CFG.SP}", tag)]
def poll_check(a, name, tag, shift, width, target, va=14, vv=15):
    a.wait_vm(tag)
    a("s_cmp_lg_u32 s36, 0"); a(f"s_cbranch_scc1 L_{name}_ok")
    a("s_mov_b32 s56, 0")
    a.label(f"L_{name}_chk")
    a(f"v_readfirstlane_b32 s40, v{vv}")
    a(f"s_bfe_u32 s40, s40, {shift | (width << 16):#x}")
    a(f"s_cmp_ge_u32 s40, {target}")
    a(f"s_cbranch_scc1 L_{name}_ok")
    a("s_add_u32 s56, s56, 1"); a("s_cmp_ge_u32 s56, 0x80000"); a(f"s_cbranch_scc1 L_{name}_ok")
    a("s_sleep 16")
    a(f"buffer_load_dword v{vv}, v{va}, s[32:35], 0 offen{CFG.SP}"); a.vmq = a.vmq[:-1]
    a("s_waitcnt vmcnt(0)")
    a(f"s_branch L_{name}_chk")
    a.label(f"L_{name}_ok")

def arrive(a, off, vtb=12):
    stamps.mark(a, vtb)
    a("s_mov_b64 exec, 1"); a(f"ds_add_u32 v0, v0 offset:{off}"); a("s_mov_b64 exec, -1")
def chk_issue(a, off, v=15): a(f"ds_read_b32 v{v}, v0 offset:{off}", tag="chk")
def chk(a, name, off, k, v=15, sleep=0):
    a.wait_lg("chk")
    a.label(f"L_c{name}")
    a(f"v_cmp_gt_u32 vcc, {16 * k if isinstance(k, int) else k}, v{v}")
    a(f"s_cbranch_vccz L_c{name}_ok")
    a("s_add_u32 s3, s3, 1"); a("s_cmp_ge_u32 s3, 0x400000"); a(f"s_cbranch_scc1 L_c{name}_ok")
    if sleep: a(f"s_sleep {sleep}")
    a(f"ds_read_b32 v{v}, v0 offset:{off}"); a.lgq = a.lgq[:-1]
    a("s_waitcnt lgkmcnt(0)")
    a(f"s_branch L_c{name}")
    a.label(f"L_c{name}_ok")

TAG = 60
def flag_send(a, srd_, base_sgpr, stride, vt=13):
    a(f"v_mov_b32 v{vt}, s{TAG+1}"); a(f"v_mov_b32 v{vt+1}, s{TAG}"); a("v_cmp_gt_u32 vcc, 4, v1"); a(f"v_cndmask_b32 v{vt+1}, v{vt}, v{vt+1}, vcc")
    a(f"v_mul_u32_u24 v{vt}, {stride}, v1")
    a("s_mov_b64 exec, 0xf0"); a(f"v_subrev_u32 v{vt}, {4*stride - 16}, v{vt}")
    a("s_mov_b64 exec, 0xff")
    a(f"buffer_store_dword v{vt+1}, v{vt}, s[{srd_}:{srd_+3}], s{base_sgpr} offen{CFG.SS}")
    a("s_mov_b64 exec, -1")
    a.vmq = a.vmq[:-1]
def flag_issue(srd_, line_sgpr, off, tag, va=14, vv=13):
    return ["PRIO2", f"v_and_b32 v{va}, 7, v1", f"v_lshlrev_b32 v{va}, 2, v{va}", "PRIO0",
            (f"buffer_load_dword v{vv}, v{va}, s[{srd_}:{srd_+3}], s{line_sgpr} offen offset:{off}{CFG.SP}", tag)]
def flag_check(a, name, tag, srd_, line_sgpr, off, va=14, vv=13):
    a.wait_vm(tag)
    a("s_cmp_lg_u32 s36, 0"); a(f"s_cbranch_scc1 L_{name}_ok")
    a.label(f"L_{name}_chk")
    a(f"v_cmp_ne_u32 s[40:41], s{TAG}, v{vv}"); a(f"v_cmp_ne_u32 vcc, s{TAG+1}, v{vv}")
    a("s_and_b32 s40, s40, 0x0f"); a("s_and_b32 s41, vcc_lo, 0xf0"); a("s_or_b32 s40, s40, s41")
    a(f"s_cbranch_scc0 L_{name}_ok")
    a("s_add_u32 s3, s3, 16"); a("s_cmp_ge_u32 s3, 0x400000"); a(f"s_cbranch_scc1 L_{name}_ok")
    a("s_sleep 4")
    a(f"buffer_load_dword v{vv}, v{va}, s[{srd_}:{srd_+3}], s{line_sgpr} offen offset:{off}{CFG.SP}"); a.vmq = a.vmq[:-1]
    a("s_waitcnt vmcnt(0)")
    a(f"s_branch L_{name}_chk")
    a.label(f"L_{name}_ok")

def w_setup(a, for_at):
    if for_at: srd(a, 8, 66, D * D * 2)
    for d, p in ((12, 76), (16, 78)):
        a(f"s_sub_u32 s{d}, s{p}, {BIAS}"); a(f"s_subb_u32 s{d+1}, s{p+1}, 0"); a(f"s_mov_b32 s{d+2}, {D*F*2 + BIAS}"); a(f"s_mov_b32 s{d+3}, 0x20000")
def ws_srds(a):
    srd(a, 24, 86, H_BYTES, H_OFF); srd(a, 28, 86, SM_BYTES, SM_OFF); srd(a, 32, 84, 256)
def w_table(a):
    for c in range(9):
        a(f"s_add_u32 s{64+c}, s62, {c}"); a(f"s_cmp_ge_u32 s{64+c}, 9"); a("s_cselect_b32 s40, 9, 0"); a(f"s_sub_u32 s{64+c}, s{64+c}, s40")
def w_scalars(a):
    a(f"s_mul_i32 s46, s36, {16*9216}"); a("s_mul_i32 s40, s38, 576"); a("s_add_u32 s46, s46, s40")
    a("s_and_b32 s40, s38, 1")
    a("s_lshl_b32 s41, s40, 6"); a("s_add_u32 s47, s46, s41")
    a("s_xor_b32 s41, s40, 1"); a("s_lshl_b32 s41, s41, 9"); a("s_add_u32 s48, s46, s41"); a(f"s_add_u32 s48, s48, {BIAS}")
    a(f"s_mul_i32 s49, s36, {16*1152}"); a("s_mul_i32 s41, s38, 72"); a("s_add_u32 s49, s49, s41")
def w_voffs(a):
    a("v_lshrrev_b32 v14, 3, v1"); a("v_bfe_u32 v15, v1, 1, 2"); a("v_and_b32 v13, 1, v1"); a("v_lshlrev_b32 v13, 4, v13")
    a("v_and_b32 v5, 2, v14"); a("v_xor_b32 v5, v15, v5")
    a("v_lshrrev_b32 v4, 1, v5"); a("v_mul_u32_u24 v4, 36, v4"); a("v_and_b32 v5, 1, v5"); a("v_lshl_add_u32 v4, v5, 5, v4")
    a("v_and_b32 v5, v5, v1"); a("v_lshl_add_u32 v4, v5, 30, v4")
    a("v_mul_u32_u24 v5, 1152, v14"); a("v_add3_u32 v6, v5, v4, v13")
    a("v_lshrrev_b32 v2, 2, v1"); a("v_mul_u32_u24 v2, 9216, v2"); a("v_and_b32 v3, 3, v1"); a("v_lshl_add_u32 v7, v3, 4, v2"); a("v_xor_b32 v8, 32, v7")
    a("v_bfe_u32 v5, v14, 1, 1"); a("v_xor_b32 v5, v15, v5"); a("v_lshl_add_u32 v5, v5, 5, v13")
    a("v_mul_u32_u24 v4, 9216, v14"); a("v_add_u32 v9, v4, v5"); a(f"v_add_u32 v9, {BIAS}, v9"); a(f"v_add_u32 v10, {8*9216 - 1024}, v9")
    for c in range(9): a(f"s_mul_i32 s{64+c}, s{64+c}, {64*9216}")
def wdma(g):
    p, c = divmod(g, 9); slot = g % R
    out = []
    for i in range(4):
        if p == 0:
            hc = 2 * g + (i >> 1); c = hc % 9
            if hc < 9:
                pre = [f"s_lshr_b32 s43, s{64+c}, 3", f"s_add_u32 s43, s43, s49"] if i % 2 == 0 else [f"s_add_u32 s43, s43, {8*1152}"]
                v, srd_ = 6, 8
            else:
                pre = [f"s_add_u32 s43, s{64+c}, s48"] if i % 2 == 0 else []
                v, srd_ = 7 + (i & 1), (12 if i % 2 == 0 else 16)
            out.append(pre + [f"s_add_u32 m0, s45, {slot*SLOT + i*1024}",
                              (f"buffer_load_dwordx4 v{v}, s[{srd_}:{srd_+3}], s43 offen lds", f"w{g}")])
        else:
            pre = []
            if i == 0:
                if g == 9: pre = ["v_xor_b32 v7, 64, v9", "v_subrev_u32 v7, 2048, v7", f"v_add_u32 v8, {8*9216 - 1024}, v7"]
                pre += [f"s_add_u32 m0, s45, {slot*SLOT}", f"s_add_u32 s43, s{64+c}, s47"]
                if c == 8: pre.append("s_add_u32 s47, s47, 128")
            v, srd_ = (9, 10, 7, 8)[i], (12 if i < 2 else 16)
            out.append(pre + [(f"buffer_load_dwordx4 v{v}, s[{srd_}:{srd_+3}], s43 offen offset:{i*1024} lds", f"w{g}")])
    return out
def emit_group_to(a, grp):
    for x in grp:
        if isinstance(x, tuple): a(x[0], tag=x[1])
        else: a(x)

def gen_g(a):
    srd(a, 4, 64, S * D * 2)
    first = []
    for c in range(2):
        a(f"s_add_u32 s43, s62, {c}"); a("s_cmp_ge_u32 s43, 9"); a("s_cselect_b32 s40, 9, 0"); a("s_sub_u32 s43, s43, s40")
        a("s_lshl_b32 s43, s43, 7"); a("s_add_u32 s43, s43, s44")
        for i in range(4):
            a(f"s_add_u32 m0, s45, {c*SLOT + i*1024}"); a(f"s_add_u32 s42, s43, {8*i*1152}")
            a(f"buffer_load_dwordx4 v{12 + (i&1)}, s[4:7], s42 offen lds", tag=f"x{c}")
    for d, p, nb_ in ((8, 80, F * D * 2), (20, 72, D * D * 2)):
        a(f"s_sub_u32 s{d}, s{p}, {BIAS}"); a(f"s_subb_u32 s{d+1}, s{p+1}, 0"); a(f"s_mov_b32 s{d+2}, {nb_ + BIAS}"); a(f"s_mov_b32 s{d+3}, 0x20000")
    w_setup(a, False)
    w_table(a)
    def xdma(c, slot):
        a(f"s_lshl_b32 s43, s{64+c}, 7"); a("s_add_u32 s43, s43, s44")
        for i in range(4):
            a(f"s_add_u32 m0, s45, {slot*SLOT + i*1024}")
            a(f"s_add_u32 s42, s43, {8*i*1152}")
            a(f"buffer_load_dwordx4 v{12 + (i&1)}, s[4:7], s42 offen lds", tag=f"x{c}")
    for c in range(2, 7): xdma(c, c)
    ws_srds(a)
    w_scalars(a)
    a(f"s_mul_i32 s51, s39, {NSTEP*1024}")
    a(f"s_mul_i32 s41, s38, {18*1024}"); a("s_add_u32 s50, s51, s41")
    a("s_mov_b32 s53, 0x3f803f80"); a("s_mov_b32 s54, 0xffff0000")
    a("v_and_b32 v2, 31, v1"); a("v_lshrrev_b32 v3, 5, v1"); a("v_bfe_u32 v4, v1, 1, 3"); a("v_xor_b32 v3, v3, v4")
    a("v_lshlrev_b32 v2, 7, v2"); a("v_lshl_add_u32 v2, v3, 4, v2"); a("v_add_u32 v2, s45, v2")
    a("v_xor_b32 v3, 32, v2"); a("v_xor_b32 v4, 64, v2"); a("v_xor_b32 v5, 96, v2")
    for k in range(4): a(f"v_add_u32 v{6+k}, {4*SLOT}, v{2+k}")
    st = ACC
    for k in range(4): a(f"v_mov_b32 v{st+k}, 0")
    def stats(c):
        for t in range(4*c, 4*c+4):
            for k in range(4):
                r = XB + 4*t + k
                a(f"v_dot2c_f32_bf16 v{st + (k&1)}, s53, v{r}")
                a(f"v_dot2c_f32_bf16 v{st + 2 + (k&1)}, v{r}, v{r}")
    for c in range(9):
        slot = c if c < 7 else c - 7
        a.wait_vm(f"x{c}")
        for tt in range(4):
            if slot < 4: a(f"ds_read_b128 {X(4*c+tt)}, v{2+tt} offset:{slot*SLOT}", tag=f"xr{c}")
            else: a(f"ds_read_b128 {X(4*c+tt)}, v{6+tt} offset:{(slot-4)*SLOT}", tag=f"xr{c}")
        if c < 2:
            a.wait_lg(f"xr{c}"); xdma(7 + c, c)
        if c > 0:
            a.wait_lg(f"xr{c-1}"); stats(c - 1)
    a.wait_lg0()
    stamps.stamp(a, 1)
    a("s_barrier"); nbar = 1
    def emit_group(grp):
        for x in grp:
            if isinstance(x, tuple): a(x[0], tag=x[1])
            elif x == "PRIO2": setprio(2)
            elif x == "PRIO0":
                if not fill: setprio(0)
            else: a(x)
    stats(8)
    a("s_nop 2")
    a(f"v_add_f32 v{st}, v{st}, v{st+1}"); a(f"v_add_f32 v{st+2}, v{st+2}, v{st+3}")
    a(f"v_mov_b32 v{st+1}, v{st}"); a(f"v_mov_b32 v{st+3}, v{st+2}")
    a(f"v_permlane32_swap_b32 v{st}, v{st+1}"); a(f"v_permlane32_swap_b32 v{st+2}, v{st+3}")
    a(f"v_add_f32 v{st}, v{st}, v{st+1}"); a(f"v_add_f32 v{st+2}, v{st+2}, v{st+3}")
    a(f"v_mul_f32 v{st}, {f32(1.0/576):#x}, v{st}"); a(f"v_mul_f32 v{st+2}, {f32(1.0/576):#x}, v{st+2}")
    a(f"v_fma_f32 v{st+2}, -v{st}, v{st}, v{st+2}"); a(f"v_max_f32 v{st+2}, 0, v{st+2}"); a(f"v_add_f32 v{st+2}, {f32(1e-5):#x}, v{st+2}")
    a(f"v_rsq_f32 v{st+2}, v{st+2}")
    a(f"v_mul_f32 v{st+4}, v{st}, v{st+2}"); a(f"v_sub_f32 v{st+4}, 0, v{st+4}")
    a(f"v_mov_b32 v{st+3}, v{st+2}"); a(f"v_mov_b32 v{st+5}, v{st+4}")
    T = ACC + 8
    for r0 in range(0, 144, 4):
        for k in range(4):
            r = XB + r0 + k; t = T + 2*k
            a(f"v_lshlrev_b32 v{t}, 16, v{r}"); a(f"v_and_b32 v{t+1}, s54, v{r}")
        for k in range(4):
            t = T + 2*k
            a(f"v_pk_fma_f32 v[{t}:{t+1}], v[{t}:{t+1}], v[{st+2}:{st+3}], v[{st+4}:{st+5}]")
        for k in range(4):
            r = XB + r0 + k; t = T + 2*k
            a(f"v_cvt_pk_bf16_f32 v{r}, v{t}, v{t+1}")
    w_voffs(a)
    a("s_mov_b32 s60, -1"); a("s_mov_b32 s61, 0")
    a("s_cmp_ge_u32 s38, 2"); a("s_cbranch_scc1 L_g_nokv")
    a("v_lshrrev_b32 v2, 5, v1"); a("v_lshlrev_b32 v2, 3, v2"); a("v_bfe_u32 v3, v1, 2, 2"); a("v_add_u32 v2, v2, v3"); a("v_lshlrev_b32 v2, 6, v2")
    a("v_bfe_u32 v3, v1, 4, 1"); a("v_lshl_add_u32 v2, v3, 5, v2"); a("v_and_b32 v3, 3, v1"); a("v_lshl_add_u32 v2, v3, 3, v2")
    a(f"v_add_u32 v2, {KVIMG}, v2")
    a(f"s_lshl_b32 s43, s36, 11"); a(f"s_add_u32 s43, s43, {KVH}"); a("v_add_u32 v3, s43, v11"); a("v_mov_b32 v5, v3")
    saved_vmq = list(a.vmq)
    def kvpass(isV):
        def rd(t):
            b = FR + 4 * (t % NFR)
            a(f"ds_read_b64_tr_b16 v[{b}:{b+1}], v2 offset:{t*1024}", tag=f"kv{t}")
            a(f"ds_read_b64_tr_b16 v[{b+2}:{b+3}], v2 offset:{t*1024+256}", tag=f"kv{t}")
        for t in range(PF): rd(t)
        for t in range(36):
            b = FR + 4 * (t % NFR)
            a.wait_lg(f"kv{t}")
            cc = "0" if t == 0 else acc(0)
            if isV: a(f"v_mfma_f32_32x32x16_bf16 {acc(0)}, {X(t)}, v[{b}:{b+3}], {cc}")
            else: a(f"v_mfma_f32_32x32x16_bf16 {acc(0)}, v[{b}:{b+3}], {X(t)}, {cc}")
            if t + PF < 36: rd(t + PF)
    a("s_cmp_eq_u32 s38, 1"); a("s_cbranch_scc1 L_g_v")
    kvpass(False)
    B = ACC; T = ACC + 16
    for k in range(5): a(f"v_cvt_pk_bf16_f32 v{T+k}, v{B+2*k}, v{B+2*k+1}")
    a(f"ds_write_b128 v3, v[{T}:{T+3}]")
    a(f"v_mul_f32 v{T+8}, v{B+8}, v{B+8}"); a(f"v_fmac_f32 v{T+8}, v{B+9}, v{B+9}"); a(f"v_cndmask_b32 v{T+8}, 0, v{T+8}, s[60:61]")
    for k in range(8): a(f"v_fmac_f32 v{T+8}, v{B+k}, v{B+k}")
    a(f"v_mov_b32 v{T+9}, v{T+8}"); a(f"v_permlane32_swap_b32 v{T+8}, v{T+9}"); a(f"v_add_f32 v{T+8}, v{T+8}, v{T+9}")
    a(f"v_mov_b32 v{T+5}, v{T+8}")
    a(f"ds_write_b64 v3, v[{T+4}:{T+5}] offset:1024")
    a("s_branch L_g_kvdone")
    a.label("L_g_v")
    a.lgq = []
    kvpass(True)
    for k in range(8): a(f"v_cvt_pk_bf16_f32 v{T+k}, v{B+2*k}, v{B+2*k+1}")
    a("v_and_b32 v3, 31, v1"); a("v_cmp_eq_u32 vcc, 18, v3"); a("v_mov_b32 v4, s53")
    for k in range(8): a(f"v_cndmask_b32 v{T+k}, v{T+k}, v4, vcc")
    a("v_cmp_gt_u32 vcc, 19, v3")
    for k in range(8): a(f"v_cndmask_b32 v{T+k}, 0, v{T+k}, vcc")
    a(f"ds_write_b128 v5, v[{T}:{T+3}]"); a(f"ds_write_b128 v5, v[{T+4}:{T+7}] offset:1024")
    a.label("L_g_kvdone")
    a("s_waitcnt lgkmcnt(0)")
    a("s_mov_b64 exec, 1"); a("ds_add_u32 v0, v0 offset:20"); a("s_mov_b64 exec, -1")
    a.label("L_g_nokv")
    a("s_nop 7"); a("s_nop 7")
    a.vmq = saved_vmq; a.lgq = []
    def tr_addrs(p):
        if p == 0:
            return ["v_lshrrev_b32 v13, 5, v1", "v_lshlrev_b32 v2, 10, v13", "v_bfe_u32 v14, v1, 2, 2", "v_lshl_add_u32 v2, v14, 7, v2",
                    "v_and_b32 v15, 2, v14", "v_bfe_u32 v3, v1, 4, 1", "v_xor_b32 v15, v15, v3", "v_lshl_add_u32 v2, v15, 5, v2",
                    "v_and_b32 v15, 3, v1", "v_lshl_add_u32 v2, v15, 3, v2", f"v_add_u32 v2, {LB}, v2", "v_xor_b32 v3, 64, v2",
                    "v_lshl_add_u32 v4, v13, 3, v14", "v_lshlrev_b32 v4, 6, v4", "v_bfe_u32 v13, v1, 4, 1", "v_mul_u32_u24 v13, 1056, v13",
                    "v_add_u32 v4, v4, v13", f"v_add_u32 v4, {LB}, v4", "v_lshl_add_u32 v4, v15, 3, v4", "v_xor_b32 v5, 32, v4"]
        return ["v_bfe_u32 v13, v1, 4, 1", "v_lshrrev_b32 v14, 5, v1", "v_lshl_add_u32 v14, v13, 1, v14", "v_lshlrev_b32 v2, 10, v14",
                "v_bfe_u32 v14, v1, 2, 2", "v_lshl_add_u32 v2, v14, 7, v2", "v_lshrrev_b32 v14, 1, v14", "v_lshl_add_u32 v14, v13, 1, v14",
                "v_lshl_add_u32 v2, v14, 5, v2", "v_and_b32 v14, 3, v1", "v_lshl_add_u32 v2, v14, 3, v2", f"v_add_u32 v2, {LB}, v2",
                "v_xor_b32 v3, 32, v2", "v_xor_b32 v4, 64, v2", "v_xor_b32 v5, 96, v2"]
    for x in tr_addrs(0): a(x)
    chk_issue(a, 8); chk(a, "l0", 8, 1, sleep=1)

    order = [(s, t) for t in range(4) for s in range(4)]
    fa = []
    for hc in range(18):
        for t in range(2):
            for s_ in range(4): fa.append(("a", hc // 2, (hc % 9, s_, (hc % 2) * 2048), t + (2 if hc >= 9 else 0)))
    for g in range(9, NCH):
        for (s_, t) in order: fa.append(("a", g, (g % 9, s_, 0), t))
    fb = [("b", pos, f, 0) for pos in range(41) for f in range(10 if pos < 40 else 5)]
    frs = fa + fb
    N1 = NCH * 16
    state = {"slot": 0, "pass": 0}
    fill = []
    def setprio(v):
        if state.get("prio", 0) != v: a(f"s_setprio {v}"); state["prio"] = v
    def rd(n):
        kind, g, s, t = frs[n]
        b = FR + 4 * (n % NFR)
        if kind == "b":
            if g == 0 and s == 0:
                for grp in raddr2(): emit_group(grp)
            sl = (g // 2 + 3) % NRING2; hi = 1 if sl >= 3 else 0
            o = (sl - 3 * hi) * GRP2 + (g % 2) * STEP2 + (s // 5) * 16 * PITCH2 + (s % 5) * 64
            v = RA + hi
            a(f"ds_read_b64_tr_b16 v[{b}:{b+1}], v{v} offset:{o}", tag=f"f{n}")
            a(f"ds_read_b64_tr_b16 v[{b+2}:{b+3}], v{v} offset:{o + 8*PITCH2}", tag=f"f{n}")
            return
        p = g // 9; slot = g % R
        if p == 1 and state["pass"] == 0:
            for x in tr_addrs(1): a(x)
            state["slot"] = 0
        state["pass"] = p
        hi = 4 if slot >= 4 else 0
        if hi != state["slot"]:
            if g >= APRIO: setprio(2)
            for k in range(4):
                if hi: a(f"v_add_u32 v{2+k}, {4*SLOT}, v{2+k}")
                else: a(f"v_subrev_u32 v{2+k}, {4*SLOT}, v{2+k}")
            state["slot"] = hi
            if not fill: setprio(0)
        jj = 256 if (p == 0 and t >= 2) else 512
        o = (slot - hi) * SLOT + s[1] * 4096 + s[2]
        if 'x4' in EXP and 12 <= g < 36: return
        a(f"ds_read_b64_tr_b16 v[{b}:{b+1}], v{2+t} offset:{o}", tag=f"f{n}")
        a(f"ds_read_b64_tr_b16 v[{b+2}:{b+3}], v{2+t} offset:{o+jj}", tag=f"f{n}")
    def gu_epi(t, pi, p):
        B = ACC + 16*t
        L = []
        for i in range(8): L.append(f"v_max_f32 v{B+i}, 0, v{B+i}")
        for i in range(8): L.append(f"v_mul_f32 v{B+i}, v{B+i}, v{B+8+i}")
        for k in range(4): L.append(f"v_cvt_pk_bf16_f32 v{B+8+k}, v{B+2*k}, v{B+2*k+1}")
        L.append(f"s_add_u32 s52, s50, {pi*1024}")
        L.append((f"buffer_store_dwordx4 v[{B+8}:{B+11}], v11, s[24:27], s52 offen{CFG.SS}", f"hst{p}"))
        return L
    def q_epi(t):
        B = ACC + 16*t
        L = []
        for i in range(10): L.append(f"v_mul_f32 v{B+i}, {f32(QSCALE):#x}, v{B+i}")
        n = B + 10
        L += [f"v_mul_f32 v{n}, v{B+8}, v{B+8}", f"v_fmac_f32 v{n}, v{B+9}, v{B+9}", f"v_cndmask_b32 v{n}, 0, v{n}, s[60:61]"]
        for k in range(8): L.append(f"v_fmac_f32 v{n}, v{B+k}, v{B+k}")
        L += [f"v_mov_b32 v{n+1}, v{n}", f"v_permlane32_swap_b32 v{n}, v{n+1}", f"v_add_f32 v{n}, v{n}, v{n+1}",
              f"v_sqrt_f32 v{n}, v{n}", f"v_mul_f32 v{n}, {f32(-(1+1/64.)):#x}, v{n}",
              f"v_cndmask_b32 v{n}, 0, v{n}, s[60:61]", f"v_cndmask_b32 v{B+8}, 0, v{B+8}, s[60:61]", f"v_cndmask_b32 v{B+9}, 0, v{B+9}, s[60:61]", f"v_mov_b32 v{n+1}, 0"]
        for k in range(4): L.append(f"v_cvt_pk_bf16_f32 v{B+12+k}, v{B+2*k}, v{B+2*k+1}")
        L += [f"v_cvt_pk_bf16_f32 v{B}, v{B+8}, v{B+9}", f"v_cvt_pk_bf16_f32 v{B+1}, v{n}, v{n+1}"]
        L += [f"s_mul_i32 s52, s36, 3072", f"s_add_u32 s52, s52, {QH + t*1536}", f"v_add_u32 v{B+2}, s52, v11", f"v_lshl_add_u32 v{B+3}, v1, 3, s52",
              (f"ds_write_b128 v{B+2}, v[{B+12}:{B+15}]", "qst"), (f"ds_write_b64 v{B+3}, v[{B}:{B+1}] offset:1024", "qst")]
        return L
    def emit_fill(nmax, upto_tile=None):
        k = 0
        while fill and (k < nmax or (upto_tile is not None and any(f[0] == upto_tile for f in fill))):
            L = fill[0][2]
            x = L.pop(0)
            if isinstance(x, tuple): a(x[0], tag=x[1])
            else: a(x)
            if not L: fill.pop(0)
            k += 1
    def grouped(L, n=4):
        groups = []; cur = []
        for x in L:
            if len(cur) >= n and not x.startswith(("s_addc", "s_cselect", "v_cndmask")): groups.append(cur); cur = []
            cur.append(x)
        return groups + [cur]
    def hp(groups):
        return [["PRIO2"] + g_ + ["PRIO0"] for g_ in groups]
    def g2_setup():
        L = []
        A = L.append
        A("s_lshr_b32 s73, s38, 2"); A("s_and_b32 s74, s38, 3")
        A(f"s_add_u32 s28, s86, {PART_OFF}"); A("s_addc_u32 s29, s87, 0"); A(f"s_mov_b32 s30, {PART_BYTES}"); A("s_mov_b32 s31, 0x20000")
        A(f"s_mul_i32 s63, s36, {GRP2 // 4}"); A(f"s_add_u32 s63, s63, {LB}")
        A(f"s_mul_i32 s75, s73, {144*1152}"); A("s_mul_i32 s40, s74, 288"); A("s_add_u32 s75, s75, s40")
        for k in range(4):
            A(f"s_add_u32 s40, s74, {k}"); A("s_and_b32 s40, s40, 3"); A("s_lshl_b32 s41, s73, 2"); A("s_add_u32 s40, s40, s41")
            A(f"s_mul_i32 s40, s40, {18*1024}"); A(f"s_add_u32 s{76+k}, s40, s51")
        A("s_lshl_b32 s40, s73, 13"); A("s_add_u32 s40, s40, s51"); A(f"s_add_u32 s48, s40, {288*1024}")
        A("s_lshl_b32 s40, s73, 10"); A("s_add_u32 s40, s40, s51"); A(f"s_add_u32 s49, s40, {320*1024}")
        A("s_lshl_b32 s40, s37, 4"); A("s_add_u32 s41, s40, s38"); A("s_lshl_b32 s41, s41, 7"); A(f"s_add_u32 s44, s41, {FL_REL}")
        A("s_and_b32 s41, s38, 12"); A("s_add_u32 s41, s41, s40"); A("s_lshl_b32 s41, s41, 7"); A("s_lshl_b32 s46, s74, 2")
        A("s_add_u32 s41, s41, s46"); A(f"s_add_u32 s46, s41, {FL_REL}")
        A("s_add_u32 s41, s40, s74"); A("s_lshl_b32 s41, s41, 7"); A("s_lshl_b32 s62, s73, 2")
        A("s_add_u32 s41, s41, s62"); A(f"s_add_u32 s62, s41, {FL_REL + 96}")
        A("s_lshl_b32 s40, s37, 2"); A("s_add_u32 s40, s40, s74"); A("s_lshl_b32 s40, s40, 2"); A("s_add_u32 s40, s40, s36")
        A("s_lshl_b32 s40, s40, 2"); A("s_add_u32 s40, s40, s73"); A("s_mul_i32 s57, s40, 9216")
        return grouped(L)
    def touch():
        L = [["PRIO2", "v_min_u32 v13, 35, v1", "v_mul_u32_u24 v13, 1152, v13", "PRIO0",
              "s_and_b32 s40, s37, 7", "s_lshl_b32 s40, s40, 2", "s_add_u32 s40, s40, s36", f"s_mul_i32 s40, s40, {36*1152}",
              f"s_mul_i32 s41, s73, {1152*1152}", "s_add_u32 s40, s40, s41", "s_mul_i32 s41, s74, 288", "s_add_u32 s40, s40, s41", f"s_add_u32 s56, s40, {BIAS}"]]
        for l in range(3): L.append([(f"buffer_load_dword v14, v13, s[8:11], s56 offen offset:{128*l}", "touch")])
        L.append(["PRIO2", "v_min_u32 v13, 17, v1", "v_mul_u32_u24 v13, 1152, v13", "PRIO0",
                  "s_and_b32 s40, s37, 7", f"s_mul_i32 s40, s40, {18*1152}", "s_add_u32 s40, s40, s75", "s_min_u32 s41, s36, 2", "s_lshl_b32 s41, s41, 7",
                  "s_add_u32 s40, s40, s41", f"s_add_u32 s56, s40, {BIAS}", (f"buffer_load_dword v14, v13, s[20:23], s56 offen", "touch")])
        return L
    def voff2(mode):
        L = []
        for k in range(5):
            d = 6 + k
            G_ = [f"v_add_u32 v13, {k*1024}, v11", "v_mul_hi_u32 v14, v13, s41"]
            if mode == 0:
                G_ += [f"v_mul_u32_u24 v{d}, {PITCH2}, v14", f"v_sub_u32 v13, v13, v{d}", f"v_add_u32 v{d}, 224, v13", f"v_lshrrev_b32 v{d}, 9, v{d}", f"v_lshl_add_u32 v13, v{d}, 30, v13",
                       "v_mul_u32_u24 v14, 1152, v14", f"v_add3_u32 v{d}, v14, v13, s56"]
            else:
                G_ += ["v_lshrrev_b32 v14, 1, v14", f"v_mul_u32_u24 v14, {16*1152}, v14", f"v_add_u32 v{d}, v{d}, v14"]
            L.append([f"s_mov_b32 s56, {BIAS - (k % 4) * 1024}", f"s_mov_b32 s41, {(1 << 32) // PITCH2 + 1}", "PRIO2"] + G_ + ["PRIO0"])
        return L
    def rows2():
        L = []
        pre = ["s_and_b32 s40, s36, 1", f"s_mul_i32 s45, s40, {16*1152}", "s_mul_i32 s42, s74, 288", "s_add_u32 s45, s45, s42",
               f"s_mul_i32 s40, s40, {18*1152}", f"s_add_u32 s72, s75, {16*1152}", "s_add_u32 s75, s75, s40"]
        for k in range(4):
            L += [f"s_add_u32 s40, s74, {k}", "s_and_b32 s40, s40, 3", "s_lshl_b32 s41, s73, 2", "s_add_u32 s41, s41, s40", f"s_mul_i32 s41, s41, {288*1152}",
                  "s_add_u32 s41, s41, s45", "s_nop 0", "s_bitcmp1_b32 s40, 0", f"s_cselect_b32 s40, 0, {32*1152}", f"s_cselect_b32 s42, 0, {256*1152}",
                  f"s_sub_u32 s{64+k}, s41, s40", f"s_add_u32 s{68+k}, s41, s42"]
        L += ["s_mov_b32 s12, s82", "s_mov_b32 s13, s83", f"s_mov_b32 s14, {S*D*2}", "s_mov_b32 s15, 0x20000"]
        return [pre] + [L[12*k:12*k+12] for k in range(4)] + [L[48:]]
    def raddr2():
        return hp([["v_lshrrev_b32 v4, 5, v1", "v_bfe_u32 v5, v1, 2, 2", "v_lshl_add_u32 v4, v4, 2, v5", f"v_mul_u32_u24 v4, {PITCH2}, v4",
                    "v_and_b32 v5, 3, v1", "v_lshl_add_u32 v4, v5, 3, v4", "v_bfe_u32 v5, v1, 4, 1", "v_lshl_add_u32 v4, v5, 5, v4",
                    f"v_add_u32 v{RA}, {LB}, v4", f"v_add_u32 v{RA+1}, {LB + 3*GRP2}, v4"]])
    def step_soff(dst, pos):
        if pos < 36:
            k, tau = (pos // 7, pos % 7) if pos < 28 else ((pos - 28) // 2, 7 + (pos - 28) % 2)
            return f"s_mov_b32 s{dst}, s{68+k}" if tau == 0 else f"s_add_u32 s{dst}, s{64+k}, {32*1152*tau}"
        return f"s_add_u32 s{dst}, s75, {36*1152*(pos-36)}" if pos < 40 else f"s_mov_b32 s{dst}, s72"
    def quad(j):
        vb, srd_ = 6, (8 if j < 18 else 20)
        sl = (j + 3) % NRING2
        g0 = [step_soff(42, 2*j), step_soff(43, 2*j+1), "s_cmp_lt_u32 s36, 2", "s_cselect_b32 s43, s42, s43", f"s_add_u32 m0, s63, {sl*GRP2}"]
        ld = lambda k: (f"buffer_load_dwordx4 v{vb+k}, s[{srd_}:{srd_+3}], s43 offen offset:{(k%4)*1024} lds", f"q{j}")
        return [g0 + [ld(0), ld(1)], [ld(2), ld(3), f"s_add_u32 m0, s63, {sl*GRP2 + 4096}", ld(4)]]
    def bload(pos):
        if pos < 28: pre = f"s_add_u32 s42, s{76 + pos//7}, {(pos%7)*2048}"
        elif pos < 36: pre = f"s_add_u32 s42, s{76 + (pos-28)//2}, {(7 + (pos-28)%2)*2048}"
        elif pos < 40: pre = f"s_add_u32 s42, s48, {(pos-36)*2048}"
        else: pre = "s_mov_b32 s42, s49"
        b = BR + 8 * (pos % 8)
        L = [pre, (f"buffer_load_dwordx4 v[{b}:{b+3}], v11, s[24:27], s42 offen{CFG.SL}", f"b{pos}")]
        if pos == 40: return L
        return L + [(f"buffer_load_dwordx4 v[{b+4}:{b+7}], v11, s[24:27], s42 offen offset:1024{CFG.SL}", f"b{pos}")]
    side = []
    st2 = {"q": 0, "b": 0, "landed": -1}
    def push_quads(upto):
        while st2["q"] <= min(upto, NG2 - 1):
            if 'x6' not in EXP: side.extend(quad(st2["q"]))
            st2["q"] += 1
    def push_b(upto):
        while st2["b"] <= min(upto, 40): side.append(bload(st2["b"])); st2["b"] += 1
    def flush_side():
        while side: emit_group(side.pop(0))
    nissued = 0
    lim = {"a": 1}
    def issue_reads(upto):
        nonlocal nissued
        while nissued < min(upto, len(frs)):
            kind, g, s, t = frs[nissued]
            if kind == "b" and g > st2["landed"]: break
            if kind == "a" and g > lim["a"]: break
            rd(nissued); nissued += 1
    def wait_frag(n):
        if f"f{n}" in a.lgq: a.wait_lg([f"f{n}", f"f{n+1}"])
    def do_arrive(I):
        flush_side()
        if I + 2 < NCH: a.wait_vm(f"w{I+2}")
        if I == QI: assert not any(f[0] < 2 for f in fill); a.wait_lg("qst")
        if I == 38: a.wait_vm("hst3")
        if I == 48: assert not fill; a.wait_vm("hst4")
        if I >= 43:
            assert I - 43 < st2["q"], (I, st2)
            if 'x5' not in EXP: a.wait_vm(f"q{I-43}")
            st2["pend"][I] = min(2 * (I - 43) + 1, 40)
        if I == 57: a.wait_vm("clr")
        if I == 63: setprio(2); flag_check(a, "c", "cp", 28, 44, 96)
        if I == 45: setprio(2); flag_check(a, "h", "hp", 28, 44, 0)
        if I == HL - 1: setprio(2); flag_check(a, "hl", "hl", 28, 44, 32)
        if I == OL - 1: setprio(2); flag_check(a, "o", "op", 28, 44, 64)
        arrive(a, 0)
    st2["pend"] = {}
    def do_check(I):
        if I >= APRIO: setprio(2)
        chk(a, f"g{I}", 0, I - LAG)
        if not fill: setprio(0)
        if I == 1: chk_issue(a, 12); chk(a, "l1", 12, 1)
        if I == 3: chk_issue(a, 16); chk(a, "l2", 16, 1)
        lim["a"] = max(3 if I < 3 else 6, I + 1)
        if I - 1 in st2["pend"]: st2["landed"] = st2["pend"][I - 1]
        if I - 1 + R < NCH and not ('x1' in EXP and 12 <= I < 36): side.extend(wdma(I - 1 + R))
        if I == 20: side.extend(g2_setup())
        if I == 21: chk_issue(a, 4); setprio(2); chk(a, "tg", 4, 1, sleep=2)
        if I == 22: side.append([("ds_read_b32 v13, v0 offset:28", "tg"), ("ds_read_b32 v14, v0 offset:32", "tg")])
        if I == 23:
            a.wait_lg("tg"); setprio(2); a(f"v_readfirstlane_b32 s{TAG}, v13"); a(f"v_readfirstlane_b32 s{TAG+1}, v14")
            if not fill: setprio(0)
        if I == 39: side.extend(rows2() + voff2(0))
        if I == 40: push_quads(0); push_b(2)
        if I == 41: push_b(4)
        if I == 42: push_quads(1); push_b(6)
        if I == 44: push_quads(2)
        if I == 45: push_quads(4)
        if I == 60: side.extend(["DUMMY"] and voff2(2) if False else [])
        if I == 61: side.extend(voff2(2))
        if I >= 46: push_quads(I - 41)
        if I in (39, 49):
            setprio(2)
            a("s_cmp_lg_u32 s36, 0"); a(f"s_cbranch_scc1 L_g_nohp{I}")
            if I == 49: a("s_add_u32 s46, s46, 32")
            flag_send(a, 28, 46, 128); a.label(f"L_g_nohp{I}")
        if I == 44: side.append(flag_issue(28, 44, 0, "hp"))
        if I == 46: st2["bcap"] = 27; push_b(10)
        if I == 46: side.append([f"v_mov_b32 v{48+k}, -1" for k in range(4)])
        if 46 <= I <= 54: side.append([(f"buffer_store_dwordx4 v[48:51], v11, s[28:31], s57 offen{CFG.SS}", "clr"), "s_add_u32 s57, s57, 1024"])
        if I == 58:
            setprio(2)
            a("s_cmp_lg_u32 s36, 0"); a("s_cbranch_scc1 L_g_nocl"); flag_send(a, 28, 62, 512); a.label("L_g_nocl")
            side.extend(xres_groups())
        if I == 62: side.append(flag_issue(28, 44, 96, "cp"))
        if I == HL - 2: side.append(flag_issue(28, 44, 32, "hl"))
        if I == HL: st2["bcap"] = 35
        if I == OL - 2: side.append(flag_issue(28, 44, 64, "op"))
        if I == OL: st2["bcap"] = 40
    st2["bcap"] = 6
    issue_reads(PF)
    for n, (kind, g, s, t) in enumerate(frs):
        b = FR + 4 * (n % NFR)
        if kind == "a":
            p = g // 9; c, s, _ = s
            first = (c == 0 and s == 0)
            if first: emit_fill(0, upto_tile=t)
            wait_frag(n)
            setprio(2 if (g >= APRIO and (fill or (PH and n % PH == 0))) else 0)
            if "m16" in EXP and g >= 9:
                for hh in range(2):
                    q_ = ACC + 16*t + 8*(s&1) + 4*hh
                    a(f"v_mfma_f32_16x16x32_bf16 v[{q_}:{q_+3}], v[{b}:{b+3}], {X((4*c+s+18*hh) % 36)}, {'0' if (c == 0 and s < 2) else f'v[{q_}:{q_+3}]'}")
            else:
                a(f"v_mfma_f32_32x32x16_bf16 {acc(t)}, v[{b}:{b+3}], {X(4*c+s)}, {'0' if first else acc(t)}")
            if not fill: setprio(0)
            if n % 16 == 6 and g > 0 and not ('x2' in EXP and 12 <= g < 36): chk_issue(a, 0)
            if n % 16 == 9 and g > 0: do_check(g)
            issue_reads(n + 1 + PF)
            if side: emit_group(side.pop(0))
            for f in fill: f[1] -= 1
            if fill and fill[0][1] <= 0: emit_fill(FILLN if p else 5)
            if c == 8 and s == 3:
                L = q_epi(t) if (p == 0 and t < 2) else gu_epi(t, (t - 2) if p == 0 else 2 + 4*(p-1) + t, p)
                fill.append([t, 1, L])
            if n % 16 == 15:
                do_arrive(g)
        else:
            pos, f = g, s
            I = NCH + pos // 2; m = (pos % 2) * 10 + f
            bb = BR + 8 * (pos % 8)
            if f == 0:
                if pos == 0: stamps.stamp(a, 3)
                if pos == 34: stamps.stamp(a, 2)
                assert st2["b"] > pos, pos
                if any(isinstance(x[-1], tuple) and x[-1][1] == f"b{pos}" for x in side): flush_side()
                a.wait_vm(f"b{pos}")
            assert nissued > n, (pos, f, st2)
            wait_frag(n)
            setprio(2 if (fill or (PH and n % PH == 0)) else 0)
            t_ = f % 5; p_ = f // 5
            if "m16" in EXP:
                for hh in range(2 if f < 9 else 0):
                    q_ = ACC2 + 8*f + 4*hh
                    a(f"v_mfma_f32_16x16x32_bf16 v[{q_}:{q_+3}], v[{b}:{b+3}], v[{bb+4*hh}:{bb+4*hh+3}], {'0' if pos == 0 else f'v[{q_}:{q_+3}]'}")
            else:
                a(f"v_mfma_f32_32x32x16_bf16 {acc32(t_)}, v[{b}:{b+3}], v[{bb+4*p_}:{bb+4*p_+3}], {'0' if (pos == 0 and p_ == 0) else acc32(t_)}")
            if not fill: setprio(0)
            if m == 10: chk_issue(a, 0)
            if m == 13: do_check(I)
            issue_reads(n + 1 + PF)
            if fill: emit_fill(3)
            elif side: emit_group(side.pop(0))
            if f == 9:
                if pos % 2 == 1 and pos < 39: do_arrive(I)
                push_b(min(pos + 8, st2["bcap"]))
    flush_side()
    finish(a)
    return nbar

OWN = LB + 0
def finish(a):
    stamps.stamp(a, 4)
    a("s_lshl_b32 s40, s37, 2"); a("s_add_u32 s40, s40, s74"); a(f"s_mul_i32 s70, s40, {16*9216}")
    a("s_cmp_eq_u32 s36, s73"); a("s_cbranch_scc1 L_g_own")
    a(f"s_lshl_b32 s41, s73, 2"); a("s_add_u32 s41, s41, s36"); a("s_mul_i32 s41, s41, 9216"); a("s_add_u32 s41, s41, s70")
    for r in range(9):
        T = 48 + 4 * (r % 4)
        for k in range(4): a(f"v_cvt_pk_bf16_f32 v{T+k}, v{ACC2+8*r+2*k}, v{ACC2+8*r+2*k+1}")
        if r % 4 == 0 and r: a(f"s_add_u32 s41, s41, 4096")
        a(f"buffer_store_dwordx4 v[{T}:{T+3}], v11, s[28:31], s41 offen offset:{(r%4)*1024}{CFG.SS}")
    a("s_branch L_g_st")
    a.label("L_g_own")
    a("s_nop 11")
    for u in range(18): a(f"ds_write_b128 v11, {acc2(u)} offset:{OWN + u*1024}")
    a.label("L_g_st")
    a.vmq = []; a.lgq = []
    XR = XRES; OW = 76; G = 100
    a("s_mul_i32 s41, s73, 9216"); a("s_add_u32 s41, s41, s70"); a("s_lshl_b32 s42, s36, 10"); a("s_add_u32 s41, s41, s42")
    sj = [71, 69, 43]
    for j in range(3):
        a(f"s_add_u32 s40, s73, {j+1}"); a("s_and_b32 s40, s40, 3"); a(f"s_mul_i32 s40, s40, {4*9216}"); a(f"s_add_u32 s{sj[j]}, s40, s41")
    a("s_movk_i32 s62, 0x1000"); a("s_cmp_eq_u32 s36, 0"); a("s_cselect_b32 s62, 8192, s62"); a("v_add_u32 v7, 4096, v11"); a("v_add_u32 v8, s62, v11")
    vk = [11, 7, 8]
    def loads():
        for k in range(3):
            for j in range(3):
                r = G + 12*k + 4*j
                a(f"buffer_load_dwordx4 v[{r}:{r+3}], v{vk[k]}, s[28:31], s{sj[j]} offen{CFG.SL}")
    loads()
    a("s_waitcnt lgkmcnt(0)")
    a("s_barrier")
    a("s_lshl_b32 s40, s36, 11"); a("v_add_u32 v6, s40, v11")
    for k in range(3):
        for e in range(2): a(f"ds_read_b128 v[{OW+8*k+4*e}:{OW+8*k+4*e+3}], v6 offset:{OWN + k*8192+e*1024}")
    a.label("L_g_gchk")
    a("s_waitcnt vmcnt(0)")
    a(f"v_max3_u32 v2, v{G}, v{G+1}, v{G+2}")
    for q in range(3, 35, 2): a(f"v_max3_u32 v2, v2, v{G+q}, v{G+q+1}")
    a(f"v_max_u32 v2, v2, v{G+35}")
    a("v_cmp_eq_u32 vcc, -1, v2")
    a("s_cbranch_vccz L_g_gok")
    a("s_add_u32 s3, s3, 64"); a("s_cmp_ge_u32 s3, 0x400000"); a("s_cbranch_scc1 L_g_gok")
    loads()
    a("s_branch L_g_gchk")
    a.label("L_g_gok")
    stamps.stamp(a, 5)
    a("s_waitcnt lgkmcnt(0)")
    def fin(k):
        o = OW + 8*k; T = 140
        srcs = [G + 12*k + 4*j for j in range(3)] + [XR + 4*k]
        for r in srcs:
            for q in range(4):
                a(f"v_lshlrev_b32 v{T+2*q}, 16, v{r+q}"); a(f"v_and_b32 v{T+2*q+1}, s54, v{r+q}")
            for q in range(4): a(f"v_pk_add_f32 v[{o+2*q}:{o+2*q+1}], v[{o+2*q}:{o+2*q+1}], v[{T+2*q}:{T+2*q+1}]")
        for q in range(4): a(f"v_cvt_pk_bf16_f32 v{T+8+4*k+q}, v{o+2*q}, v{o+2*q+1}")
        for e in range(2): a(f"buffer_store_dwordx2 v[{T+8+4*k+2*e}:{T+9+4*k+2*e}], v5, s[12:15], s{XS[k]} offen offset:{16*e}{CFG.SO}")
    fin(0); fin(1)
    a("s_cmp_lg_u32 s36, 0"); a("s_cbranch_scc1 L_g_no3")
    fin(2)
    a.label("L_g_no3")
    stamps.flush(a, 0, 55); stamps.tb_flush(a, 12, 55)
    a("s_endpgm")

XS = [16, 17, 18]
def xres_groups():
    L = [["s_lshl_b32 s40, s37, 2", "s_add_u32 s40, s40, s73", f"s_mul_i32 s47, s40, {32*1152}", "s_mul_i32 s41, s74, 288", "s_add_u32 s47, s47, s41",
          "s_lshl_b32 s40, s36, 5", "s_add_u32 s16, s47, s40", "s_add_u32 s17, s16, 128", "s_add_u32 s18, s47, 256", f"s_add_u32 s19, s18, {16*1152}"],
         ["PRIO2", "v_and_b32 v4, 31, v1", "v_mul_u32_u24 v4, 1152, v4", "v_lshrrev_b32 v5, 5, v1", "v_lshl_add_u32 v5, v5, 3, v4", "PRIO0"]]
    for k in range(3):
        for e in range(2): L.append([(f"buffer_load_dwordx2 v[{XRES+4*k+2*e}:{XRES+4*k+2*e+1}], v5, s[4:7], s{XS[k]} offen offset:{16*e}", "xres")])
    return L
XRES = 64
```

```python
from dsl import *
from layout import *
import mk, at2, stamps, sys
NAME = "parallel_sum__grouped_kv_mqa__glu_gated_reglu__prompt_kernel"
def build(ts=False, exp=()):
    stamps.ENABLE = ts
    mk.EXP = set(exp)
    a = Asm()
    for l in kernel_header(NAME): a.raw(l)
    a.label('KSTART')
    mk.common(a)
    mk.gen_g(a)
    at2.gen_at(a)
    a.label("L_end"); a("s_endpgm")
    hdr = open("parallel_sum__grouped_kv_mqa__glu_gated_reglu__prompt.s.ref").read().split("; Override launch")[0]
    return (hdr + "; @launch grid=(256,1,1) block=(512,1,1) lds=163840\n" + '.amdgcn_target "amdgcn-amd-amdhsa--gfx950"\n' + a.text() + kernel_desc(NAME, 256)), None
import cfg
if __name__ == "__main__":
    D = "dev/"
    t, info = build(ts=True); open(D + "mk_ts.s", "w").write(t)
    t, info = build(); open(D + "mk.s", "w").write(t)
    stamps.TB = True
    t, info = build(); open(D + "mk_tb.s", "w").write(t)
    stamps.TBC = "s_memtime"
    t, info = build(); open(D + "mk_tc.s", "w").write(t)
    stamps.TB = False
    t, info = build(ts=True, exp=["kvt"]); open(D + f"mk_ts_kvt.s", "w").write(t)
```

```python
from dsl import *
from layout import *
import mk, at2, stamps, sys
NAME = "parallel_sum__grouped_kv_mqa__glu_gated_reglu__prompt_kernel"
def build(ts=False, exp=()):
    stamps.ENABLE = ts
    mk.EXP = set(exp)
    a = Asm()
    for l in kernel_header(NAME): a.raw(l)
    a.label('KSTART')
    mk.common(a)
    mk.gen_g(a)
    at2.gen_at(a)
    a.label("L_end"); a("s_endpgm")
    hdr = open("parallel_sum__grouped_kv_mqa__glu_gated_reglu__prompt.s.ref").read().split("; Override launch")[0]
    doc = """; ---------------------------------------------------------------------------------------------------------
; ---------------------------------------------------------------------------------------------------------
"""
    return (hdr + "; @launch grid=(256,1,1) block=(512,1,1) lds=163840\n" + doc + '.amdgcn_target "amdgcn-amd-amdhsa--gfx950"\n' + a.text() + kernel_desc(NAME, 256)), None
import cfg
if __name__ == "__main__":
    D = "dev/"
    t, info = build(ts=True); open(D + "mk_ts.s", "w").write(t)
    t, info = build(); open(D + "mk.s", "w").write(t)
    stamps.TB = True
    t, info = build(); open(D + "mk_tb.s", "w").write(t)
    stamps.TBC = "s_memtime"
    t, info = build(); open(D + "mk_tc.s", "w").write(t)
    stamps.TB = False
    t, info = build(ts=True, exp=["kvt"]); open(D + f"mk_ts_kvt.s", "w").write(t)
```

```python
from dsl import *
from layout import *
import stamps, struct
def f32(x): return struct.unpack("<I", struct.pack("<f", x))[0]

import mk
ATB = mk.KVIMG
GRP = 4 * KV_PITCH
Q1 = [16, 24]; Q2 = [20, 28]
S_ = [32, 48]; P_ = [64, 72]; O_ = [80, 96]
K1 = [112, 120]; K2 = [116, 124]
VA = [128, 136]; VB = [132, 140]
aK1, aK2, aV = 2, 3, 4
LTHR = f32(2.0 ** -60)


import cfg as CFG
def srd(a, d, p, nbytes, off=0):
    if off: a(f"s_add_u32 s{d}, s{p}, {off}"); a(f"s_addc_u32 s{d+1}, s{p+1}, 0")
    else: a(f"s_mov_b32 s{d}, s{p}"); a(f"s_mov_b32 s{d+1}, s{p+1}")
    a(f"s_mov_b32 s{d+2}, {nbytes}"); a(f"s_mov_b32 s{d+3}, 0x20000")

PSLEEP = 32; ORD = 0; ALIGN = 0; NPEEL = 1; APRE = 5; TOUCH0 = False
PACE0 = 6; PACE = 3
def gen_at(a):
    a.label("L_at")
    a.vmq = []; a.lgq = []
    mk.ws_srds(a)
    a("v_mov_b32 v2, 0"); a("v_mov_b32 v3, 0"); a("ds_write_b64 v2, v[2:3]"); a("ds_write_b64 v2, v[2:3] offset:8"); a("ds_write_b64 v2, v[2:3] offset:16"); a("ds_write_b64 v2, v[2:3] offset:24")
    a("v_mov_b32 v28, 136"); a("v_mov_b32 v26, 0"); a("v_mov_b32 v27, 0")
    a("s_or_b32 s40, s2, s36"); a("s_cmp_lg_u32 s40, 0"); a("s_cbranch_scc1 L_at_notag")
    a("s_memrealtime s[60:61]"); a("s_waitcnt lgkmcnt(0)")
    a("s_or_b32 s60, s60, 1"); a("s_or_b32 s61, s61, 0x80000000"); a("v_mov_b32 v24, s60"); a("v_mov_b32 v25, s61")
    a("s_mov_b64 exec, 1"); a(f"buffer_store_dwordx2 v[24:25], v28, s[32:35], 0 offen{CFG.SS}"); a("s_mov_b64 exec, -1")
    a.label("L_at_notag")
    a.vmq = []
    if "nocp" not in mk.EXP:
        a("s_getpc_b64 s[4:5]")
        a.label("L_pc")
        a("s_sub_u32 s4, s4, L_pc-KSTART"); a("s_subb_u32 s5, s5, 0"); a("s_mov_b32 s6, L_end-KSTART"); a("s_mov_b32 s7, 0x20000")
        a("s_lshr_b32 s40, s2, 3"); a("s_lshl_b32 s40, s40, 2"); a("s_add_u32 s40, s40, s36")
        a("s_mul_hi_u32 s41, s40, 0x1c71c71d"); a("s_mul_i32 s41, s41, 9"); a("s_sub_u32 s40, s40, s41"); a("s_lshl_b32 s40, s40, 13")
        a("v_lshlrev_b32 v2, 7, v1")
        a("buffer_load_dword v20, v2, s[4:7], s40 offen")
    mk.w_setup(a, True)
    a("s_cmp_ge_u32 s38, 2"); a("s_cbranch_scc1 L_at_nokvdma")
    a("s_bitcmp1_b32 s38, 0"); a("s_cselect_b32 s20, s70, s68"); a("s_cselect_b32 s21, s71, s69")
    a(f"s_mov_b32 s22, {D*DH*2}"); a("s_mov_b32 s23, 0x20000")
    a("v_lshrrev_b32 v3, 2, v1"); a("v_mul_u32_u24 v3, 36, v3"); a("v_and_b32 v4, 3, v1"); a("v_lshl_add_u32 v14, v4, 4, v3")
    a("v_add_u32 v4, 1, v4"); a("v_lshrrev_b32 v4, 2, v4"); a("v_lshl_add_u32 v14, v4, 30, v14")
    a(f"s_mul_i32 s40, s36, {9*1024}"); a(f"s_add_u32 s40, s40, {mk.KVIMG}")
    a("s_mul_i32 s41, s36, 9"); a("s_lshl_b32 s42, s62, 2"); a("s_add_u32 s41, s41, s42")
    for t in range(9):
        a(f"s_add_u32 s42, s41, {t}"); a("s_cmp_ge_u32 s42, 36"); a("s_cselect_b32 s43, 36, 0"); a("s_sub_u32 s42, s42, s43"); a("s_mul_i32 s42, s42, 576")
        a(f"s_add_u32 m0, s40, {t*1024}")
        a("buffer_load_dwordx4 v14, s[20:23], s42 offen lds")
    a.label("L_at_nokvdma")
    a("s_waitcnt vmcnt(0)")
    a.vmq = []
    a("s_mov_b32 s74, s72"); a("s_mov_b32 s75, s73")
    mk.w_table(a); mk.w_scalars(a); mk.w_voffs(a)
    a("s_waitcnt lgkmcnt(0)")
    a("s_barrier")
    def sig(tags, off):
        a.wait_vm(tags)
        a("s_mov_b64 exec, 1"); a(f"ds_add_u32 v0, v0 offset:{off}"); a("s_mov_b64 exec, -1")
    for g in range(mk.R):
        for grp in mk.wdma(g): mk.emit_group_to(a, grp)
        if g == 3: sig(["w0", "w1"], 8)
        if g == 5: sig(["w2", "w3"], 12)
    a(f"buffer_load_dwordx2 v[24:25], v28, s[32:35], 0 offen{CFG.SP}", tag="tag")
    srd(a, 12, 86, PART_BYTES, PART_OFF)
    sig(["w4", "w5", "w6"], 16)
    a.wait_vm("tag")
    a.label("L_at_tagchk")
    a("v_readfirstlane_b32 s60, v24"); a("v_readfirstlane_b32 s61, v25")
    a("s_min_u32 s40, s60, s61"); a("s_cmp_lg_u32 s40, 0"); a("s_cbranch_scc1 L_at_tagok")
    a("s_add_u32 s3, s3, 16"); a("s_cmp_ge_u32 s3, 0x400000"); a("s_cbranch_scc1 L_at_tagok")
    a("s_sleep 8")
    a(f"buffer_load_dwordx2 v[24:25], v28, s[32:35], 0 offen{CFG.SP}"); a("s_waitcnt vmcnt(0)")
    a("s_branch L_at_tagchk")
    a.label("L_at_tagok")
    a("ds_write_b32 v0, v24 offset:28"); a("ds_write_b32 v0, v25 offset:32")
    a.vmq = []
    a("s_cmp_ge_u32 s38, 2"); a("s_cbranch_scc1 L_at_nopubkv")
    a(f"s_lshl_b32 s43, s36, 11"); a(f"s_add_u32 s43, s43, {mk.KVH}"); a("v_add_u32 v3, s43, v11")
    a(f"s_mul_i32 s43, s39, {KV_PITCH}"); a(f"s_add_u32 s43, s43, {KV_OFF}")
    a("v_and_b32 v6, 31, v1"); a("v_lshrrev_b32 v4, 5, v1"); a("v_mul_u32_u24 v4, 320, v4"); a("v_lshl_add_u32 v4, v6, 4, v4"); a("v_lshlrev_b32 v7, 2, v1")
    mk.chk_issue(a, 20); mk.chk(a, "kvh", 20, 1, sleep=1)
    if "kvt" in mk.EXP: stamps.stamp(a, 4)
    a("ds_read_b128 v[16:19], v3"); a("ds_read_b128 v[20:23], v3 offset:1024"); a("s_waitcnt lgkmcnt(0)")
    a("s_cmp_eq_u32 s38, 1"); a("s_cbranch_scc1 L_at_pubv")
    a(f"buffer_store_dwordx4 v[16:19], v11, s[28:31], s43 offen{CFG.SS}")
    a(f"buffer_store_dword v20, v7, s[28:31], s43 offen offset:1024{CFG.SS}")
    for off in (0x041F, 0x081F, 0x101F, 0x201F, 0x401F):
        a(f"ds_swizzle_b32 v22, v21 offset:{off:#x}"); a("s_waitcnt lgkmcnt(0)"); a("v_max_f32 v21, v21, v22")
    a("v_mov_b32 v26, v21")
    a("s_branch L_at_pubf")
    a.label("L_at_pubv")
    a("v_cmp_gt_u32 vcc, 20, v6")
    a("s_and_saveexec_b64 s[56:57], vcc")
    a(f"buffer_store_dwordx4 v[16:19], v4, s[28:31], s43 offen offset:1280{CFG.SS}")
    a(f"buffer_store_dwordx4 v[20:23], v4, s[28:31], s43 offen offset:{1280+640}{CFG.SS}")
    a("s_mov_b64 exec, s[56:57]")
    a.label("L_at_pubf")
    a("s_lshl_b32 s40, s38, 6"); a("s_add_u32 s40, s40, s39"); a("s_lshl_b32 s40, s40, 4"); a(f"s_add_u32 s40, s40, {KVF_OFF}"); a("v_mov_b32 v7, 0")
    a("s_waitcnt vmcnt(0)")
    if "kvt" in mk.EXP: stamps.stamp(a, 5)
    a("s_mov_b64 exec, 1"); a(f"buffer_store_dwordx4 v[24:27], v7, s[28:31], s40 offen{CFG.SS}"); a("s_mov_b64 exec, -1")
    a.label("L_at_nopubkv")
    a.vmq = []; a.lgq = []
    a("v_mov_b32 v5, v11")
    a(f"v_add_u32 v{aK1}, {ATB}, v5")
    a("v_and_b32 v6, 31, v1"); a(f"v_lshlrev_b32 v{aK2}, 2, v6"); a(f"v_add_u32 v{aK2}, {ATB+1024}, v{aK2}")
    a("v_min_u32 v7, 19, v6"); a("v_cmp_eq_u32 vcc, 22, v6"); a("v_cndmask_b32 v7, v7, 18, vcc")
    a("v_lshrrev_b32 v8, 5, v1"); a("v_mul_u32_u24 v8, 320, v8"); a(f"v_lshl_add_u32 v9, v7, 4, v8")
    a(f"v_add_u32 v{aV}, {ATB+1280}, v9")
    a(f"s_mul_i32 s44, s36, {KV_PITCH}"); a(f"s_add_u32 s45, s44, {KV_OFF}"); a(f"s_add_u32 s44, s44, {ATB}")
    for c in (0, 1):
        for k in range(16): a(f"v_mov_b32 v{O_[c]+k}, 0")
        a(f"v_mov_b32 v{Q2[c]+2}, 0"); a(f"v_mov_b32 v{Q2[c]+3}, 0"); a(f"v_mov_b32 v{K2[c]+2}, 0"); a(f"v_mov_b32 v{K2[c]+3}, 0")
    a("s_mul_i32 s43, s36, 3072"); a(f"s_add_u32 s43, s43, {mk.QH}"); a("v_lshl_add_u32 v10, v1, 3, s43")
    a(f"s_add_u32 s10, s45, {16*GRP}"); a("s_bfe_u32 s40, s2, 0x40003"); a(f"s_mul_i32 s40, s40, {GRP}"); a("s_add_u32 s48, s45, s40")
    a("s_cmp_lg_u32 s36, 0"); a("s_cbranch_scc1 L_at_go")
    mk.chk_issue(a, 0); mk.chk(a, "apre", 0, APRE, sleep=2)
    a(f"s_mov_b32 s40, {KVF_OFF}")
    a.label("L_at_poll")
    a(f"buffer_load_dwordx4 v[32:35], v11, s[28:31], s40 offen{CFG.SP}"); a(f"buffer_load_dwordx2 v[36:37], v11, s[28:31], s40 offen offset:1024{CFG.SP}")
    a("s_waitcnt vmcnt(0)")
    a("v_cmp_ne_u64 vcc, s[60:61], v[32:33]"); a("v_cmp_ne_u64 s[8:9], s[60:61], v[36:37]"); a("s_or_b64 vcc, vcc, s[8:9]")
    a("s_cbranch_scc0 L_at_got")
    a("s_add_u32 s3, s3, 16"); a("s_cmp_ge_u32 s3, 0x400000"); a("s_cbranch_scc1 L_at_got")
    a(f"s_sleep {PSLEEP}"); a("s_branch L_at_poll")
    a.label("L_at_got")
    a("v_mov_b32 v12, v34")
    for off in (0x041F, 0x081F, 0x101F, 0x201F, 0x401F):
        a(f"ds_swizzle_b32 v13, v12 offset:{off:#x}"); a("s_waitcnt lgkmcnt(0)"); a("v_max_f32 v12, v12, v13")
    a("v_mov_b32 v13, v12"); a("v_permlane32_swap_b32 v12, v13"); a("v_max_f32 v12, v12, v13")
    a("v_sqrt_f32 v12, v12"); a(f"v_mul_f32 v12, {f32(1+1/64.):#x}, v12"); a("v_mov_b32 v13, 0")
    a("v_cvt_pk_bf16_f32 v12, v12, v13"); a("ds_write_b32 v0, v12 offset:36")
    a.label("L_at_go")
    a.vmq = []; a.lgq = []
    mk.arrive(a, 4, 14)
    mk.chk_issue(a, 4); mk.chk(a, "a1", 4, 1, sleep=1)
    stamps.stamp(a, 1)
    def nextgrp():
        a(f"s_add_u32 s48, s48, {GRP}"); a("s_cmp_eq_u32 s48, s10"); a("s_cselect_b32 s48, s45, s48")
    def kvdma(m, slot):
        a(f"s_add_u32 m0, s44, {slot*GRP}")
        for j in range(3): a(f"buffer_load_dwordx4 v5, s[28:31], s48 offen offset:{j*1024}{CFG.SL} lds", tag=f"kv{m}")
        nextgrp()
    kvdma(0, 0); kvdma(1, 1)
    a(f"ds_read_b32 v{K2[0]+1}, v0 offset:36"); a(f"ds_read_b32 v{K2[1]+1}, v0 offset:36")
    a("v_add_u32 v12, s43, v5")
    mk.chk_issue(a, 0); mk.chk(a, "aq", 0, mk.QI + 1, sleep=1)
    for c in (0, 1):
        a(f"ds_read_b128 v[{Q1[c]}:{Q1[c]+3}], v12 offset:{c*1536}"); a(f"ds_read_b64 v[{Q2[c]}:{Q2[c]+1}], v10 offset:{c*1536+1024}")
    a.wait_vm("kv0"); a.wait_lg0()
    mk.arrive(a, 4, 14)
    mk.chk_issue(a, 4); mk.chk(a, "a2", 4, 2)
    stamps.stamp(a, 2)
    a("s_setprio 1")

    def rdK(i, b):
        a(f"ds_read_b128 v[{K1[b]}:{K1[b]+3}], v{aK1} offset:{i*KV_PITCH}", tag=f"k{b}")
        a(f"ds_read_b32 v{K2[b]}, v{aK2} offset:{i*KV_PITCH}", tag=f"k{b}")
    def rdV(i, b):
        a(f"ds_read_b128 v[{VA[b]}:{VA[b]+3}], v{aV} offset:{i*KV_PITCH}", tag=f"v{b}")
        a(f"ds_read_b128 v[{VB[b]}:{VB[b]+3}], v{aV} offset:{i*KV_PITCH+640}", tag=f"v{b}")
    def qk(c, b):
        S = S_[c]
        return [f"v_mfma_f32_32x32x16_bf16 v[{S}:{S+15}], v[{K1[b]}:{K1[b]+3}], v[{Q1[c]}:{Q1[c]+3}], 0",
                f"v_mfma_f32_32x32x16_bf16 v[{S}:{S+15}], v[{K2[b]}:{K2[b]+3}], v[{Q2[c]}:{Q2[c]+3}], v[{S}:{S+15}]"]
    def pv(c, b):
        O = O_[c]; P = P_[c]
        return [f"v_mfma_f32_32x32x16_bf16 v[{O}:{O+15}], v[{VA[b]}:{VA[b]+3}], v[{P}:{P+3}], v[{O}:{O+15}]",
                f"v_mfma_f32_32x32x16_bf16 v[{O}:{O+15}], v[{VB[b]}:{VB[b]+3}], v[{P+4}:{P+7}], v[{O}:{O+15}]"]
    def cvt(d, s0):
        if 'perm' in mk.EXP: return f"v_perm_b32 v{d}, v{s0+1}, v{s0}, s60"
        return f"v_cvt_pk_bf16_f32 v{d}, v{s0}, v{s0+1}"
    def half(i, c, do_qk, do_pv, pre=None, mid=None):
        S = S_[c]; P = P_[c]; cn = 1 - c
        bq = (i + c) & 1
        bv = (i + 1) & 1 if c == 0 else i & 1
        mq = qk(cn, bq) if do_qk else [None, None]
        mp = pv(cn, bv) if do_pv else [None, None]
        slots = {0: [[mq[0]], [mq[1]], [mp[0]], [mp[1]]], 1: [[mq[0], mq[1]], [], [mp[0], mp[1]], []], 2: [[mq[0]], [mp[0]], [mq[1]], [mp[1]]],
                 3: [[mp[0]], [mq[0]], [mp[1]], [mq[1]]]}[ORD]
        for s in range(4):
            for m_ in slots[s]:
                if m_ is None: continue
                if "noqk2" in mk.EXP and m_ is mq[1]: continue
                if m_ is mq[0]: a.wait_lg(f"k{bq}")
                if m_ is mp[0]: a.wait_lg(f"v{bv}")
                a(m_)
            if s == 0 and pre: pre()
            if s == 2 and mid:
                if do_pv: a.wait_lg(f"v{bv}")
                if do_qk: a.wait_lg(f"k{bq}")
                mid()
            for e in range(4):
                if "noexp" in mk.EXP: a(f"v_mov_b32 v{S+4*s+e}, v{S+4*s+e}")
                elif "noexp2" in mk.EXP: a("s_nop 1")
                else: a(f"v_exp_f32 v{S+4*s+e}, v{S+4*s+e}")
            if s > 0:
                for k in range(2): a(cvt(P+2*(s-1)+k, S+4*(s-1)+2*k))
        for k in range(2): a(cvt(P+6+k, S+12+2*k))
    rdK(0, 0)
    a.wait_lg("k0")
    for m in qk(0, 0): a(m)
    a("s_nop 7"); a("s_nop 3")
    uid = [0]
    def body(first, last, dma, m=None):
        uid[0] += 1; u = uid[0]
        for i in range(4):
            def pre0():
                if i == 3:
                    if not last:
                        a(f"v_add_u32 v{aK1}, s46, v{aK1}"); a(f"v_add_u32 v{aK2}, s46, v{aK2}")
                        rdK(0, 0)
                else:
                    rdK(i + 1, (i + 1) & 1)
                rdV(i, i & 1)
                if i == 3 and not last: a(f"v_add_u32 v{aV}, s46, v{aV}")
                if i == 0 and not first and not last: mk.chk_issue(a, 4)
                if i == 2 and not last: mk.chk_issue(a, 4)
                if i == 3 and not last and PACE: mk.chk_issue(a, 0, v=13)
            for c in (0, 1):
                hs = 2 * i + c
                def mid():
                    if hs == 1 and not first and not last: mk.chk(a, f"w{u}", 4, "s52")
                    if hs == 1 and dma:
                        a("s_mov_b32 m0, s49"); a("s_nop 0")
                        for j in range(3):
                            a(f"buffer_load_dwordx4 v5, s[28:31], s48 offen offset:{j*1024}{CFG.SL} lds", tag=f"kv{m+2}" if m is not None else "kvn")
                    if hs == 3 and not last:
                        if m is None: a(f"s_waitcnt vmcnt({3 if dma else 0})")
                        else: a.wait_vm([f"kv{m+1}"] + (["pst", "clr"] if m == NPEEL - 1 else []))
                        mk.arrive(a, 4, 14); a("s_add_u32 s52, s52, s53")
                        if m is None and dma:
                            a("s_cmp_lg_u32 s50, s62"); a("s_cbranch_scc1 L_at_notouch")
                            a("buffer_load_dword v146, v144, s[4:7], s8 offen"); a("buffer_load_dword v147, v145, s[20:23], s9 offen")
                            a.label("L_at_notouch")
                    if hs == 5 and not last: mk.chk(a, f"r{u}", 4, "s52")
                    if hs == 7 and not last:
                        mk.arrive(a, 4, 14); a("s_add_u32 s52, s52, s53")
                if c == 0: half(i, 0, True, not (first and i == 0), pre=pre0, mid=mid)
                else: half(i, 1, not (last and i == 3), True, mid=mid)
    def advance():
        a("s_add_u32 s47, s47, 1"); a("s_cmp_eq_u32 s47, 3"); a("s_cselect_b32 s47, 0, s47")
        a("s_cmp_eq_u32 s47, 2"); a(f"s_cselect_b32 s46, {(-2*GRP) & 0xffffffff:#x}, s63")
        nextgrp()
        a(f"s_add_u32 s49, s49, {GRP}"); a(f"s_add_u32 s40, s44, {3*GRP}"); a("s_cmp_eq_u32 s49, s40"); a("s_cselect_b32 s49, s44, s49")
        if PACE:
            uid[0] += 1
            a("s_add_u32 s54, s54, s57")
            mk.chk(a, f"p{uid[0]}", 0, "s54", v=13, sleep=2)
    a("s_mov_b32 s47, 0"); a(f"s_mov_b32 s46, {GRP}"); a(f"s_mov_b32 s63, {GRP}"); a(f"s_add_u32 s49, s44, {2*GRP}")
    a("s_mov_b32 s53, 16"); a("s_mov_b32 s52, 32")
    a(f"s_mov_b32 s54, {int(PACE0*16)}"); a(f"s_mov_b32 s57, {int(PACE*16)}")
    a("s_bfe_u32 s62, s2, 0x30003"); a("s_add_u32 s62, s62, 3")
    srd(a, 4, 80, F * D * 2); srd(a, 20, 74, D * D * 2)
    a("s_lshl_b32 s40, s2, 2"); a("s_add_u32 s40, s40, s36"); a(f"s_mul_i32 s8, s40, {41*128}"); a(f"s_mul_i32 s9, s40, {6*128}")
    a("v_min_u32 v144, 40, v1"); a("v_lshlrev_b32 v144, 7, v144"); a("v_min_u32 v145, 5, v1"); a("v_lshlrev_b32 v145, 7, v145")
    for m in range(NPEEL):
        body(m == 0, False, True, m)
        advance()
    a(f"s_mov_b32 s50, {14 - NPEEL}")
    if "noat" in mk.EXP: a("s_branch L_at_fin")
    lg_in = list(a.lgq)
    i0 = len(a.items)
    if ALIGN is not None:
        a.raw(".p2align 6")
        for _ in range(ALIGN): a("s_nop 0")
    a.label("L_at_loop")
    body(False, False, True)
    advance()
    a("s_sub_u32 s50, s50, 1"); a("s_cmp_lg_u32 s50, 0"); a("s_cbranch_scc1 L_at_loop")
    assert a.lgq == lg_in, (a.lgq, lg_in)
    loop_ins = [x for x in a.items[i0:] if not isinstance(x, str)]
    assert check_backedge(loop_ins, loop_ins) == 0
    body(False, False, False)
    advance()
    body(False, True, False)
    for m in pv(1, 1): a(m)
    a("s_setprio 0")
    stamps.stamp(a, 3)
    a("s_nop 15")
    a(f"v_min_f32 v12, v{O_[0]+10}, v{O_[1]+10}")
    a(f"s_mov_b32 s40, {LTHR:#x}")
    a("v_cmp_nle_f32 vcc, s40, v12")
    a("s_nop 4")
    a("s_cbranch_vccz L_at_fin")
    if mk.EXP & {"noexp", "noexp2", "noqk2"}: a("s_branch L_at_fin")
    fallback(a)
    a.label("L_at_fin")
    a(f"s_mul_i32 s43, s39, {NSTEP}"); a("s_lshl_b32 s40, s38, 1"); a("s_add_u32 s41, s43, s40"); a("s_add_u32 s41, s41, 288"); a("s_lshl_b32 s41, s41, 10")
    a("s_lshr_b32 s42, s40, 3"); a("s_add_u32 s43, s43, s42"); a("s_add_u32 s43, s43, 320"); a("s_lshl_b32 s43, s43, 10")
    a("s_and_b32 s42, s38, 1"); a("s_lshl_b32 s42, s42, 9"); a("s_add_u32 s43, s43, s42")
    a("s_bfe_u32 s42, s38, 0x10001"); a("s_lshl_b32 s42, s42, 3"); a("s_add_u32 s43, s43, s42")
    for c in (0, 1):
        O = O_[c]; T = S_[c]
        a(f"v_rcp_f32 v{T}, v{O+10}")
        for k in range(10): a(f"v_mul_f32 v{O+k}, v{O+k}, v{T}")
        for k in range(5): a(f"v_cvt_pk_bf16_f32 v{T+4+k}, v{O+2*k}, v{O+2*k+1}")
        a(f"buffer_store_dwordx4 v[{T+4}:{T+7}], v5, s[24:27], s41 offen offset:{c*1024}{CFG.SS}")
    a("s_mov_b32 exec_hi, 0")
    a(f"v_mov_b32 v{S_[0]+9}, v{S_[1]+8}")
    a(f"buffer_store_dwordx2 v[{S_[0]+8}:{S_[0]+9}], v5, s[24:27], s43 offen{CFG.SS}")
    a("s_mov_b32 exec_hi, -1")
    a("s_waitcnt vmcnt(0)")
    mk.arrive(a, 4, 14); a("s_add_u32 s52, s52, s53")
    a("s_cmp_lg_u32 s36, 0"); a("s_cbranch_scc1 L_at_nopub")
    a.lgq = []
    mk.chk_issue(a, 4); mk.chk(a, "fin", 4, "s52", sleep=1)
    a("s_lshl_b32 s40, s37, 4"); a("s_and_b32 s41, s38, 12"); a("s_add_u32 s40, s40, s41"); a("s_lshl_b32 s40, s40, 7")
    a("s_and_b32 s41, s38, 3"); a("s_lshl_b32 s41, s41, 2"); a("s_add_u32 s40, s40, s41"); a(f"s_add_u32 s40, s40, {FL_REL + 64}")
    mk.flag_send(a, 12, 40, 128, 12)
    a.label("L_at_nopub")
    for i in (4, 5):
        if 'kvt' not in mk.EXP: stamps.stamp(a, i)
    stamps.flush(a, 0, 55); stamps.tb_flush(a, 14, 55)

def fallback(a):
    a("v_and_b32 v6, 31, v1"); a("v_lshlrev_b32 v6, 2, v6")
    M = [P_[0], P_[1]]
    for c in (0, 1): a(f"v_mov_b32 v{M[c]}, 0xff800000")
    a(f"v_mov_b32 v{K2[0]+1}, 0")
    a(f"s_mov_b32 s42, {KV_OFF}")
    a.label("L_fb1")
    a(f"buffer_load_dwordx4 v[{K1[0]}:{K1[0]+3}], v5, s[28:31], s42 offen{CFG.SL}")
    a(f"buffer_load_dword v{K2[0]}, v6, s[28:31], s42 offen offset:1024{CFG.SL}")
    a("s_waitcnt vmcnt(0)")
    for c in (0, 1):
        S = S_[c]
        a(f"v_mfma_f32_32x32x16_bf16 v[{S}:{S+15}], v[{K1[0]}:{K1[0]+3}], v[{Q1[c]}:{Q1[c]+3}], 0")
        a(f"v_mfma_f32_32x32x16_bf16 v[{S}:{S+15}], v[{K2[0]}:{K2[0]+3}], v[{Q2[c]}:{Q2[c]+3}], v[{S}:{S+15}]")
    for c in (0, 1):
        S = S_[c]
        for k in range(8): a(f"v_max3_f32 v{M[c]}, v{M[c]}, v{S+2*k}, v{S+2*k+1}")
    a(f"s_add_u32 s42, s42, {KV_PITCH}"); a(f"s_cmp_lt_u32 s42, {KV_OFF + KV_BYTES}"); a("s_cbranch_scc1 L_fb1")
    a("v_cmp_gt_u32 vcc, 32, v1")
    a("s_mov_b32 s54, 0xffff0000")
    for c in (0, 1):
        m = M[c]; t = m + 1
        a(f"v_mov_b32 v{t}, v{m}"); a(f"v_permlane32_swap_b32 v{m}, v{t}"); a(f"v_max_f32 v{m}, v{m}, v{t}")
        a(f"v_sub_f32 v{m}, 0, v{m}")
        a(f"v_and_b32 v{t}, s54, v{m}"); a(f"v_sub_f32 v{m}, v{m}, v{t}")
        a(f"v_and_b32 v{t+1}, s54, v{m}"); a(f"v_sub_f32 v{m}, v{m}, v{t+1}")
        a(f"v_lshrrev_b32 v{t}, 16, v{t}"); a(f"v_or_b32 v{t}, v{t}, v{t+1}")
        a(f"v_lshrrev_b32 v{m}, 16, v{m}")
        a(f"v_cndmask_b32 v{Q2[c]+1}, 0, v{t}, vcc"); a(f"v_cndmask_b32 v{Q2[c]+2}, 0, v{m}, vcc")
        for k in range(16): a(f"v_mov_b32 v{O_[c]+k}, 0")
    a(f"v_mov_b32 v{K2[0]+1}, 0x3f803f80"); a(f"v_mov_b32 v{K2[0]+2}, 0x3f80")
    a(f"s_mov_b32 s42, {KV_OFF}")
    a.label("L_fb2")
    a(f"buffer_load_dwordx4 v[{K1[0]}:{K1[0]+3}], v5, s[28:31], s42 offen{CFG.SL}")
    a(f"buffer_load_dword v{K2[0]}, v6, s[28:31], s42 offen offset:1024{CFG.SL}")
    a(f"buffer_load_dwordx4 v[{VA[0]}:{VA[0]+3}], v9, s[28:31], s42 offen offset:1280{CFG.SL}")
    a(f"buffer_load_dwordx4 v[{VB[0]}:{VB[0]+3}], v9, s[28:31], s42 offen offset:{1280+640}{CFG.SL}")
    a("s_waitcnt vmcnt(0)")
    for c in (0, 1):
        S = S_[c]
        a(f"v_mfma_f32_32x32x16_bf16 v[{S}:{S+15}], v[{K1[0]}:{K1[0]+3}], v[{Q1[c]}:{Q1[c]+3}], 0")
        a(f"v_mfma_f32_32x32x16_bf16 v[{S}:{S+15}], v[{K2[0]}:{K2[0]+3}], v[{Q2[c]}:{Q2[c]+3}], v[{S}:{S+15}]")
    for c in (0, 1):
        S = S_[c]; P = P_[c]; O = O_[c]
        for k in range(16): a(f"v_exp_f32 v{S+k}, v{S+k}")
        for k in range(8): a(f"v_cvt_pk_bf16_f32 v{P+k}, v{S+2*k}, v{S+2*k+1}")
        a(f"v_mfma_f32_32x32x16_bf16 v[{O}:{O+15}], v[{VA[0]}:{VA[0]+3}], v[{P}:{P+3}], v[{O}:{O+15}]")
        a(f"v_mfma_f32_32x32x16_bf16 v[{O}:{O+15}], v[{VB[0]}:{VB[0]+3}], v[{P+4}:{P+7}], v[{O}:{O+15}]")
    a("s_nop 7")
    a(f"s_add_u32 s42, s42, {KV_PITCH}"); a(f"s_cmp_lt_u32 s42, {KV_OFF + KV_BYTES}"); a("s_cbranch_scc1 L_fb2")
    a("s_nop 15")
    a.vmq = []
```

```python
from dsl import *
from layout import *
import stamps, struct
def f32(x): return struct.unpack("<I", struct.pack("<f", x))[0]
EXP = set()
MAP = 0
import cfg as CFG

XB = 112; ACC = 48; FR = 16; NFR = 8
LB = 1024
BIAS = 4096
SLOT = 16384; R = 7; KVIMG = LB + 7 * SLOT; PF = 6
NCH = 45
QH = KVIMG + 24576
KVH = KVIMG + 36864
PITCH2 = 320; STEP2 = 32 * PITCH2; GRP2 = 2 * STEP2; NRING2 = 5; NG2 = 21
SL2 = [49152, 69632, 90112, 0, 20480]
ACC2 = 176; BR = 112
NQ = 31; QB = 12288
PRIO = False; FILLN = 2; PH = 3
HL = 56; OL = 61; PKI = 37; VO1 = 52; VO2 = 57; LAG = 0; QI = 5; APRIO = 6
def X(t): return f"v[{XB+4*t}:{XB+4*t+3}]"
def acc(c): return f"v[{ACC+16*c}:{ACC+16*c+15}]"
def acc2(u): return f"v[{ACC2+4*u}:{ACC2+4*u+3}]"
def acc32(t): return f"v[{ACC2+16*t}:{ACC2+16*t+15}]"
RA = 2

def srd(a, d, p, nbytes, off=0):
    if off: a(f"s_add_u32 s{d}, s{p}, {off}"); a(f"s_addc_u32 s{d+1}, s{p+1}, 0")
    else: a(f"s_mov_b32 s{d}, s{p}"); a(f"s_mov_b32 s{d+1}, s{p+1}")
    a(f"s_mov_b32 s{d+2}, {nbytes}"); a(f"s_mov_b32 s{d+3}, 0x20000")

def common(a):
    a("s_cmp_ge_u32 s2, 256"); a("s_cbranch_scc1 L_end")
    a("s_load_dwordx16 s[64:79], s[0:1], 0"); a("s_load_dwordx8 s[80:87], s[0:1], 64")
    a("v_lshrrev_b32 v2, 6, v0"); a("v_and_b32 v1, 63, v0"); a("v_readfirstlane_b32 s55, v2")
    stamps.stamp(a, 0)
    a("s_and_b32 s40, s2, 7"); a("s_lshr_b32 s41, s2, 3")
    if MAP == 0:
        a("s_and_b32 s37, s40, 1"); a("s_lshl_b32 s37, s37, 3"); a("s_and_b32 s42, s41, 7"); a("s_add_u32 s37, s37, s42")
        a("s_lshr_b32 s38, s40, 1"); a("s_lshl_b32 s38, s38, 2"); a("s_lshr_b32 s42, s41, 3"); a("s_add_u32 s38, s38, s42")
    elif MAP == 1:
        a("s_lshr_b32 s37, s40, 1"); a("s_lshl_b32 s37, s37, 2"); a("s_and_b32 s42, s41, 3"); a("s_add_u32 s37, s37, s42")
        a("s_and_b32 s38, s40, 1"); a("s_lshl_b32 s38, s38, 3"); a("s_lshr_b32 s42, s41, 2"); a("s_add_u32 s38, s38, s42")
    else:
        a("s_lshl_b32 s37, s40, 1"); a("s_and_b32 s42, s41, 1"); a("s_add_u32 s37, s37, s42"); a("s_lshr_b32 s38, s41, 1")
    a("s_and_b32 s36, s55, 3"); a("s_mov_b32 s3, 0")
    a("s_lshl_b32 s39, s37, 2"); a("s_add_u32 s39, s39, s36")
    a("v_lshlrev_b32 v11, 4, v1")
    if MAP == 0: a("s_bfe_u32 s62, s2, 0x30003"); a("s_lshr_b32 s40, s2, 6"); a("s_lshl_b32 s40, s40, 1"); a("s_add_u32 s62, s62, s40")
    elif MAP == 1: a("s_lshr_b32 s62, s2, 5"); a("s_bfe_u32 s40, s2, 0x20003"); a("s_lshl_b32 s40, s40, 1"); a("s_add_u32 s62, s62, s40")
    else:
        a("s_lshr_b32 s62, s2, 4"); a("s_bfe_u32 s40, s2, 0x10003"); a("s_lshl_b32 s40, s40, 2"); a("s_add_u32 s62, s62, s40")
        a("s_cmp_ge_u32 s62, 9"); a("s_cselect_b32 s40, 9, 0"); a("s_sub_u32 s62, s62, s40")
    a("s_cmp_ge_u32 s62, 9"); a("s_cselect_b32 s40, 9, 0"); a("s_sub_u32 s62, s62, s40")
    a("s_lshl_b32 s45, s36, 12"); a(f"s_add_u32 s45, s45, {LB}")
    a(f"s_mul_i32 s44, s39, {32*1152}")
    a("v_lshrrev_b32 v2, 3, v1"); a("v_and_b32 v3, 7, v1"); a("v_lshrrev_b32 v4, 1, v2"); a("v_xor_b32 v3, v3, v4")
    a("v_mul_u32_u24 v5, 1152, v2"); a("v_lshl_add_u32 v12, v3, 4, v5"); a("v_xor_b32 v13, 64, v12")
    a("s_waitcnt lgkmcnt(0)")
    a("v_mov_b32 v0, 4")
    stamps.tb_init(a, 12)
    a("s_cmp_ge_u32 s55, 4"); a("s_cbranch_scc1 L_at")

def atomic_inc(a, label, off_expr_sgpr, val, vt=13):
    a(f"v_mov_b32 v{vt}, {off_expr_sgpr}"); a(f"v_mov_b32 v{vt+1}, {val}")
    a("s_mov_b64 exec, 1")
    a(f"buffer_atomic_add v{vt+1}, v{vt}, s[32:35], 0 offen")
    a("s_mov_b64 exec, -1")
    a.vmq = a.vmq[:-1]

def poll_issue(a, off, tag, va=14, vv=15):
    return [f"v_mov_b32 v{va}, {off}", (f"buffer_load_dword v{vv}, v{va}, s[32:35], 0 offen{CFG.SP}", tag)]
def poll_check(a, name, tag, shift, width, target, va=14, vv=15):
    a.wait_vm(tag)
    a("s_cmp_lg_u32 s36, 0"); a(f"s_cbranch_scc1 L_{name}_ok")
    a("s_mov_b32 s56, 0")
    a.label(f"L_{name}_chk")
    a(f"v_readfirstlane_b32 s40, v{vv}")
    a(f"s_bfe_u32 s40, s40, {shift | (width << 16):#x}")
    a(f"s_cmp_ge_u32 s40, {target}")
    a(f"s_cbranch_scc1 L_{name}_ok")
    a("s_add_u32 s56, s56, 1"); a("s_cmp_ge_u32 s56, 0x80000"); a(f"s_cbranch_scc1 L_{name}_ok")
    a("s_sleep 16")
    a(f"buffer_load_dword v{vv}, v{va}, s[32:35], 0 offen{CFG.SP}"); a.vmq = a.vmq[:-1]
    a("s_waitcnt vmcnt(0)")
    a(f"s_branch L_{name}_chk")
    a.label(f"L_{name}_ok")

def arrive(a, off, vtb=12):
    stamps.mark(a, vtb)
    a("s_mov_b64 exec, 1"); a(f"ds_add_u32 v0, v0 offset:{off}"); a("s_mov_b64 exec, -1")
def chk_issue(a, off, v=15): a(f"ds_read_b32 v{v}, v0 offset:{off}", tag="chk")
def chk(a, name, off, k, v=15, sleep=0):
    a.wait_lg("chk")
    a.label(f"L_c{name}")
    a(f"v_cmp_gt_u32 vcc, {16 * k if isinstance(k, int) else k}, v{v}")
    a(f"s_cbranch_vccz L_c{name}_ok")
    a("s_add_u32 s3, s3, 1"); a("s_cmp_ge_u32 s3, 0x400000"); a(f"s_cbranch_scc1 L_c{name}_ok")
    if sleep: a(f"s_sleep {sleep}")
    a(f"ds_read_b32 v{v}, v0 offset:{off}"); a.lgq = a.lgq[:-1]
    a("s_waitcnt lgkmcnt(0)")
    a(f"s_branch L_c{name}")
    a.label(f"L_c{name}_ok")

TAG = 60
def flag_send(a, srd_, base_sgpr, stride, vt=13):
    a(f"v_mov_b32 v{vt}, s{TAG+1}"); a(f"v_mov_b32 v{vt+1}, s{TAG}"); a("v_cmp_gt_u32 vcc, 4, v1"); a(f"v_cndmask_b32 v{vt+1}, v{vt}, v{vt+1}, vcc")
    a(f"v_mul_u32_u24 v{vt}, {stride}, v1")
    a("s_mov_b64 exec, 0xf0"); a(f"v_subrev_u32 v{vt}, {4*stride - 16}, v{vt}")
    a("s_mov_b64 exec, 0xff")
    a(f"buffer_store_dword v{vt+1}, v{vt}, s[{srd_}:{srd_+3}], s{base_sgpr} offen{CFG.SS}")
    a("s_mov_b64 exec, -1")
    a.vmq = a.vmq[:-1]
def flag_issue(srd_, line_sgpr, off, tag, va=14, vv=13):
    return ["PRIO2", f"v_and_b32 v{va}, 7, v1", f"v_lshlrev_b32 v{va}, 2, v{va}", "PRIO0",
            (f"buffer_load_dword v{vv}, v{va}, s[{srd_}:{srd_+3}], s{line_sgpr} offen offset:{off}{CFG.SP}", tag)]
def flag_check(a, name, tag, srd_, line_sgpr, off, va=14, vv=13):
    a.wait_vm(tag)
    a("s_cmp_lg_u32 s36, 0"); a(f"s_cbranch_scc1 L_{name}_ok")
    a.label(f"L_{name}_chk")
    a(f"v_cmp_ne_u32 s[40:41], s{TAG}, v{vv}"); a(f"v_cmp_ne_u32 vcc, s{TAG+1}, v{vv}")
    a("s_and_b32 s40, s40, 0x0f"); a("s_and_b32 s41, vcc_lo, 0xf0"); a("s_or_b32 s40, s40, s41")
    a(f"s_cbranch_scc0 L_{name}_ok")
    a("s_add_u32 s3, s3, 16"); a("s_cmp_ge_u32 s3, 0x400000"); a(f"s_cbranch_scc1 L_{name}_ok")
    a("s_sleep 4")
    a(f"buffer_load_dword v{vv}, v{va}, s[{srd_}:{srd_+3}], s{line_sgpr} offen offset:{off}{CFG.SP}"); a.vmq = a.vmq[:-1]
    a("s_waitcnt vmcnt(0)")
    a(f"s_branch L_{name}_chk")
    a.label(f"L_{name}_ok")

def w_setup(a, for_at):
    if for_at: srd(a, 8, 66, D * D * 2)
    for d, p in ((12, 76), (16, 78)):
        a(f"s_sub_u32 s{d}, s{p}, {BIAS}"); a(f"s_subb_u32 s{d+1}, s{p+1}, 0"); a(f"s_mov_b32 s{d+2}, {D*F*2 + BIAS}"); a(f"s_mov_b32 s{d+3}, 0x20000")
def ws_srds(a):
    srd(a, 24, 86, H_BYTES, H_OFF); srd(a, 28, 86, SM_BYTES, SM_OFF); srd(a, 32, 84, 256)
def w_table(a):
    for c in range(9):
        a(f"s_add_u32 s{64+c}, s62, {c}"); a(f"s_cmp_ge_u32 s{64+c}, 9"); a("s_cselect_b32 s40, 9, 0"); a(f"s_sub_u32 s{64+c}, s{64+c}, s40")
def w_scalars(a):
    a(f"s_mul_i32 s46, s36, {16*9216}"); a("s_mul_i32 s40, s38, 576"); a("s_add_u32 s46, s46, s40")
    a("s_and_b32 s40, s38, 1")
    a("s_lshl_b32 s41, s40, 6"); a("s_add_u32 s47, s46, s41")
    a("s_xor_b32 s41, s40, 1"); a("s_lshl_b32 s41, s41, 9"); a("s_add_u32 s48, s46, s41"); a(f"s_add_u32 s48, s48, {BIAS}")
    a(f"s_mul_i32 s49, s36, {16*1152}"); a("s_mul_i32 s41, s38, 72"); a("s_add_u32 s49, s49, s41")
def w_voffs(a):
    a("v_lshrrev_b32 v14, 3, v1"); a("v_bfe_u32 v15, v1, 1, 2"); a("v_and_b32 v13, 1, v1"); a("v_lshlrev_b32 v13, 4, v13")
    a("v_and_b32 v5, 2, v14"); a("v_xor_b32 v5, v15, v5")
    a("v_lshrrev_b32 v4, 1, v5"); a("v_mul_u32_u24 v4, 36, v4"); a("v_and_b32 v5, 1, v5"); a("v_lshl_add_u32 v4, v5, 5, v4")
    a("v_and_b32 v5, v5, v1"); a("v_lshl_add_u32 v4, v5, 30, v4")
    a("v_mul_u32_u24 v5, 1152, v14"); a("v_add3_u32 v6, v5, v4, v13")
    a("v_lshrrev_b32 v2, 2, v1"); a("v_mul_u32_u24 v2, 9216, v2"); a("v_and_b32 v3, 3, v1"); a("v_lshl_add_u32 v7, v3, 4, v2"); a("v_xor_b32 v8, 32, v7")
    a("v_bfe_u32 v5, v14, 1, 1"); a("v_xor_b32 v5, v15, v5"); a("v_lshl_add_u32 v5, v5, 5, v13")
    a("v_mul_u32_u24 v4, 9216, v14"); a("v_add_u32 v9, v4, v5"); a(f"v_add_u32 v9, {BIAS}, v9"); a(f"v_add_u32 v10, {8*9216 - 1024}, v9")
    for c in range(9): a(f"s_mul_i32 s{64+c}, s{64+c}, {64*9216}")
def wdma(g):
    p, c = divmod(g, 9); slot = g % R
    out = []
    for i in range(4):
        if p == 0:
            hc = 2 * g + (i >> 1); c = hc % 9
            if hc < 9:
                pre = [f"s_lshr_b32 s43, s{64+c}, 3", f"s_add_u32 s43, s43, s49"] if i % 2 == 0 else [f"s_add_u32 s43, s43, {8*1152}"]
                v, srd_ = 6, 8
            else:
                pre = [f"s_add_u32 s43, s{64+c}, s48"] if i % 2 == 0 else []
                v, srd_ = 7 + (i & 1), (12 if i % 2 == 0 else 16)
            out.append(pre + [f"s_add_u32 m0, s45, {slot*SLOT + i*1024}",
                              (f"buffer_load_dwordx4 v{v}, s[{srd_}:{srd_+3}], s43 offen lds", f"w{g}")])
        else:
            pre = []
            if i == 0:
                if g == 9: pre = ["v_xor_b32 v7, 64, v9", "v_subrev_u32 v7, 2048, v7", f"v_add_u32 v8, {8*9216 - 1024}, v7"]
                pre += [f"s_add_u32 m0, s45, {slot*SLOT}", f"s_add_u32 s43, s{64+c}, s47"]
                if c == 8: pre.append("s_add_u32 s47, s47, 128")
            v, srd_ = (9, 10, 7, 8)[i], (12 if i < 2 else 16)
            out.append(pre + [(f"buffer_load_dwordx4 v{v}, s[{srd_}:{srd_+3}], s43 offen offset:{i*1024} lds", f"w{g}")])
    return out
def emit_group_to(a, grp):
    for x in grp:
        if isinstance(x, tuple): a(x[0], tag=x[1])
        else: a(x)

def gen_g(a):
    srd(a, 4, 64, S * D * 2)
    first = []
    for c in range(2):
        a(f"s_add_u32 s43, s62, {c}"); a("s_cmp_ge_u32 s43, 9"); a("s_cselect_b32 s40, 9, 0"); a("s_sub_u32 s43, s43, s40")
        a("s_lshl_b32 s43, s43, 7"); a("s_add_u32 s43, s43, s44")
        for i in range(4):
            a(f"s_add_u32 m0, s45, {c*SLOT + i*1024}"); a(f"s_add_u32 s42, s43, {8*i*1152}")
            a(f"buffer_load_dwordx4 v{12 + (i&1)}, s[4:7], s42 offen lds", tag=f"x{c}")
    for d, p, nb_ in ((8, 80, F * D * 2), (20, 72, D * D * 2)):
        a(f"s_sub_u32 s{d}, s{p}, {BIAS}"); a(f"s_subb_u32 s{d+1}, s{p+1}, 0"); a(f"s_mov_b32 s{d+2}, {nb_ + BIAS}"); a(f"s_mov_b32 s{d+3}, 0x20000")
    w_setup(a, False)
    w_table(a)
    def xdma(c, slot):
        a(f"s_lshl_b32 s43, s{64+c}, 7"); a("s_add_u32 s43, s43, s44")
        for i in range(4):
            a(f"s_add_u32 m0, s45, {slot*SLOT + i*1024}")
            a(f"s_add_u32 s42, s43, {8*i*1152}")
            a(f"buffer_load_dwordx4 v{12 + (i&1)}, s[4:7], s42 offen lds", tag=f"x{c}")
    for c in range(2, 7): xdma(c, c)
    ws_srds(a)
    w_scalars(a)
    a(f"s_mul_i32 s51, s39, {NSTEP*1024}")
    a(f"s_mul_i32 s41, s38, {18*1024}"); a("s_add_u32 s50, s51, s41")
    a("s_mov_b32 s53, 0x3f803f80"); a("s_mov_b32 s54, 0xffff0000")
    a("v_and_b32 v2, 31, v1"); a("v_lshrrev_b32 v3, 5, v1"); a("v_bfe_u32 v4, v1, 1, 3"); a("v_xor_b32 v3, v3, v4")
    a("v_lshlrev_b32 v2, 7, v2"); a("v_lshl_add_u32 v2, v3, 4, v2"); a("v_add_u32 v2, s45, v2")
    a("v_xor_b32 v3, 32, v2"); a("v_xor_b32 v4, 64, v2"); a("v_xor_b32 v5, 96, v2")
    for k in range(4): a(f"v_add_u32 v{6+k}, {4*SLOT}, v{2+k}")
    st = ACC
    for k in range(4): a(f"v_mov_b32 v{st+k}, 0")
    def stats(c):
        for t in range(4*c, 4*c+4):
            for k in range(4):
                r = XB + 4*t + k
                a(f"v_dot2c_f32_bf16 v{st + (k&1)}, s53, v{r}")
                a(f"v_dot2c_f32_bf16 v{st + 2 + (k&1)}, v{r}, v{r}")
    for c in range(9):
        slot = c if c < 7 else c - 7
        a.wait_vm(f"x{c}")
        for tt in range(4):
            if slot < 4: a(f"ds_read_b128 {X(4*c+tt)}, v{2+tt} offset:{slot*SLOT}", tag=f"xr{c}")
            else: a(f"ds_read_b128 {X(4*c+tt)}, v{6+tt} offset:{(slot-4)*SLOT}", tag=f"xr{c}")
        if c < 2:
            a.wait_lg(f"xr{c}"); xdma(7 + c, c)
        if c > 0:
            a.wait_lg(f"xr{c-1}"); stats(c - 1)
    a.wait_lg0()
    stamps.stamp(a, 1)
    a("s_barrier"); nbar = 1
    def emit_group(grp):
        for x in grp:
            if isinstance(x, tuple): a(x[0], tag=x[1])
            elif x == "PRIO2": setprio(2)
            elif x == "PRIO0":
                if not fill: setprio(0)
            else: a(x)
    stats(8)
    a("s_nop 2")
    a(f"v_add_f32 v{st}, v{st}, v{st+1}"); a(f"v_add_f32 v{st+2}, v{st+2}, v{st+3}")
    a(f"v_mov_b32 v{st+1}, v{st}"); a(f"v_mov_b32 v{st+3}, v{st+2}")
    a(f"v_permlane32_swap_b32 v{st}, v{st+1}"); a(f"v_permlane32_swap_b32 v{st+2}, v{st+3}")
    a(f"v_add_f32 v{st}, v{st}, v{st+1}"); a(f"v_add_f32 v{st+2}, v{st+2}, v{st+3}")
    a(f"v_mul_f32 v{st}, {f32(1.0/576):#x}, v{st}"); a(f"v_mul_f32 v{st+2}, {f32(1.0/576):#x}, v{st+2}")
    a(f"v_fma_f32 v{st+2}, -v{st}, v{st}, v{st+2}"); a(f"v_max_f32 v{st+2}, 0, v{st+2}"); a(f"v_add_f32 v{st+2}, {f32(1e-5):#x}, v{st+2}")
    a(f"v_rsq_f32 v{st+2}, v{st+2}")
    a(f"v_mul_f32 v{st+4}, v{st}, v{st+2}"); a(f"v_sub_f32 v{st+4}, 0, v{st+4}")
    a(f"v_mov_b32 v{st+3}, v{st+2}"); a(f"v_mov_b32 v{st+5}, v{st+4}")
    T = ACC + 8
    for r0 in range(0, 144, 4):
        for k in range(4):
            r = XB + r0 + k; t = T + 2*k
            a(f"v_lshlrev_b32 v{t}, 16, v{r}"); a(f"v_and_b32 v{t+1}, s54, v{r}")
        for k in range(4):
            t = T + 2*k
            a(f"v_pk_fma_f32 v[{t}:{t+1}], v[{t}:{t+1}], v[{st+2}:{st+3}], v[{st+4}:{st+5}]")
        for k in range(4):
            r = XB + r0 + k; t = T + 2*k
            a(f"v_cvt_pk_bf16_f32 v{r}, v{t}, v{t+1}")
    w_voffs(a)
    a("s_mov_b32 s60, -1"); a("s_mov_b32 s61, 0")
    a("s_cmp_ge_u32 s38, 2"); a("s_cbranch_scc1 L_g_nokv")
    a("v_lshrrev_b32 v2, 5, v1"); a("v_lshlrev_b32 v2, 3, v2"); a("v_bfe_u32 v3, v1, 2, 2"); a("v_add_u32 v2, v2, v3"); a("v_lshlrev_b32 v2, 6, v2")
    a("v_bfe_u32 v3, v1, 4, 1"); a("v_lshl_add_u32 v2, v3, 5, v2"); a("v_and_b32 v3, 3, v1"); a("v_lshl_add_u32 v2, v3, 3, v2")
    a(f"v_add_u32 v2, {KVIMG}, v2")
    a(f"s_lshl_b32 s43, s36, 11"); a(f"s_add_u32 s43, s43, {KVH}"); a("v_add_u32 v3, s43, v11"); a("v_mov_b32 v5, v3")
    saved_vmq = list(a.vmq)
    def kvpass(isV):
        def rd(t):
            b = FR + 4 * (t % NFR)
            a(f"ds_read_b64_tr_b16 v[{b}:{b+1}], v2 offset:{t*1024}", tag=f"kv{t}")
            a(f"ds_read_b64_tr_b16 v[{b+2}:{b+3}], v2 offset:{t*1024+256}", tag=f"kv{t}")
        for t in range(PF): rd(t)
        for t in range(36):
            b = FR + 4 * (t % NFR)
            a.wait_lg(f"kv{t}")
            cc = "0" if t == 0 else acc(0)
            if isV: a(f"v_mfma_f32_32x32x16_bf16 {acc(0)}, {X(t)}, v[{b}:{b+3}], {cc}")
            else: a(f"v_mfma_f32_32x32x16_bf16 {acc(0)}, v[{b}:{b+3}], {X(t)}, {cc}")
            if t + PF < 36: rd(t + PF)
    a("s_cmp_eq_u32 s38, 1"); a("s_cbranch_scc1 L_g_v")
    kvpass(False)
    B = ACC; T = ACC + 16
    for k in range(5): a(f"v_cvt_pk_bf16_f32 v{T+k}, v{B+2*k}, v{B+2*k+1}")
    a(f"ds_write_b128 v3, v[{T}:{T+3}]")
    a(f"v_mul_f32 v{T+8}, v{B+8}, v{B+8}"); a(f"v_fmac_f32 v{T+8}, v{B+9}, v{B+9}"); a(f"v_cndmask_b32 v{T+8}, 0, v{T+8}, s[60:61]")
    for k in range(8): a(f"v_fmac_f32 v{T+8}, v{B+k}, v{B+k}")
    a(f"v_mov_b32 v{T+9}, v{T+8}"); a(f"v_permlane32_swap_b32 v{T+8}, v{T+9}"); a(f"v_add_f32 v{T+8}, v{T+8}, v{T+9}")
    a(f"v_mov_b32 v{T+5}, v{T+8}")
    a(f"ds_write_b64 v3, v[{T+4}:{T+5}] offset:1024")
    a("s_branch L_g_kvdone")
    a.label("L_g_v")
    a.lgq = []
    kvpass(True)
    for k in range(8): a(f"v_cvt_pk_bf16_f32 v{T+k}, v{B+2*k}, v{B+2*k+1}")
    a("v_and_b32 v3, 31, v1"); a("v_cmp_eq_u32 vcc, 18, v3"); a("v_mov_b32 v4, s53")
    for k in range(8): a(f"v_cndmask_b32 v{T+k}, v{T+k}, v4, vcc")
    a("v_cmp_gt_u32 vcc, 19, v3")
    for k in range(8): a(f"v_cndmask_b32 v{T+k}, 0, v{T+k}, vcc")
    a(f"ds_write_b128 v5, v[{T}:{T+3}]"); a(f"ds_write_b128 v5, v[{T+4}:{T+7}] offset:1024")
    a.label("L_g_kvdone")
    a("s_waitcnt lgkmcnt(0)")
    a("s_mov_b64 exec, 1"); a("ds_add_u32 v0, v0 offset:20"); a("s_mov_b64 exec, -1")
    a.label("L_g_nokv")
    a("s_nop 7"); a("s_nop 7")
    a.vmq = saved_vmq; a.lgq = []
    def tr_addrs(p):
        if p == 0:
            return ["v_lshrrev_b32 v13, 5, v1", "v_lshlrev_b32 v2, 10, v13", "v_bfe_u32 v14, v1, 2, 2", "v_lshl_add_u32 v2, v14, 7, v2",
                    "v_and_b32 v15, 2, v14", "v_bfe_u32 v3, v1, 4, 1", "v_xor_b32 v15, v15, v3", "v_lshl_add_u32 v2, v15, 5, v2",
                    "v_and_b32 v15, 3, v1", "v_lshl_add_u32 v2, v15, 3, v2", f"v_add_u32 v2, {LB}, v2", "v_xor_b32 v3, 64, v2",
                    "v_lshl_add_u32 v4, v13, 3, v14", "v_lshlrev_b32 v4, 6, v4", "v_bfe_u32 v13, v1, 4, 1", "v_mul_u32_u24 v13, 1056, v13",
                    "v_add_u32 v4, v4, v13", f"v_add_u32 v4, {LB}, v4", "v_lshl_add_u32 v4, v15, 3, v4", "v_xor_b32 v5, 32, v4"]
        return ["v_bfe_u32 v13, v1, 4, 1", "v_lshrrev_b32 v14, 5, v1", "v_lshl_add_u32 v14, v13, 1, v14", "v_lshlrev_b32 v2, 10, v14",
                "v_bfe_u32 v14, v1, 2, 2", "v_lshl_add_u32 v2, v14, 7, v2", "v_lshrrev_b32 v14, 1, v14", "v_lshl_add_u32 v14, v13, 1, v14",
                "v_lshl_add_u32 v2, v14, 5, v2", "v_and_b32 v14, 3, v1", "v_lshl_add_u32 v2, v14, 3, v2", f"v_add_u32 v2, {LB}, v2",
                "v_xor_b32 v3, 32, v2", "v_xor_b32 v4, 64, v2", "v_xor_b32 v5, 96, v2"]
    for x in tr_addrs(0): a(x)
    chk_issue(a, 8); chk(a, "l0", 8, 1, sleep=1)

    order = [(s, t) for t in range(4) for s in range(4)]
    fa = []
    for hc in range(18):
        for t in range(2):
            for s_ in range(4): fa.append(("a", hc // 2, (hc % 9, s_, (hc % 2) * 2048), t + (2 if hc >= 9 else 0)))
    for g in range(9, NCH):
        for (s_, t) in order: fa.append(("a", g, (g % 9, s_, 0), t))
    fb = [("b", pos, f, 0) for pos in range(41) for f in range(10 if pos < 40 else 5)]
    frs = fa + fb
    N1 = NCH * 16
    state = {"slot": 0, "pass": 0}
    fill = []
    def setprio(v):
        if state.get("prio", 0) != v: a(f"s_setprio {v}"); state["prio"] = v
    def rd(n):
        kind, g, s, t = frs[n]
        b = FR + 4 * (n % NFR)
        if kind == "b":
            if g == 0 and s == 0:
                for grp in raddr2(): emit_group(grp)
            so = SL2[(g // 2) % NRING2]; hi = 1 if so >= SL2[0] else 0
            o = so - hi * SL2[0] + (g % 2) * STEP2 + (s // 5) * 16 * PITCH2 + (s % 5) * 64
            v = RA + hi
            if 'x4' in EXP or ('x4h' in EXP and n % 2): return
            a(f"ds_read_b64_tr_b16 v[{b}:{b+1}], v{v} offset:{o}", tag=f"f{n}")
            a(f"ds_read_b64_tr_b16 v[{b+2}:{b+3}], v{v} offset:{o + 8*PITCH2}", tag=f"f{n}")
            return
        p = g // 9; slot = g % R
        if p == 1 and state["pass"] == 0:
            for x in tr_addrs(1): a(x)
            state["slot"] = 0
        state["pass"] = p
        hi = 4 if slot >= 4 else 0
        if hi != state["slot"]:
            if g >= APRIO: setprio(2)
            for k in range(4):
                if hi: a(f"v_add_u32 v{2+k}, {4*SLOT}, v{2+k}")
                else: a(f"v_subrev_u32 v{2+k}, {4*SLOT}, v{2+k}")
            state["slot"] = hi
            if not fill: setprio(0)
        jj = 256 if (p == 0 and t >= 2) else 512
        o = (slot - hi) * SLOT + s[1] * 4096 + s[2]
        if 'x4' in EXP and g >= 9: return
        if 'x4h' in EXP and g >= 9 and n % 2: return
        a(f"ds_read_b64_tr_b16 v[{b}:{b+1}], v{2+t} offset:{o}", tag=f"f{n}")
        a(f"ds_read_b64_tr_b16 v[{b+2}:{b+3}], v{2+t} offset:{o+jj}", tag=f"f{n}")
    def gu_epi(t, pi, p):
        B = ACC + 16*t
        L = []
        for i in range(8): L.append(f"v_max_f32 v{B+i}, 0, v{B+i}")
        for i in range(8): L.append(f"v_mul_f32 v{B+i}, v{B+i}, v{B+8+i}")
        for k in range(4): L.append(f"v_cvt_pk_bf16_f32 v{B+8+k}, v{B+2*k}, v{B+2*k+1}")
        L.append(f"s_add_u32 s52, s50, {pi*1024}")
        L.append((f"buffer_store_dwordx4 v[{B+8}:{B+11}], v11, s[24:27], s52 offen{CFG.SS}", f"hst{p}"))
        return L
    def q_epi(t):
        B = ACC + 16*t
        L = []
        for i in range(10): L.append(f"v_mul_f32 v{B+i}, {f32(QSCALE):#x}, v{B+i}")
        n = B + 10
        L += [f"v_mul_f32 v{n}, v{B+8}, v{B+8}", f"v_fmac_f32 v{n}, v{B+9}, v{B+9}", f"v_cndmask_b32 v{n}, 0, v{n}, s[60:61]"]
        for k in range(8): L.append(f"v_fmac_f32 v{n}, v{B+k}, v{B+k}")
        L += [f"v_mov_b32 v{n+1}, v{n}", f"v_permlane32_swap_b32 v{n}, v{n+1}", f"v_add_f32 v{n}, v{n}, v{n+1}",
              f"v_sqrt_f32 v{n}, v{n}", f"v_mul_f32 v{n}, {f32(-(1+1/64.)):#x}, v{n}",
              f"v_cndmask_b32 v{n}, 0, v{n}, s[60:61]", f"v_cndmask_b32 v{B+8}, 0, v{B+8}, s[60:61]", f"v_cndmask_b32 v{B+9}, 0, v{B+9}, s[60:61]", f"v_mov_b32 v{n+1}, 0"]
        for k in range(4): L.append(f"v_cvt_pk_bf16_f32 v{B+12+k}, v{B+2*k}, v{B+2*k+1}")
        L += [f"v_cvt_pk_bf16_f32 v{B}, v{B+8}, v{B+9}", f"v_cvt_pk_bf16_f32 v{B+1}, v{n}, v{n+1}"]
        L += [f"s_mul_i32 s52, s36, 3072", f"s_add_u32 s52, s52, {QH + t*1536}", f"v_add_u32 v{B+2}, s52, v11", f"v_lshl_add_u32 v{B+3}, v1, 3, s52",
              (f"ds_write_b128 v{B+2}, v[{B+12}:{B+15}]", "qst"), (f"ds_write_b64 v{B+3}, v[{B}:{B+1}] offset:1024", "qst")]
        return L
    def emit_fill(nmax, upto_tile=None):
        k = 0
        while fill and (k < nmax or (upto_tile is not None and any(f[0] == upto_tile for f in fill))):
            L = fill[0][2]
            x = L.pop(0)
            if isinstance(x, tuple): a(x[0], tag=x[1])
            else: a(x)
            if not L: fill.pop(0)
            k += 1
    def grouped(L, n=4):
        groups = []; cur = []
        for x in L:
            if len(cur) >= n and not x.startswith(("s_addc", "s_cselect", "v_cndmask")): groups.append(cur); cur = []
            cur.append(x)
        return groups + [cur]
    def hp(groups):
        return [["PRIO2"] + g_ + ["PRIO0"] for g_ in groups]
    def g2_setup():
        L = []
        A = L.append
        A("s_lshr_b32 s73, s38, 2"); A("s_and_b32 s74, s38, 3")
        A(f"s_add_u32 s28, s86, {PART_OFF}"); A("s_addc_u32 s29, s87, 0"); A(f"s_mov_b32 s30, {PART_BYTES}"); A("s_mov_b32 s31, 0x20000")
        A(f"s_mul_i32 s63, s36, {GRP2 // 4}"); A(f"s_add_u32 s63, s63, {LB}")
        A(f"s_mul_i32 s75, s73, {144*1152}"); A("s_mul_i32 s40, s74, 288"); A("s_add_u32 s75, s75, s40")
        for k in range(4):
            A(f"s_add_u32 s40, s74, {k}"); A("s_and_b32 s40, s40, 3"); A("s_lshl_b32 s41, s73, 2"); A("s_add_u32 s40, s40, s41")
            A(f"s_mul_i32 s40, s40, {18*1024}"); A(f"s_add_u32 s{76+k}, s40, s51")
        A("s_lshl_b32 s40, s73, 13"); A("s_add_u32 s40, s40, s51"); A(f"s_add_u32 s48, s40, {288*1024}")
        A("s_lshl_b32 s40, s73, 10"); A("s_add_u32 s40, s40, s51"); A(f"s_add_u32 s49, s40, {320*1024}")
        A("s_lshl_b32 s40, s37, 4"); A("s_add_u32 s41, s40, s38"); A("s_lshl_b32 s41, s41, 7"); A(f"s_add_u32 s44, s41, {FL_REL}")
        A("s_and_b32 s41, s38, 12"); A("s_add_u32 s41, s41, s40"); A("s_lshl_b32 s41, s41, 7"); A("s_lshl_b32 s46, s74, 2")
        A("s_add_u32 s41, s41, s46"); A(f"s_add_u32 s46, s41, {FL_REL}")
        A("s_add_u32 s41, s40, s74"); A("s_lshl_b32 s41, s41, 7"); A("s_lshl_b32 s62, s73, 2")
        A("s_add_u32 s41, s41, s62"); A(f"s_add_u32 s62, s41, {FL_REL + 96}")
        A("s_lshl_b32 s40, s37, 2"); A("s_add_u32 s40, s40, s74"); A("s_lshl_b32 s40, s40, 2"); A("s_add_u32 s40, s40, s36")
        A("s_lshl_b32 s40, s40, 2"); A("s_add_u32 s40, s40, s73"); A("s_mul_i32 s57, s40, 9216")
        return grouped(L)
    def touch():
        L = [["PRIO2", "v_min_u32 v13, 35, v1", "v_mul_u32_u24 v13, 1152, v13", "PRIO0",
              "s_and_b32 s40, s37, 7", "s_lshl_b32 s40, s40, 2", "s_add_u32 s40, s40, s36", f"s_mul_i32 s40, s40, {36*1152}",
              f"s_mul_i32 s41, s73, {1152*1152}", "s_add_u32 s40, s40, s41", "s_mul_i32 s41, s74, 288", "s_add_u32 s40, s40, s41", f"s_add_u32 s56, s40, {BIAS}"]]
        for l in range(3): L.append([(f"buffer_load_dword v14, v13, s[8:11], s56 offen offset:{128*l}", "touch")])
        L.append(["PRIO2", "v_min_u32 v13, 17, v1", "v_mul_u32_u24 v13, 1152, v13", "PRIO0",
                  "s_and_b32 s40, s37, 7", f"s_mul_i32 s40, s40, {18*1152}", "s_add_u32 s40, s40, s75", "s_min_u32 s41, s36, 2", "s_lshl_b32 s41, s41, 7",
                  "s_add_u32 s40, s40, s41", f"s_add_u32 s56, s40, {BIAS}", (f"buffer_load_dword v14, v13, s[20:23], s56 offen", "touch")])
        return L
    def voff2(mode):
        L = []
        for k in range(5):
            d = 6 + k
            G_ = [f"v_add_u32 v13, {k*1024}, v11", "v_mul_hi_u32 v14, v13, s41"]
            if mode == 0:
                G_ += [f"v_mul_u32_u24 v{d}, {PITCH2}, v14", f"v_sub_u32 v13, v13, v{d}", f"v_add_u32 v{d}, 224, v13", f"v_lshrrev_b32 v{d}, 9, v{d}", f"v_lshl_add_u32 v13, v{d}, 30, v13",
                       "v_mul_u32_u24 v14, 1152, v14", f"v_add3_u32 v{d}, v14, v13, s56"]
            else:
                G_ += ["v_lshrrev_b32 v14, 1, v14", f"v_mul_u32_u24 v14, {16*1152}, v14", f"v_add_u32 v{d}, v{d}, v14"]
            L.append([f"s_mov_b32 s56, {BIAS - (k % 4) * 1024}", f"s_mov_b32 s41, {(1 << 32) // PITCH2 + 1}", "PRIO2"] + G_ + ["PRIO0"])
        return L
    def rows2():
        L = []
        pre = ["s_and_b32 s40, s36, 1", f"s_mul_i32 s45, s40, {16*1152}", "s_mul_i32 s42, s74, 288", "s_add_u32 s45, s45, s42",
               f"s_mul_i32 s40, s40, {18*1152}", f"s_add_u32 s72, s75, {16*1152}", "s_add_u32 s75, s75, s40"]
        for k in range(4):
            L += [f"s_add_u32 s40, s74, {k}", "s_and_b32 s40, s40, 3", "s_lshl_b32 s41, s73, 2", "s_add_u32 s41, s41, s40", f"s_mul_i32 s41, s41, {288*1152}",
                  "s_add_u32 s41, s41, s45", "s_nop 0", "s_bitcmp1_b32 s40, 0", f"s_cselect_b32 s40, 0, {32*1152}", f"s_cselect_b32 s42, 0, {256*1152}",
                  f"s_sub_u32 s{64+k}, s41, s40", f"s_add_u32 s{68+k}, s41, s42"]
        L += ["s_mov_b32 s12, s82", "s_mov_b32 s13, s83", f"s_mov_b32 s14, {S*D*2}", "s_mov_b32 s15, 0x20000"]
        return [pre] + [L[12*k:12*k+12] for k in range(4)] + [L[48:]]
    def raddr2():
        return hp([["v_lshrrev_b32 v4, 5, v1", "v_bfe_u32 v5, v1, 2, 2", "v_lshl_add_u32 v4, v4, 2, v5", f"v_mul_u32_u24 v4, {PITCH2}, v4",
                    "v_and_b32 v5, 3, v1", "v_lshl_add_u32 v4, v5, 3, v4", "v_bfe_u32 v5, v1, 4, 1", "v_lshl_add_u32 v4, v5, 5, v4",
                    f"v_add_u32 v{RA}, {LB}, v4", f"v_add_u32 v{RA+1}, {LB + SL2[0]}, v4"]])
    def step_soff(dst, pos):
        if pos < 36:
            k, tau = (pos // 7, pos % 7) if pos < 28 else ((pos - 28) // 2, 7 + (pos - 28) % 2)
            return f"s_mov_b32 s{dst}, s{68+k}" if tau == 0 else f"s_add_u32 s{dst}, s{64+k}, {32*1152*tau}"
        return f"s_add_u32 s{dst}, s75, {36*1152*(pos-36)}" if pos < 40 else f"s_mov_b32 s{dst}, s72"
    def quad(j):
        vb, srd_ = 6, (8 if j < 18 else 20)
        so = SL2[j % NRING2]
        g0 = [step_soff(42, 2*j), step_soff(43, 2*j+1), "s_cmp_lt_u32 s36, 2", "s_cselect_b32 s43, s42, s43", f"s_add_u32 m0, s63, {so}"]
        ld = lambda k: (f"buffer_load_dwordx4 v{vb+k}, s[{srd_}:{srd_+3}], s43 offen offset:{(k%4)*1024} lds", f"q{j}")
        return [g0 + [ld(0), ld(1)], [ld(2), ld(3), f"s_add_u32 m0, s63, {so + 4096}", ld(4)]]
    def bload(pos):
        if pos < 28: pre = f"s_add_u32 s42, s{76 + pos//7}, {(pos%7)*2048}"
        elif pos < 36: pre = f"s_add_u32 s42, s{76 + (pos-28)//2}, {(7 + (pos-28)%2)*2048}"
        elif pos < 40: pre = f"s_add_u32 s42, s48, {(pos-36)*2048}"
        else: pre = "s_mov_b32 s42, s49"
        b = BR + 8 * (pos % 8)
        L = [pre, (f"buffer_load_dwordx4 v[{b}:{b+3}], v11, s[24:27], s42 offen{CFG.SL}", f"b{pos}")]
        if pos == 40: return L
        return L + [(f"buffer_load_dwordx4 v[{b+4}:{b+7}], v11, s[24:27], s42 offen offset:1024{CFG.SL}", f"b{pos}")]
    side = []
    st2 = {"q": 0, "b": 0, "landed": -1}
    def push_quads(upto):
        while st2["q"] <= min(upto, NG2 - 1):
            if 'x6' not in EXP: side.extend(quad(st2["q"]))
            st2["q"] += 1
    def push_b(upto):
        while st2["b"] <= min(upto, 40): side.append(bload(st2["b"])); st2["b"] += 1
    def flush_side():
        while side: emit_group(side.pop(0))
    nissued = 0
    lim = {"a": 1}
    def issue_reads(upto):
        nonlocal nissued
        while nissued < min(upto, len(frs)):
            kind, g, s, t = frs[nissued]
            if kind == "b" and g > st2["landed"]: break
            if kind == "a" and g > lim["a"]: break
            rd(nissued); nissued += 1
    def wait_frag(n):
        if f"f{n}" in a.lgq: a.wait_lg([f"f{n}", f"f{n+1}"])
    def do_arrive(I):
        flush_side()
        if I + 2 < NCH: a.wait_vm(f"w{I+2}")
        if I == QI: assert not any(f[0] < 2 for f in fill); a.wait_lg("qst")
        if I == 38: a.wait_vm("hst3")
        if I == 48: assert not fill; a.wait_vm("hst4")
        if I >= 43:
            assert I - 43 < st2["q"], (I, st2)
            if 'x5' not in EXP: a.wait_vm(f"q{I-43}")
            st2["pend"][I] = min(2 * (I - 43) + 1, 40)
        if I == 57: a.wait_vm("clr")
        if I == 63: setprio(2); flag_check(a, "c", "cp", 28, 44, 96)
        if I == 45: setprio(2); flag_check(a, "h", "hp", 28, 44, 0)
        if I == HL - 1: setprio(2); flag_check(a, "hl", "hl", 28, 44, 32)
        if I == OL - 1: setprio(2); flag_check(a, "o", "op", 28, 44, 64)
        arrive(a, 0)
    st2["pend"] = {}
    def do_check(I):
        if I >= APRIO: setprio(2)
        chk(a, f"g{I}", 0, I - LAG)
        if not fill: setprio(0)
        if I == 1: chk_issue(a, 12); chk(a, "l1", 12, 1)
        if I == 3: chk_issue(a, 16); chk(a, "l2", 16, 1)
        lim["a"] = max(3 if I < 3 else 6, I + 1)
        if I - 1 in st2["pend"]: st2["landed"] = st2["pend"][I - 1]
        if I - 1 + R < NCH and not ('x1' in EXP and 12 <= I < 36): side.extend(wdma(I - 1 + R))
        if I == 14: st2['setup'] = g2_setup()
        if 14 <= I <= 20: side.extend(st2['setup'][:3]); st2['setup'] = st2['setup'][3:]
        if I == 21: assert not st2['setup']
        if I == 21: chk_issue(a, 4); setprio(2); chk(a, "tg", 4, 1, sleep=2)
        if I == 22: side.append([("ds_read_b32 v13, v0 offset:28", "tg"), ("ds_read_b32 v14, v0 offset:32", "tg")])
        if I == 23:
            a.wait_lg("tg"); setprio(2); a(f"v_readfirstlane_b32 s{TAG}, v13"); a(f"v_readfirstlane_b32 s{TAG+1}, v14")
            if not fill: setprio(0)
        if I == 39: side.extend(rows2() + voff2(0))
        if I == 40: push_quads(0); push_b(2)
        if I == 41: push_quads(1); push_b(4)
        if I == 42: push_quads(2); push_b(6)
        if I == 44: push_quads(3)
        if I == 45: push_quads(4)
        if I == 60: side.extend(["DUMMY"] and voff2(2) if False else [])
        if I == 61: side.extend(voff2(2))
        if I >= 46: push_quads(I - 41)
        if I in (39, 49):
            setprio(2)
            a("s_cmp_lg_u32 s36, 0"); a(f"s_cbranch_scc1 L_g_nohp{I}")
            if I == 49: a("s_add_u32 s46, s46, 32")
            flag_send(a, 28, 46, 128); a.label(f"L_g_nohp{I}")
        if I == 44: side.append(flag_issue(28, 44, 0, "hp"))
        if I == 46: st2["bcap"] = 27; push_b(10)
        if I == 46: side.append([f"v_mov_b32 v{48+k}, -1" for k in range(4)])
        if 46 <= I <= 54: side.append([(f"buffer_store_dwordx4 v[48:51], v11, s[28:31], s57 offen{CFG.SS}", "clr"), "s_add_u32 s57, s57, 1024"])
        if I == 58:
            setprio(2)
            a("s_cmp_lg_u32 s36, 0"); a("s_cbranch_scc1 L_g_nocl"); flag_send(a, 28, 62, 512); a.label("L_g_nocl")
            side.extend(xres_groups())
        if I == 62: side.append(flag_issue(28, 44, 96, "cp"))
        if I == HL - 2: side.append(flag_issue(28, 44, 32, "hl"))
        if I == HL: st2["bcap"] = 35
        if I == OL - 2: side.append(flag_issue(28, 44, 64, "op"))
        if I == OL: st2["bcap"] = 40
    st2["bcap"] = 6
    issue_reads(PF)
    for n, (kind, g, s, t) in enumerate(frs):
        b = FR + 4 * (n % NFR)
        if kind == "a":
            p = g // 9; c, s, _ = s
            first = (c == 0 and s == 0)
            if first: emit_fill(0, upto_tile=t)
            wait_frag(n)
            setprio(2 if (g >= APRIO and (fill or (PH and n % PH == 0))) else 0)
            if "m16" in EXP and g >= 9:
                for hh in range(2):
                    q_ = ACC + 16*t + 8*(s&1) + 4*hh
                    a(f"v_mfma_f32_16x16x32_bf16 v[{q_}:{q_+3}], v[{b}:{b+3}], {X((4*c+s+18*hh) % 36)}, {'0' if (c == 0 and s < 2) else f'v[{q_}:{q_+3}]'}")
            else:
                a(f"v_mfma_f32_32x32x16_bf16 {acc(t)}, v[{b}:{b+3}], {X(4*c+s)}, {'0' if first else acc(t)}")
            if not fill: setprio(0)
            if n % 16 == 6 and g > 0 and not ('x2' in EXP and 12 <= g < 36): chk_issue(a, 0)
            if n % 16 == 9 and g > 0: do_check(g)
            issue_reads(n + 1 + PF)
            if side: emit_group(side.pop(0))
            for f in fill: f[1] -= 1
            if fill and fill[0][1] <= 0: emit_fill(FILLN if p else 5)
            if c == 8 and s == 3:
                L = q_epi(t) if (p == 0 and t < 2) else gu_epi(t, (t - 2) if p == 0 else 2 + 4*(p-1) + t, p)
                fill.append([t, 1, L])
            if n % 16 == 15:
                do_arrive(g)
        else:
            pos, f = g, s
            I = NCH + pos // 2; m = (pos % 2) * 10 + f
            bb = BR + 8 * (pos % 8)
            if f == 0:
                if pos == 0: stamps.stamp(a, 3)
                if pos == 34: stamps.stamp(a, 2)
                assert st2["b"] > pos, pos
                if any(isinstance(x[-1], tuple) and x[-1][1] == f"b{pos}" for x in side): flush_side()
                a.wait_vm(f"b{pos}")
            assert nissued > n, (pos, f, st2)
            wait_frag(n)
            setprio(2 if (fill or (PH and n % PH == 0)) else 0)
            t_ = f % 5; p_ = f // 5
            if "m16" in EXP:
                for hh in range(2 if f < 9 else 0):
                    q_ = ACC2 + 8*f + 4*hh
                    a(f"v_mfma_f32_16x16x32_bf16 v[{q_}:{q_+3}], v[{b}:{b+3}], v[{bb+4*hh}:{bb+4*hh+3}], {'0' if pos == 0 else f'v[{q_}:{q_+3}]'}")
            else:
                a(f"v_mfma_f32_32x32x16_bf16 {acc32(t_)}, v[{b}:{b+3}], v[{bb+4*p_}:{bb+4*p_+3}], {'0' if (pos == 0 and p_ == 0) else acc32(t_)}")
            if not fill: setprio(0)
            if m == 10: chk_issue(a, 0)
            if m == 13: do_check(I)
            issue_reads(n + 1 + PF)
            if fill: emit_fill(3)
            elif side: emit_group(side.pop(0))
            if f == 9:
                if pos % 2 == 1 and pos < 39: do_arrive(I)
                push_b(min(pos + 8, st2["bcap"]))
    flush_side()
    finish(a)
    return nbar

OWN = LB + 0
def finish(a):
    stamps.stamp(a, 4)
    a("s_lshl_b32 s40, s37, 2"); a("s_add_u32 s40, s40, s74"); a(f"s_mul_i32 s70, s40, {16*9216}")
    a("s_cmp_eq_u32 s36, s73"); a("s_cbranch_scc1 L_g_own")
    a(f"s_lshl_b32 s41, s73, 2"); a("s_add_u32 s41, s41, s36"); a("s_mul_i32 s41, s41, 9216"); a("s_add_u32 s41, s41, s70")
    for r in range(9):
        T = 48 + 4 * (r % 4)
        for k in range(4): a(f"v_cvt_pk_bf16_f32 v{T+k}, v{ACC2+8*r+2*k}, v{ACC2+8*r+2*k+1}")
        if r % 4 == 0 and r: a(f"s_add_u32 s41, s41, 4096")
        a(f"buffer_store_dwordx4 v[{T}:{T+3}], v11, s[28:31], s41 offen offset:{(r%4)*1024}{CFG.SS}")
    a("s_branch L_g_st")
    a.label("L_g_own")
    a("s_nop 11")
    for u in range(18): a(f"ds_write_b128 v11, {acc2(u)} offset:{OWN + u*1024}")
    a.label("L_g_st")
    a.vmq = []; a.lgq = []
    XR = XRES; OW = 76; G = 100
    a("s_mul_i32 s41, s73, 9216"); a("s_add_u32 s41, s41, s70"); a("s_lshl_b32 s42, s36, 10"); a("s_add_u32 s41, s41, s42")
    sj = [71, 69, 43]
    for j in range(3):
        a(f"s_add_u32 s40, s73, {j+1}"); a("s_and_b32 s40, s40, 3"); a(f"s_mul_i32 s40, s40, {4*9216}"); a(f"s_add_u32 s{sj[j]}, s40, s41")
    a("s_movk_i32 s62, 0x1000"); a("s_cmp_eq_u32 s36, 0"); a("s_cselect_b32 s62, 8192, s62"); a("v_add_u32 v7, 4096, v11"); a("v_add_u32 v8, s62, v11")
    vk = [11, 7, 8]
    def loads():
        for k in range(3):
            for j in range(3):
                r = G + 12*k + 4*j
                a(f"buffer_load_dwordx4 v[{r}:{r+3}], v{vk[k]}, s[28:31], s{sj[j]} offen{CFG.SL}")
    loads()
    a("s_waitcnt lgkmcnt(0)")
    a("s_barrier")
    a("s_lshl_b32 s40, s36, 11"); a("v_add_u32 v6, s40, v11")
    for k in range(3):
        for e in range(2): a(f"ds_read_b128 v[{OW+8*k+4*e}:{OW+8*k+4*e+3}], v6 offset:{OWN + k*8192+e*1024}")
    a.label("L_g_gchk")
    a("s_waitcnt vmcnt(0)")
    a(f"v_max3_u32 v2, v{G}, v{G+1}, v{G+2}")
    for q in range(3, 35, 2): a(f"v_max3_u32 v2, v2, v{G+q}, v{G+q+1}")
    a(f"v_max_u32 v2, v2, v{G+35}")
    a("v_cmp_eq_u32 vcc, -1, v2")
    a("s_cbranch_vccz L_g_gok")
    a("s_add_u32 s3, s3, 64"); a("s_cmp_ge_u32 s3, 0x400000"); a("s_cbranch_scc1 L_g_gok")
    loads()
    a("s_branch L_g_gchk")
    a.label("L_g_gok")
    stamps.stamp(a, 5)
    a("s_waitcnt lgkmcnt(0)")
    def fin(k):
        o = OW + 8*k; T = 140
        srcs = [G + 12*k + 4*j for j in range(3)] + [XR + 4*k]
        for r in srcs:
            for q in range(4):
                a(f"v_lshlrev_b32 v{T+2*q}, 16, v{r+q}"); a(f"v_and_b32 v{T+2*q+1}, s54, v{r+q}")
            for q in range(4): a(f"v_pk_add_f32 v[{o+2*q}:{o+2*q+1}], v[{o+2*q}:{o+2*q+1}], v[{T+2*q}:{T+2*q+1}]")
        for q in range(4): a(f"v_cvt_pk_bf16_f32 v{T+8+4*k+q}, v{o+2*q}, v{o+2*q+1}")
        for e in range(2): a(f"buffer_store_dwordx2 v[{T+8+4*k+2*e}:{T+9+4*k+2*e}], v5, s[12:15], s{XS[k]} offen offset:{16*e}{CFG.SO}")
    fin(0); fin(1)
    a("s_cmp_lg_u32 s36, 0"); a("s_cbranch_scc1 L_g_no3")
    fin(2)
    a.label("L_g_no3")
    stamps.flush(a, 0, 55); stamps.tb_flush(a, 12, 55)
    a("s_endpgm")

XS = [16, 17, 18]
def xres_groups():
    L = [["s_lshl_b32 s40, s37, 2", "s_add_u32 s40, s40, s73", f"s_mul_i32 s47, s40, {32*1152}", "s_mul_i32 s41, s74, 288", "s_add_u32 s47, s47, s41",
          "s_lshl_b32 s40, s36, 5", "s_add_u32 s16, s47, s40", "s_add_u32 s17, s16, 128", "s_add_u32 s18, s47, 256", f"s_add_u32 s19, s18, {16*1152}"],
         ["PRIO2", "v_and_b32 v4, 31, v1", "v_mul_u32_u24 v4, 1152, v4", "v_lshrrev_b32 v5, 5, v1", "v_lshl_add_u32 v5, v5, 3, v4", "PRIO0"]]
    for k in range(3):
        for e in range(2): L.append([(f"buffer_load_dwordx2 v[{XRES+4*k+2*e}:{XRES+4*k+2*e+1}], v5, s[4:7], s{XS[k]} offen offset:{16*e}", "xres")])
    return L
XRES = 64
```
